```python
import torch

def _softmax(x, axis=-1):
    return torch.softmax(x, dim=axis)
def _gelu(x):
    return torch.nn.functional.gelu(x, approximate="tanh")
def _silu(x):
    return torch.nn.functional.silu(x)
def _sigmoid(x):
    return torch.sigmoid(x)
def _layernorm(x, axis=-1, eps=1e-5):
    m = x.mean(dim=axis, keepdim=True)
    v = x.var(dim=axis, keepdim=True, unbiased=False)
    return (x - m) / torch.sqrt(v + eps)
def _scatter_add(tgt, idx, src, axis=0):
    return tgt.clone().index_add_(axis, idx, src)
def _segment_sum(src, seg, n):
    out = torch.zeros((n,) + src.shape[1:], dtype=src.dtype)
    return out.index_add_(0, seg, src)
def _pad(x, pw):
    flat = tuple(v for pair in reversed(pw) for v in pair)
    return torch.nn.functional.pad(x, flat)

kernel_name = 'standalone__hybrid_graph_tf_exphormer__graph'

def setup_inputs():

    _w = (lambda a: (lambda t: t.to(torch.bfloat16) if t.is_floating_point() else t)(torch.as_tensor(a)))
    N, deg, D = 10000, 16, 256
    E = N * deg
    exp_deg = 4
    Ee = N * exp_deg
    src = (lambda lo, hi, *s: torch.randint(lo, hi, s))(0, N, E).to(torch.int64)
    dst = (lambda lo, hi, *s: torch.randint(lo, hi, s))(0, N, E).to(torch.int64)
    esrc = (lambda lo, hi, *s: torch.randint(lo, hi, s))(0, N, Ee).to(torch.int64)
    edst = torch.repeat_interleave(torch.arange(N), exp_deg).to(torch.int64)
    deg_cnt = torch.bincount(dst, minlength=N).to(float) + 1.0
    return {
        "x": _w((lambda *s: torch.randn(*s, dtype=torch.bfloat16) * 0.05)(N, D)),
        "src": _w(src),
        "dst": _w(dst),
        "esrc": _w(esrc),
        "edst": _w(edst),
        "deg_inv_sqrt": _w(1.0 / (lambda _x: torch.sqrt(torch.as_tensor(_x)))(deg_cnt)),
        "w_l": _w((lambda *s: torch.randn(*s, dtype=torch.bfloat16) * 0.05)(D, D)),
        "wq": _w((lambda *s: torch.randn(*s, dtype=torch.bfloat16) * 0.05)(D, D)),
        "wk": _w((lambda *s: torch.randn(*s, dtype=torch.bfloat16) * 0.05)(D, D)),
        "wv": _w((lambda *s: torch.randn(*s, dtype=torch.bfloat16) * 0.05)(D, D)),
    }

def reference(x, src, dst, esrc, edst, deg_inv_sqrt, w_l, wq, wk, wv):
    N, D = x.shape
    h = x @ w_l
    msg = h[src] * deg_inv_sqrt[src, None] * deg_inv_sqrt[dst, None]
    h_local = _segment_sum(msg, dst, N)
    q = x @ wq
    k = x @ wk
    v = x @ wv
    e = (q[edst] * k[esrc]).sum(-1) * (D ** -0.5)
    exp_e = torch.exp(e)
    denom = _segment_sum(exp_e[:, None], edst, N)[:, 0] + 1e-9
    alpha = exp_e / denom[edst]
    h_attn = _segment_sum(alpha[:, None] * v[esrc], edst, N)
    return h_local + h_attn
```

```python
NAME = "standalone__hybrid_graph_tf_exphormer__graph_kernel"

class Asm:
    def __init__(self):
        self.lines = []
        self.nlab = 0
    def __call__(self, s):
        for l in s.strip("\n").split("\n"):
            l = l.strip()
            if l:
                self.lines.append(l if l.endswith(":") else "    " + l)
    def label(self, base="L"):
        self.nlab += 1
        return "%s_%d" % (base, self.nlab)
    def text(self):
        return "\n".join(self.lines) + "\n"

def wrap(body, grid, block, lds, vgpr, sgpr=102, header="", accum=None):
    accum = accum or (vgpr + 3) // 4 * 4
    return f"""{header}; @launch grid=({grid},1,1) block=({block},1,1) lds={lds}
.amdgcn_target "amdgcn-amd-amdhsa--gfx950"
.text
.globl {NAME}
.p2align 8
.type {NAME},@function
{NAME}:
{body}.section .rodata,"a"
.p2align 6
.amdhsa_kernel {NAME}
  .amdhsa_next_free_vgpr {vgpr}
  .amdhsa_next_free_sgpr {sgpr}
  .amdhsa_accum_offset {accum}
  .amdhsa_group_segment_fixed_size 0
  .amdhsa_kernarg_size 104
  .amdhsa_user_sgpr_count 2
  .amdhsa_user_sgpr_kernarg_segment_ptr 1
  .amdhsa_system_sgpr_workgroup_id_x 1
.end_amdhsa_kernel
"""
```

```python
import sys
from asmlib import Asm, wrap

NWG, NPW, EPW = 250, 40, 640
TILE, PITCH = 8448, 1056
L_E = 0
L_R1 = 10 * TILE
L_R2 = L_R1 + 2 * TILE + TILE // 2
L_R3 = L_R2 + 3 * TILE
L_LIST = L_R3 + 2 * TILE + TILE // 2
W_OFFS, W_ENT, W_MFR = 0, 0x40000, 0x100000
STAMP_OFF = 128 << 20


def gen(R=16, stamps=False):
    CAP = {16: 128, 24: 144}[R]
    LIST_B = 4 * CAP * 8
    L_CNT = L_LIST + LIST_B
    L_BASE = L_CNT + 256
    L_SYNC = L_BASE + 256
    L_HIST = L_SYNC + 64
    L_SORT = L_HIST + 1024
    L_DUMMY = L_SORT + 2560
    LDS = L_DUMMY + 512
    assert LDS <= 163840, LDS
    n_null, n_init = LIST_B // 16, (L_SORT - L_LIST) // 16
    assert n_init <= 512
    SY_X, SY_Y, SY_M, SY_C1, SY_C2, SY_A, SY_B, SY_OV = [4 * i for i in range(8)]

    a = Asm()
    sX, sWt, sWS, sOUT, sT1, sT2 = 8, 12, 16, 20, 24, 28
    pX, pSRC, pDST, pESRC, pDIS, pWL, pWQ, pWK, pWV, pOUT, pDBG, pWS = 32, 34, 36, 38, 42, 44, 46, 48, 50, 52, 54, 56
    sW, sCG, sNB, sBeta = 3, 4, 5, 6
    s0, s1, s2_, s3_ = 58, 59, 60, 61
    sRem, sK, sRow, sDis, sRnd, sPad = 62, 63, 64, 65, 66, 67
    sRet = 68
    sSelLo, sSelHi = 70, 71
    sC512 = 7
    ST0 = 72
    nst = [0]
    NSTAMP = 14

    def srd(s): return f"s[{s}:{s+3}]"
    def pr(s): return f"s[{s}:{s+1}]"
    def vr(b, n): return f"v[{b}:{b+n-1}]"
    def stamp(i):
        if stamps:
            a(f"s_memrealtime {pr(ST0+2*i)}\ns_waitcnt lgkmcnt(0)")
    def mksrd(s, p, size):
        a(f"s_mov_b32 s{s}, s{p}\ns_mov_b32 s{s+1}, s{p+1}\ns_mov_b32 s{s+2}, {size}\ns_mov_b32 s{s+3}, 0x20000")

    vL, vFrag, vM16, vSy, vT0, vT1, vT2, vT3 = 0, 1, 2, 3, 4, 5, 6, 7
    WF = 120

    def signal(off):
        a(f"""
        s_mov_b64 exec, 1
        v_mov_b32 v{vT0}, 1
        ds_add_u32 v{vSy}, v{vT0} offset:{off}
        s_mov_b64 exec, -1
        """)
    def wait(off, n):
        lp = a.label("Lw")
        a(f"""
        s_mov_b32 s{s1}, 0
        {lp}:
        ds_read_b32 v{vT0}, v{vSy} offset:{off}
        s_add_u32 s{s1}, s{s1}, 1
        s_cmp_gt_u32 s{s1}, 0x400000
        s_cbranch_scc1 L_end
        s_waitcnt lgkmcnt(0)
        v_readfirstlane_b32 s{s0}, v{vT0}
        s_nop 0
        s_cmp_lt_u32 s{s0}, {n}
        s_cbranch_scc1 {lp}
        """)

    a(f"""
    s_cmp_ge_u32 s2, {NWG}
    s_cbranch_scc1 L_exit
    """)
    if stamps:
        for i in range(NSTAMP): a(f"s_mov_b64 {pr(ST0+2*i)}, 0")
        a(f"s_memrealtime {pr(ST0)}")
    a(f"""
    s_load_dwordx16 s[32:47], s[0:1], 0
    s_load_dwordx8 s[48:55], s[0:1], 64
    s_load_dwordx2 s[56:57], s[0:1], 96
    v_lshrrev_b32 v1, 6, v0
    v_mov_b32 v8, 0xffff
    v_readfirstlane_b32 s{sW}, v1
    v_cmp_gt_u32 vcc, {n_null}, v0
    v_lshlrev_b32 v4, 4, v0
    v_add_u32 v4, {L_LIST}, v4
    v_cndmask_b32 v8, 0, v8, vcc
    v_mov_b32 v9, v8
    v_mov_b32 v10, v8
    v_mov_b32 v11, v8
    v_cmp_gt_u32 vcc, {n_init}, v0
    s_and_saveexec_b64 s[58:59], vcc
    ds_write_b128 v4, v[8:11]
    s_mov_b64 exec, -1
    v_and_b32 v{vL}, 63, v0
    s_and_b32 s{s0}, s2, 7
    s_lshr_b32 s{s1}, s2, 3
    s_mul_i32 s{sBeta}, s{s0}, 31
    s_min_u32 s{s0}, s{s0}, 2
    s_add_u32 s{sBeta}, s{sBeta}, s{s0}
    s_add_u32 s{sBeta}, s{sBeta}, s{s1}
    s_mul_i32 s{sNB}, s{sBeta}, {NPW}
    s_and_b32 s{sCG}, s{sW}, 3
    s_movk_i32 s{sC512}, 512
    v_and_b32 v{vT0}, 7, v{vL}
    v_mul_u32_u24 v{vFrag}, {PITCH}, v{vT0}
    v_and_b32 v{vT0}, 8, v{vL}
    v_lshl_add_u32 v{vFrag}, v{vT0}, 6, v{vFrag}
    v_and_b32 v{vT0}, 48, v{vL}
    v_add_u32 v{vFrag}, v{vT0}, v{vFrag}
    v_and_b32 v{vM16}, 31, v{vL}
    v_lshlrev_b32 v{vM16}, 4, v{vM16}
    v_mov_b32 v{vSy}, {L_SYNC}
    s_mov_b32 s{sSelLo}, 0x05040100
    s_mov_b32 s{sSelHi}, 0x07060302
    s_waitcnt lgkmcnt(0)
    s_barrier
    """)
    mksrd(sX, pX, 10000 * 512)
    mksrd(sWS, pWS, 0x200000)
    a(f"""
    s_cmp_ge_u32 s{sW}, 4
    s_cselect_b32 s{sWt}, s{pWL}, s{pWV}
    s_cselect_b32 s{sWt+1}, s{pWL+1}, s{pWV+1}
    s_mov_b32 s{sWt+2}, 131072
    s_mov_b32 s{sWt+3}, 0x20000
    s_cbranch_scc1 L_preB
    """)

    IDX = 16
    mksrd(sT1, pESRC, 40000 * 4)
    a(f"""
    v_and_b32 v{vT0}, 32, v{vL}
    s_mul_i32 s{s0}, s{sBeta}, 640
    s_lshl_b32 s{s1}, s{sW}, 6
    s_add_u32 s{s0}, s{s0}, s{s1}
    """)
    for gi in range(3):
        for q in range(2):
            a(f"buffer_load_dwordx4 {vr(IDX+8*gi+4*q,4)}, v{vT0}, {srd(sT1)}, s{s0} offen offset:{256*gi+16*q}")
    a(f"""
    v_lshl_add_u32 v{vT1}, v{vT0}, 7, v{vM16}
    v_lshl_add_u32 v{vT2}, v{vT0}, 6, v{vM16}
    s_add_u32 s{s0}, s{sNB}, s{sW}
    s_lshl_b32 s{s0}, s{s0}, 9
    s_mul_i32 s{s1}, s{sW}, {PITCH}
    """)
    for (dr, di, v) in ((0, 0, vT1), (4, 4, vT1), (16, 8, vT1), (20, 12, vT1), (32, 16, vT2)):
        a(f"""
        s_add_u32 m0, s{s1}, {L_R1 + di*PITCH}
        s_add_u32 s{s2_}, s{s0}, {dr*512}
        buffer_load_dwordx4 v{v}, {srd(sX)}, s{s2_} offen lds
        """)
    a(f"s_mul_i32 s{s1}, s{sW}, {TILE}\ns_waitcnt vmcnt(5)")
    for gi in range(3):
        if gi == 2: a(f"s_cmp_ge_u32 s{sW}, 2\ns_cbranch_scc1 L_wload")
        for u in range(8):
            a(f"""
            s_add_u32 m0, s{s1}, {L_E + gi*4*TILE + u*PITCH}
            v_lshl_add_u32 v{vT0+(u&1)}, v{IDX+8*gi+u}, 9, v{vM16}
            buffer_load_dwordx4 v{vT0+(u&1)}, {srd(sX)}, 0 offen lds
            """)
    a("s_branch L_wload")

    a(f"""
    L_preB:
    s_cmp_eq_u32 s{sW}, 5
    s_cbranch_scc1 L_mtask
    s_cmp_eq_u32 s{sW}, 4
    s_cbranch_scc1 L_prod
    """)
    mksrd(sT1, pDIS, 20000)
    a(f"""
    s_sub_u32 s{s0}, s{sW}, 6
    s_mul_i32 s{s0}, s{s0}, 10240
    v_lshlrev_b32 v{vT0}, 4, v{vL}
    """)
    for i in range(10):
        if i % 4 == 0:
            a(f"s_add_u32 m0, s{s0}, {L_R3 + i*1024}\ns_add_u32 s{s1}, s{s0}, {i*1024}")
        a(f"buffer_load_dwordx4 v{vT0}, {srd(sT1)}, s{s1} offen offset:{(i%4)*1024} lds")
    a("s_branch L_wload")

    a(f"""
    L_mtask:
    s_cmp_ge_u32 s2, 128
    s_cbranch_scc1 L_mdone
    s_setprio 2
    """)
    mksrd(sT1, pWQ, 131072)
    mksrd(sT2, pWK, 131072)
    a(f"""
    v_and_b32 v{vT0}, 32, v{vL}
    v_lshl_add_u32 v{vT0}, v{vT0}, 8, v{vM16}
    s_and_b32 s{s0}, s2, 7
    s_lshl_b32 s{s0}, s{s0}, 14
    s_lshr_b32 s{s1}, s2, 4
    s_lshl_b32 s{s1}, s{s1}, 14
    s_bfe_u32 s{s2_}, s2, 0x10003
    s_lshl_b32 s{s2_}, s{s2_}, 11
    s_add_u32 s{s1}, s{s1}, s{s2_}
    """)
    for t in range(3):
        for u in range(8):
            row = 8 * (u >> 2) + (u & 3) + (4 * t if t < 2 else 0)
            a(f"""
            s_mov_b32 m0, {L_R2 + t*TILE + u*PITCH}
            s_add_u32 s{s2_}, s{s0 if t < 2 else s1}, {row*512}
            buffer_load_dwordx4 v{vT0}, {srd(sT1 if t < 2 else sT2)}, s{s2_} offen lds
            """)
    a(f"""
    v_add_u32 v{vT1}, {L_R2}, v{vFrag}
    s_lshr_b32 s{s0}, s2, 4
    s_lshl_b32 s{s0}, s{s0}, 3
    s_and_b32 s{s1}, s2, 7
    s_add_u32 s{s0}, s{s0}, s{s1}
    s_lshl_b32 s{s0}, s{s0}, 1
    s_bfe_u32 s{s1}, s2, 0x10003
    s_add_u32 s{s0}, s{s0}, s{s1}
    s_lshl_b32 s{s0}, s{s0}, 10
    s_add_u32 s{s0}, s{s0}, {W_MFR}
    v_lshlrev_b32 v{vT2}, 4, v{vL}
    s_waitcnt vmcnt(0)
    """)
    for half in range(2):
        for ks in range(4):
            for t in range(3):
                a(f"ds_read_b128 {vr(16+12*ks+4*t,4)}, v{vT1} offset:{t*TILE + (4*half+ks)*64}")
        for ks in range(4):
            a(f"s_waitcnt lgkmcnt({9-3*ks})")
            for t in range(2):
                c = "0" if (half == 0 and ks == 0) else vr(8 + 4 * t, 4)
                a(f"v_mfma_f32_16x16x32_bf16 {vr(8+4*t,4)}, {vr(16+12*ks+4*t,4)}, {vr(16+12*ks+8,4)}, {c}")
    a(f"""
    s_nop 7
    v_cvt_pk_bf16_f32 v16, v8, v9
    v_cvt_pk_bf16_f32 v17, v10, v11
    v_cvt_pk_bf16_f32 v18, v12, v13
    v_cvt_pk_bf16_f32 v19, v14, v15
    buffer_store_dwordx4 v[16:19], v{vT2}, {srd(sWS)}, s{s0} offen sc1
    s_waitcnt vmcnt(0)
    s_setprio 0
    L_mdone:
    """)
    signal(SY_M)
    stamp(1)
    a("s_branch L_wload")

    SRCV, DSTV, AV, PV = 16, 26, 36, 46
    a("L_prod:\ns_setprio 3")
    mksrd(sT1, pSRC, 640000)
    mksrd(sT2, pDST, 640000)
    a(f"""
    v_lshlrev_b32 v{vT1}, 4, v{vL}
    v_lshlrev_b32 v{vT2}, 3, v{vL}
    s_mul_i32 s{s0}, s2, {EPW*4}
    buffer_load_dwordx4 {vr(DSTV,4)}, v{vT1}, {srd(sT2)}, s{s0} offen
    buffer_load_dwordx4 {vr(DSTV+4,4)}, v{vT1}, {srd(sT2)}, s{s0} offen offset:1024
    buffer_load_dwordx2 {vr(DSTV+8,2)}, v{vT2}, {srd(sT2)}, s{s0} offen offset:2048
    buffer_load_dwordx4 {vr(SRCV,4)}, v{vT1}, {srd(sT1)}, s{s0} offen
    buffer_load_dwordx4 {vr(SRCV+4,4)}, v{vT1}, {srd(sT1)}, s{s0} offen offset:1024
    buffer_load_dwordx2 {vr(SRCV+8,2)}, v{vT2}, {srd(sT1)}, s{s0} offen offset:2048
    v_mov_b32 v8, 1
    v_mov_b32 v9, 4
    v_mov_b32 v10, {L_HIST}
    v_add_u32 v11, {L_HIST}, v{vT1}
    s_lshl_b32 s{s1}, s2, 10
    s_add_u32 s{s0}, s{s0}, {W_ENT}
    s_waitcnt vmcnt(3)
    """)
    stamp(1)
    for j in range(10):
        a(f"""
        v_mul_u32_u24 v{AV+j}, 52429, v{DSTV+j}
        v_lshrrev_b32 v{AV+j}, 21, v{AV+j}
        v_lshl_add_u32 v{AV+j}, v{AV+j}, 2, v10
        ds_add_u32 v{AV+j}, v8
        """)
    a("ds_read_b128 v[12:15], v11\ns_waitcnt vmcnt(0)")
    for j in range(10):
        a(f"v_lshl_or_b32 v{SRCV+j}, v{DSTV+j}, 16, v{SRCV+j}")
    a(f"""
    s_waitcnt lgkmcnt(0)
    v_add_u32 v56, v12, v13
    v_add3_u32 v57, v56, v14, v15
    v_mov_b32 v58, v57
    s_nop 1
    v_add_u32_dpp v58, v58, v58 row_shr:1 row_mask:0xf bank_mask:0xf bound_ctrl:1
    s_nop 1
    v_add_u32_dpp v58, v58, v58 row_shr:2 row_mask:0xf bank_mask:0xf bound_ctrl:1
    s_nop 1
    v_add_u32_dpp v58, v58, v58 row_shr:4 row_mask:0xf bank_mask:0xf bound_ctrl:1
    s_nop 1
    v_add_u32_dpp v58, v58, v58 row_shr:8 row_mask:0xf bank_mask:0xf bound_ctrl:1
    s_nop 1
    v_add_u32_dpp v58, v58, v58 row_bcast:15 row_mask:0xa bank_mask:0xf
    s_nop 1
    v_add_u32_dpp v58, v58, v58 row_bcast:31 row_mask:0xc bank_mask:0xf
    v_mov_b32 v59, {L_SORT}
    v_sub_u32 v60, v58, v57
    v_add_u32 v61, v60, v12
    v_add_u32 v62, v60, v56
    v_add_u32 v63, v62, v14
    v_lshl_add_u32 v64, v60, 2, v59
    v_lshl_add_u32 v65, v61, 2, v59
    v_lshl_add_u32 v66, v62, 2, v59
    v_lshl_add_u32 v67, v63, 2, v59
    ds_write_b128 v11, v[64:67]
    """)
    for j in range(10):
        a(f"ds_add_rtn_u32 v{PV+j}, v{AV+j}, v9")
    a(f"""
    v_lshl_or_b32 v60, v12, 16, v60
    v_lshl_or_b32 v61, v13, 16, v61
    v_lshl_or_b32 v62, v14, 16, v62
    v_lshl_or_b32 v63, v15, 16, v63
    buffer_store_dwordx4 v[60:63], v{vT1}, {srd(sWS)}, s{s1} offen sc1
    v_add_u32 v11, {L_SORT}, v{vT1}
    v_add_u32 v10, {L_SORT}, v{vT2}
    """)
    for j in range(10):
        a(f"s_waitcnt lgkmcnt(9)\nds_write_b32 v{PV+j}, v{SRCV+j}")
    a(f"""
    ds_read_b128 v[64:67], v11
    ds_read_b128 v[68:71], v11 offset:1024
    ds_read_b64 v[72:73], v10 offset:2048
    s_waitcnt lgkmcnt(2)
    buffer_store_dwordx4 v[64:67], v{vT1}, {srd(sWS)}, s{s0} offen sc1
    s_waitcnt lgkmcnt(1)
    buffer_store_dwordx4 v[68:71], v{vT1}, {srd(sWS)}, s{s0} offen offset:1024 sc1
    s_waitcnt lgkmcnt(0)
    buffer_store_dwordx2 v[72:73], v{vT2}, {srd(sWS)}, s{s0} offen offset:2048 sc1
    """)
    stamp(2)
    wait(SY_M, 1)
    a(f"""
    v_mov_b32 v{vT1}, s2
    s_waitcnt vmcnt(0)
    s_mov_b64 exec, 1
    global_store_byte v{vT1}, v8, {pr(pDBG)} sc1
    s_mov_b64 exec, -1
    s_setprio 0
    """)
    stamp(3)

    a(f"""
    L_wload:
    v_and_b32 v{vT0}, 15, v{vL}
    v_lshlrev_b32 v{vT0}, 2, v{vT0}
    v_and_b32 v{vT1}, 48, v{vL}
    v_lshl_add_u32 v{vT0}, v{vT1}, 8, v{vT0}
    s_lshl_b32 s{s0}, s{sCG}, 7
    """)
    AHEAD = 6
    def wissue(n):
        s, seg = n >> 1, n & 1
        if seg == 0 and s > 0: a(f"s_add_u32 s{s0}, s{s0}, 16384")
        for j in range(8):
            a(f"buffer_load_dword v{WF+8*(n+1)+j}, v{vT0}, {srd(sWt)}, s{s0} offen offset:{j*512+seg*64}")
    for n in range(AHEAD):
        if n >= 2 and n % 2 == 0: a("s_waitcnt vmcnt(46)")
        wissue(n)
    for n in range(16):
        left = min(AHEAD - 1, 15 - n)
        a(f"s_waitcnt vmcnt({8*left})")
        r, o = WF + 8 * (n + 1), WF + 8 * n
        for q in range(4):
            a(f"v_perm_b32 v{o+q}, v{r+2*q+1}, v{r+2*q}, s{sSelLo}")
            a(f"v_perm_b32 v{o+4+q}, v{r+2*q+1}, v{r+2*q}, s{sSelHi}")
        if n + AHEAD < 16: wissue(n + AHEAD)
    stamp(4)
    a(f"""
    s_lshr_b32 s{s0}, s{sW}, 2
    s_lshl_b32 s{s0}, s{s0}, 2
    s_mov_b64 exec, 1
    v_add_u32 v{vT1}, s{s0}, v{vSy}
    v_mov_b32 v{vT0}, 1
    ds_add_u32 v{vT1}, v{vT0}
    s_mov_b64 exec, -1
    v_lshlrev_b32 v{vT1}, 2, v{vL}
    v_mov_b32 v{vT2}, 0x01010101
    v_mov_b32 v{vT3}, 0x0101
    v_cmp_eq_u32 vcc, 62, v{vL}
    s_mov_b32 s{s1}, 0
    s_nop 0
    v_cndmask_b32 v{vT2}, v{vT2}, v{vT3}, vcc
    v_cmp_gt_u32 vcc, 63, v{vL}
    s_nop 1
    v_cndmask_b32 v{vT2}, 0, v{vT2}, vcc
    L_poll:
    global_load_dword v{vT0}, v{vT1}, {pr(pDBG)} sc1
    s_add_u32 s{s1}, s{s1}, 1
    s_cmp_gt_u32 s{s1}, 0x40000
    s_cbranch_scc1 L_end
    s_waitcnt vmcnt(0)
    v_cmp_ne_u32 vcc, v{vT0}, v{vT2}
    s_cbranch_vccz L_polled
    s_sleep 2
    s_branch L_poll
    L_polled:
    """)
    stamp(5)
    a(f"s_cmp_ge_u32 s{sW}, 4\ns_cbranch_scc1 L_postB")

    MR, XB = 16, 80
    ACC = [104, 108, 112, 116, 248, 252]
    vXa, vQw, vMo = 8, 9, 10
    a(f"""
    v_lshlrev_b32 v{vMo}, 4, v{vL}
    s_lshl_b32 s{s2_}, s{sW}, 15
    s_add_u32 s{s2_}, s{s2_}, {W_MFR}
    """)
    def mload(i):
        if i % 4 == 0 and i: a(f"s_add_u32 s{s2_}, s{s2_}, 4096")
        a(f"buffer_load_dwordx4 {vr(MR+4*(i%16),4)}, v{vMo}, {srd(sWS)}, s{s2_} offen offset:{(i%4)*1024} sc1")
    for i in range(16): mload(i)
    a(f"""
    v_add_u32 v{vXa}, {L_R1}, v{vFrag}
    s_lshl_b32 s{s3_}, s{sW}, 7
    s_add_u32 s{s3_}, s{s3_}, {L_R2}
    v_add_u32 v{vQw}, s{s3_}, v{vFrag}
    """)
    wait(SY_X, 4)
    def xread(s):
        for rt in range(3):
            a(f"ds_read_b128 {vr(XB+12*(s&1)+4*rt,4)}, v{vXa} offset:{rt*TILE+(s&7)*64}")
    xread(0)
    for u in range(2):
        for s in range(8):
            last = (u == 1 and s == 7)
            if not last: xread(s + 1)
            vm = 14 if u == 0 else 14 - 2 * s
            a(f"s_waitcnt vmcnt({vm}) lgkmcnt({0 if last else 3})")
            for rt in range(3):
                for t in range(2):
                    d = vr(ACC[2 * rt + t], 4)
                    a(f"v_mfma_f32_16x16x32_bf16 {d}, {vr(MR+8*s+4*t,4)}, {vr(XB+12*(s&1)+4*rt,4)}, {'0' if s == 0 else d}")
            if u == 0:
                mload(16 + 2 * s); mload(17 + 2 * s)
        a("s_nop 3")
        for rt in range(3):
            d0, d1 = ACC[2 * rt], ACC[2 * rt + 1]
            a(f"""
            v_cvt_pk_bf16_f32 v12, v{d0}, v{d0+1}
            v_cvt_pk_bf16_f32 v13, v{d0+2}, v{d0+3}
            v_cvt_pk_bf16_f32 v14, v{d1}, v{d1+1}
            v_cvt_pk_bf16_f32 v15, v{d1+2}, v{d1+3}
            ds_write_b128 v{vQw}, v[12:15] offset:{rt*TILE+u*64}
            """)
    signal(SY_A)
    stamp(6)

    vSL0, vSL1, vSH0, vSH1 = 8, 9, 10, 11
    vEa, vQa, vEr, vAw = 12, 13, 14, 15
    def selregs(lo):
        a(f"""
        v_and_b32 v{vT0}, 3, v{vL}
        v_mov_b32 v{vT1}, 0x0c0c0c0c
        v_mov_b32 v{vT2}, 0x0c0c0302
        v_mov_b32 v{vT3}, 0x03020c0c
        v_cmp_eq_u32 s[58:59], 0, v{vT0}
        v_cmp_eq_u32 s[60:61], 2, v{vT0}
        v_cmp_eq_u32 vcc, 1, v{vT0}
        v_cndmask_b32 v{vSH0}, v{vT1}, v{vT2}, s[58:59]
        v_cndmask_b32 v{vSH1}, v{vT1}, v{vT2}, s[60:61]
        v_cndmask_b32 v{vSH0}, v{vSH0}, v{vT3}, vcc
        v_cmp_eq_u32 vcc, 3, v{vT0}
        s_nop 1
        v_cndmask_b32 v{vSH1}, v{vSH1}, v{vT3}, vcc
        """)
        if lo:
            a(f"v_and_b32 v{vSL0}, 0xfdfdfdfd, v{vSH0}\nv_and_b32 v{vSL1}, 0xfdfdfdfd, v{vSH1}")
    selregs(True)
    sG = sK
    a(f"s_mov_b32 s{sG}, s{sW}")
    wait(SY_A, 4)
    EA, QB, RB, AJ, DK = 16, 48, 16, 80, 88
    a(f"""
    L_grp:
    s_mul_i32 s{s0}, s{sG}, {TILE}
    s_lshr_b32 s{s1}, s{sG}, 2
    s_mul_i32 s{s1}, s{s1}, {TILE}
    s_and_b32 s{s2_}, s{sG}, 1
    s_bfe_u32 s{s3_}, s{sG}, 0x10001
    s_cmp_ge_u32 s{sG}, 8
    s_cselect_b32 s{s3_}, s{s2_}, s{s3_}
    s_cselect_b32 s{s2_}, 0, s{s2_}
    s_mul_i32 s{s2_}, s{s2_}, {TILE//2}
    s_lshl_b32 s{s3_}, s{s3_}, 9
    s_add_u32 s{s1}, s{s1}, s{s2_}
    s_add_u32 s{s1}, s{s1}, s{s3_}
    s_add_u32 s{s1}, s{s1}, {L_R2}
    v_add_u32 v{vEa}, s{s0}, v{vFrag}
    v_bfe_u32 v{vT0}, v{vL}, 2, 2
    v_mul_u32_u24 v{vT0}, {PITCH}, v{vT0}
    v_and_b32 v{vT1}, 48, v{vL}
    v_add3_u32 v{vQa}, v{vT0}, v{vT1}, s{s1}
    v_lshl_add_u32 v{vEr}, v{vL}, 3, s{s0}
    v_lshl_add_u32 v{vAw}, v{vL}, 3, s{s1}
    """)
    for half in range(2):
        for s in range(4 * half, 4 * half + 4):
            a(f"ds_read_b128 {vr(EA+4*s,4)}, v{vEa} offset:{s*64}")
            a(f"ds_read_b128 {vr(QB+4*s,4)}, v{vQa} offset:{s*64}")
        if half == 0: a("s_waitcnt lgkmcnt(7)")
    for s in range(8):
        a(f"s_waitcnt lgkmcnt({14-2*s})")
        a(f"v_mfma_f32_16x16x32_bf16 v[104:107], {vr(EA+4*s,4)}, {vr(QB+4*s,4)}, {'0' if s == 0 else 'v[104:107]'}")
    for j in range(4):
        for k in range(4):
            i = 4 * k + j
            if j == 3 and k == 3: a("s_waitcnt lgkmcnt(14)")
            a(f"ds_read_b64 {vr(RB+8*j+2*k,2)}, v{vEr} offset:{(i&7)*PITCH+(i>>3)*512}")
    a(f"""
    v_mul_f32 v104, 0x3db8aa3b, v104
    v_mul_f32 v105, 0x3db8aa3b, v105
    v_mul_f32 v106, 0x3db8aa3b, v106
    v_mul_f32 v107, 0x3db8aa3b, v107
    v_exp_f32 v104, v104
    v_exp_f32 v105, v105
    v_exp_f32 v106, v106
    v_exp_f32 v107, v107
    v_add_f32 v108, v104, v105
    v_add_f32 v109, v106, v107
    v_add_f32 v108, v108, v109
    v_add_f32 v108, 0x3089705f, v108
    v_rcp_f32 v108, v108
    s_nop 0
    v_mul_f32 v104, v104, v108
    v_mul_f32 v105, v105, v108
    v_mul_f32 v106, v106, v108
    v_mul_f32 v107, v107, v108
    v_cvt_pk_bf16_f32 v104, v104, v105
    v_cvt_pk_bf16_f32 v106, v106, v107
    """)
    for j in range(4):
        src = 104 + (j & 2)
        a(f"v_perm_b32 v{AJ+2*j}, v{src}, v{src}, v{vSH0 if j & 1 else vSL0}")
        a(f"v_perm_b32 v{AJ+2*j+1}, v{src}, v{src}, v{vSH1 if j & 1 else vSL1}")
    a("s_waitcnt lgkmcnt(0)")
    for j in range(4):
        for k in range(4):
            d = vr(DK + 4 * k, 4)
            a(f"v_mfma_f32_4x4x4_16b_bf16 {d}, {vr(AJ+2*j,2)}, {vr(RB+8*j+2*k,2)}, {'0' if j == 0 else d} cbsz:4 abid:{5*k}")
    a(f"s_add_u32 s{sG}, s{sG}, 4\ns_nop 1")
    for k in range(4):
        d = DK + 4 * k
        a(f"""
        v_cvt_pk_bf16_f32 v{AJ+2*k}, v{d}, v{d+1}
        v_cvt_pk_bf16_f32 v{AJ+2*k+1}, v{d+2}, v{d+3}
        ds_write_b64 v{vAw}, {vr(AJ+2*k,2)} offset:{k*PITCH}
        """)
    a(f"s_cmp_lt_u32 s{sG}, 10\ns_cbranch_scc1 L_grp")
    signal(SY_B)
    stamp(7)

    GA, GC = 16, 48
    vAa, vH = 8, 9
    def wgemm(first_c_zero):
        for s in range(8):
            a(f"ds_read_b128 {vr(GA+4*s,4)}, v{vAa} offset:{s*64}")
        for s in range(8):
            a(f"s_waitcnt lgkmcnt({7-s})")
            for q in range(4):
                d = vr(GC + 4 * q, 4)
                a(f"v_mfma_f32_16x16x32_bf16 {d}, {vr(GA+4*s,4)}, {vr(WF+16*s+4*q,4)}, {'0' if (s == 0 and first_c_zero) else d}")
    a(f"""
    v_add_u32 v{vAa}, {L_R2}, v{vFrag}
    s_mul_i32 s{s2_}, s{sCG}, 12288
    v_lshl_add_u32 v{vH}, v{vL}, 4, s{s2_}
    s_mov_b32 s{sK}, 0
    """)
    wait(SY_B, 4)
    a("L_wvt:")
    wgemm(True)
    a(f"""
    v_add_u32 v{vAa}, {TILE}, v{vAa}
    s_add_u32 s{sK}, s{sK}, 1
    s_nop 2
    """)
    for q in range(4):
        a(f"ds_write_b128 v{vH}, {vr(GC+4*q,4)} offset:{q*1024}")
    a(f"""
    v_add_u32 v{vH}, 4096, v{vH}
    s_cmp_lt_u32 s{sK}, 3
    s_cbranch_scc1 L_wvt
    s_waitcnt lgkmcnt(0)
    """)
    stamp(8)
    a("s_barrier\ns_branch L_end")

    EV, LA, RK, WV = 16, 32, 48, 72
    vDis, vRow, vSl, vEnt, vAad, vFo = 8, 9, 12, 13, 14, 15
    vCnt, vEa2, vKey, vSuf, vC4, vR3, vCb = 64, 65, 66, 67, 68, 69, 70
    a("L_postB:\ns_setprio 1")
    mksrd(sT1, pWS, NWG * 1024)
    a(f"""
    s_lshl_b32 s{s0}, s{sCG}, 6
    v_add_u32 v{vT1}, s{s0}, v{vL}
    v_lshlrev_b32 v{vT2}, 10, v{vT1}
    s_lshl_b32 s{s0}, s{sBeta}, 2
    buffer_load_dword v{vCnt}, v{vT2}, {srd(sT1)}, s{s0} offen sc1
    v_mul_u32_u24 v{vEa2}, {EPW*4}, v{vT1}
    """)
    mksrd(sOUT, pOUT, 10000 * 512)
    selregs(False)
    a(f"""
    v_lshrrev_b32 v{vT1}, 4, v{vL}
    v_and_b32 v{vT2}, 15, v{vL}
    v_mad_u32_u24 v{vKey}, v{vT1}, 10, v{vT2}
    v_lshrrev_b32 v{vT1}, 4, v{vKey}
    v_mul_u32_u24 v{vRow}, {TILE}, v{vT1}
    v_cmp_le_u32 vcc, 32, v{vKey}
    v_and_b32 v{vT1}, 7, v{vKey}
    v_and_b32 v{vT2}, 3, v{vKey}
    v_cndmask_b32 v{vT1}, v{vT1}, v{vT2}, vcc
    v_mul_u32_u24 v{vT1}, {PITCH}, v{vT1}
    v_bfe_u32 v{vT2}, v{vKey}, 3, 1
    v_bfe_u32 v{vT3}, v{vKey}, 2, 1
    v_cndmask_b32 v{vT2}, v{vT2}, v{vT3}, vcc
    v_lshl_add_u32 v{vT1}, v{vT2}, 9, v{vT1}
    v_mov_b32 v{vR3}, {L_R3}
    v_add3_u32 v{vRow}, v{vRow}, v{vT1}, v{vR3}
    v_lshrrev_b32 v{vT1}, 5, v{vL}
    v_lshl_add_u32 v{vFo}, v{vT1}, 3, v{vM16}
    v_mov_b32 v{vC4}, 4
    s_lshl_b32 s{s0}, s{sNB}, 2
    s_sub_u32 s{s0}, {L_CNT}, s{s0}
    v_mov_b32 v{vCb}, s{s0}
    """)
    wait(SY_Y, 4)
    a(f"""
    v_add_u32 v{vT1}, s{sNB}, v{vKey}
    v_lshl_add_u32 v{vT1}, v{vT1}, 1, v{vR3}
    ds_read_u16 v{vDis}, v{vT1}
    s_mov_b32 s{s0}, {W_ENT}
    s_waitcnt vmcnt(0)
    v_mad_u32_u16 v{vEa2}, v{vCnt}, 4, v{vEa2}
    v_lshrrev_b32 v{vCnt}, 16, v{vCnt}
    """)
    stamp(6)
    for q in range(4):
        a(f"""
        v_cmpx_lt_u32 vcc, {4*q}, v{vCnt}
        s_cbranch_execz L_entld
        buffer_load_dwordx4 {vr(EV+4*q,4)}, v{vEa2}, {srd(sWS)}, s{s0} offen offset:{16*q} sc1
        """)
    a(f"""
    v_cmpx_lt_u32 vcc, 16, v{vCnt}
    s_cbranch_execz L_entld
    ds_write_b32 v{vSy}, v{vC4} offset:{SY_OV}
    L_entld:
    s_mov_b64 exec, -1
    s_waitcnt vmcnt(0)
    """)
    stamp(7)
    for j in range(16):
        a(f"""
        v_cmpx_lt_u32 vcc, {j}, v{vCnt}
        s_cbranch_execz L_l1
        v_mad_u32_u16 v{LA+j}, v{EV+j}, 4, v{vCb} op_sel:[1,0,0,0]
        v_mad_u32_u16 v{vT1}, v{EV+j}, 2, v{vR3}
        ds_add_rtn_u32 v{RK+j}, v{LA+j}, v{vC4}
        ds_read_u16 v{WV+j}, v{vT1}
        """)
        if j % 4 == 3 and j < 15: a("s_waitcnt lgkmcnt(4)")
    a("L_l1:\ns_mov_b64 exec, -1")
    signal(SY_C1)
    a(f"""
    v_lshlrev_b32 v{vKey}, 2, v{vKey}
    v_add_u32 v{vKey}, {L_CNT}, v{vKey}
    v_lshrrev_b32 v{vT2}, 4, v{vL}
    v_mul_u32_u24 v{vT2}, {CAP*8}, v{vT2}
    v_add_u32 v{vT2}, {L_LIST + CAP*8}, v{vT2}
    v_and_b32 v{vT3}, 15, v{vL}
    """)
    wait(SY_C1, 4)
    a(f"""
    ds_read_b32 v{vSl}, v{vKey}
    ds_read_b32 v{vT1}, v{vSy} offset:{SY_OV}
    v_cmp_gt_u32 s[60:61], 10, v{vT3}
    v_lshlrev_b32 v{vDis}, 16, v{vDis}
    s_waitcnt lgkmcnt(1)
    v_add_u32 v{vSl}, 4, v{vSl}
    v_lshrrev_b32 v{vSl}, 3, v{vSl}
    v_max_u32 v{vSl}, 1, v{vSl}
    v_cndmask_b32 v{vSl}, 0, v{vSl}, s[60:61]
    v_mov_b32 v{vSuf}, v{vSl}
    s_nop 1
    v_add_u32_dpp v{vSuf}, v{vSuf}, v{vSuf} row_shl:1 row_mask:0xf bank_mask:0xf bound_ctrl:1
    s_nop 1
    v_add_u32_dpp v{vSuf}, v{vSuf}, v{vSuf} row_shl:2 row_mask:0xf bank_mask:0xf bound_ctrl:1
    s_nop 1
    v_add_u32_dpp v{vSuf}, v{vSuf}, v{vSuf} row_shl:4 row_mask:0xf bank_mask:0xf bound_ctrl:1
    s_nop 1
    v_add_u32_dpp v{vSuf}, v{vSuf}, v{vSuf} row_shl:8 row_mask:0xf bank_mask:0xf bound_ctrl:1
    s_waitcnt lgkmcnt(0)
    v_lshl_add_u32 v{vT1}, v{vT1}, 10, v{vSuf}
    v_lshlrev_b32 v{vT3}, 3, v{vSuf}
    v_cmp_le_u32 vcc, {CAP}, v{vT1}
    v_sub_u32 v{vT2}, v{vT2}, v{vT3}
    v_subrev_u32 v{vSl}, 1, v{vSl}
    s_lshl_b32 s{sK}, s{sCG}, 4
    s_cbranch_vccnz L_slow
    s_mov_b64 exec, s[60:61]
    ds_write_b32 v{vKey}, v{vT2} offset:{L_BASE-L_CNT}
    s_mov_b64 exec, -1
    """)
    for j in range(16):
        a(f"""
        v_cmpx_lt_u32 vcc, {j}, v{vCnt}
        s_cbranch_execz L_l2
        ds_read_b32 v{LA+j}, v{LA+j} offset:{L_BASE-L_CNT}
        """)
        if j == 12: a("s_waitcnt lgkmcnt(8)")
    a(f"""
    L_l2:
    s_mov_b64 exec, -1
    s_nop 3
    v_readlane_b32 s{sPad}, v{vSuf}, s{sK}
    s_waitcnt lgkmcnt(0)
    """)
    for j in range(16):
        a(f"""
        v_cmpx_lt_u32 vcc, {j}, v{vCnt}
        s_cbranch_execz L_l3
        v_add_u32 v{LA+j}, v{LA+j}, v{RK+j}
        v_perm_b32 v{EV+j}, v{WV+j}, v{EV+j}, s{sSelLo}
        ds_write_b32 v{LA+j}, v{EV+j}
        """)
        if j == 12: a("s_waitcnt lgkmcnt(8)")
    a("L_l3:\ns_mov_b64 exec, -1")
    signal(SY_C2)
    if R == 16:
        a(f"s_lshr_b32 s{sRnd}, s{sPad}, 4")
    else:
        a(f"s_mul_i32 s{sRnd}, s{sPad}, 2731\ns_lshr_b32 s{sRnd}, s{sRnd}, 16")
    a(f"""
    s_add_u32 s{s2_}, s{sRnd}, 1
    s_mul_i32 s{s2_}, s{s2_}, {R}
    s_sub_u32 s{sPad}, s{s2_}, s{sPad}
    s_sub_u32 s{sRem}, s{sPad}, 1
    s_add_u32 s{s3_}, s{sCG}, 1
    s_mul_i32 s{s3_}, s{s3_}, {CAP}
    s_sub_u32 s{s2_}, s{s3_}, s{s2_}
    s_lshl_b32 s{s2_}, s{s2_}, 3
    s_add_u32 s{s2_}, s{s2_}, {L_LIST}
    v_lshrrev_b32 v{vT1}, 5, v{vL}
    v_lshl_add_u32 v{vEnt}, v{vT1}, 2, s{s2_}
    v_bfe_u32 v{vT1}, v{vL}, 2, 3
    v_lshl_add_u32 v{vAad}, v{vT1}, 3, v{vEnt}
    s_mov_b32 s{sRow}, {L_DUMMY}
    s_mov_b32 s{sDis}, 0
    s_sub_u32 s{sK}, s{sK}, 1
    """)
    wait(SY_C2, 4)
    stamp(8)

    RING, ENT, GACC = 16, 16 + 4 * R, 248
    assert ENT + 8 <= WF
    vA0, vAraw, vAd = vT2, vT1, vT0
    def entread(slot):
        e = ENT + (slot & 7)
        a(f"ds_read2_b32 {vr(e,2)}, v{vEnt} offset0:{2*slot} offset1:{2*slot+2}")
    def gload(t):
        a(f"""
        v_mad_u32_u16 v{vAd}, v{ENT+(t&7)}, s{sC512}, v{vM16}
        buffer_load_dwordx4 {vr(RING+4*t,4)}, v{vAd}, {srd(sX)}, 0 offen
        """)
    for g in range(R // 8):
        nx = a.label("Lpg")
        a(f"s_cmp_ge_u32 s{sPad}, {8*g+8}\ns_cbranch_scc1 {nx}")
        for i in range(0, 8, 2): entread(8 * g + i)
        a("s_waitcnt lgkmcnt(0)")
        for t in range(8 * g, 8 * g + 8):
            if t % 8 < 7:
                sk = a.label("Lps")
                a(f"s_cmp_gt_u32 s{sPad}, {t}\ns_cbranch_scc1 {sk}")
                gload(t)
                a(f"{sk}:")
            else:
                gload(t)
        a(f"{nx}:")
    a(f"ds_read_b32 v{vAraw}, v{vAad}")
    for i in range(0, 8, 2): entread(R + i)
    stubs = []
    def consume(t, tag, vm, steady):
        if t % 8 == 0:
            a(f"""
            s_waitcnt lgkmcnt({3 if steady else 0})
            v_perm_b32 v{vA0}, v{vAraw}, v{vAraw}, v{vSH0}
            v_perm_b32 v{vA0+1}, v{vAraw}, v{vAraw}, v{vSH1}
            """)
            a(f"ds_read_b32 v{vAraw}, v{vAad} offset:{8*(t+8)}")
            a(f"s_waitcnt vmcnt({vm})")
        elif steady and t % 2 == 0:
            a(f"s_waitcnt vmcnt({vm}) lgkmcnt(3)")
        else:
            a(f"s_waitcnt vmcnt({vm})")
        for h in range(2):
            d = vr(GACC + 4 * h, 4)
            a(f"v_mfma_f32_4x4x4_16b_bf16 {d}, {vr(vA0,2)}, {vr(RING+4*t+2*h,2)}, {d} cbsz:3 abid:{t&7}")
        a(f"s_sub_u32 s{sRem}, s{sRem}, 1\ns_cbranch_scc1 Lf{tag}_{t}\nLb{tag}_{t}:")
        stubs.append((f"Lf{tag}_{t}", f"Lb{tag}_{t}"))
    a(f"s_cmp_eq_u32 s{sRnd}, 0\ns_cbranch_scc1 L_drain\nL_gl:")
    for t in range(R):
        consume(t, "s", R - 1, True)
        gload(t)
        if t % 2 == 1: entread(R + 8 + t - 1)
    a(f"""
    v_add_u32 v{vEnt}, {8*R}, v{vEnt}
    v_add_u32 v{vAad}, {8*R}, v{vAad}
    s_sub_u32 s{sRnd}, s{sRnd}, 1
    s_cmp_lg_u32 s{sRnd}, 0
    s_cbranch_scc1 L_gl
    L_drain:
    """)
    for t in range(R):
        consume(t, "d", R - 1 - t, False)
    a("L_gdone:")
    stamp(9)

    vOo, vOo2 = 10, 11
    a(f"""
    v_add_u32 v{vAa}, {L_R3}, v{vFrag}
    s_mul_i32 s{s2_}, s{sCG}, 12288
    v_lshl_add_u32 v{vH}, v{vL}, 4, s{s2_}
    v_and_b32 v{vT0}, 15, v{vL}
    v_lshlrev_b32 v{vT0}, 2, v{vT0}
    v_and_b32 v{vT1}, 48, v{vL}
    v_lshl_add_u32 v{vOo}, v{vT1}, 7, v{vT0}
    v_and_b32 v{vT1}, 32, v{vL}
    v_lshl_add_u32 v{vOo2}, v{vT1}, 6, v{vT0}
    v_and_b32 v{vT1}, 16, v{vL}
    v_lshl_add_u32 v{vOo2}, v{vT1}, 22, v{vOo2}
    s_lshl_b32 s{s2_}, s{sNB}, 9
    s_lshl_b32 s{s3_}, s{sCG}, 7
    s_add_u32 s{s2_}, s{s2_}, s{s3_}
    s_mov_b32 s{sK}, 0
    s_waitcnt lgkmcnt(0)
    s_barrier
    """)
    stamp(10)
    a("L_wlt:")
    for q in range(4):
        a(f"ds_read_b128 {vr(GC+4*q,4)}, v{vH} offset:{q*1024}")
    wgemm(False)
    a(f"""
    v_add_u32 v{vAa}, {TILE}, v{vAa}
    v_add_u32 v{vH}, 4096, v{vH}
    s_add_u32 s{sK}, s{sK}, 1
    s_nop 3
    """)
    for r in range(4):
        for seg in range(2):
            o = 64 + 2 * r + seg
            a(f"""
            v_cvt_pk_bf16_f32 v{o}, v{GC+8*seg+r}, v{GC+8*seg+4+r}
            buffer_store_dword v{o}, v{vOo}, {srd(sOUT)}, s{s2_} offen offset:{r*512+seg*64}
            """)
    a(f"""
    s_add_u32 s{s2_}, s{s2_}, 8192
    s_cmp_lt_u32 s{sK}, 2
    s_cbranch_scc1 L_wlt
    v_mov_b32 v{vOo}, v{vOo2}
    s_cmp_lt_u32 s{sK}, 3
    s_cbranch_scc1 L_wlt
    """)
    stamp(11)
    if stamps: a("s_waitcnt vmcnt(0)")
    stamp(12)
    a("L_end:")
    if stamps:
        a(f"""
        s_mov_b64 exec, -1
        s_add_u32 s{sT1}, s{pWS}, {STAMP_OFF}
        s_addc_u32 s{sT1+1}, s{pWS+1}, 0
        s_mov_b32 s{sT1+2}, 0x1000000
        s_mov_b32 s{sT1+3}, 0x20000
        s_lshl_b32 s{s0}, s2, 3
        s_add_u32 s{s0}, s{s0}, s{sW}
        s_mul_i32 s{s0}, s{s0}, {NSTAMP*8}
        v_mov_b32 v4, 0
        """)
        for i in range(NSTAMP):
            a(f"v_mov_b32 v6, s{ST0+2*i}\nv_mov_b32 v7, s{ST0+2*i+1}\nbuffer_store_dwordx2 v[6:7], v4, {srd(sT1)}, s{s0} offen offset:{8*i}\ns_nop 1")
    a("L_exit:\ns_endpgm")

    for f, b in stubs:
        a(f"{f}:\ns_call_b64 {pr(sRet)}, L_flush\ns_branch {b}")
    G = GACC
    a(f"""
    L_flush:
    s_add_u32 s{sK}, s{sK}, 1
    v_add_u32 v{vAd}, s{sRow}, v{vFo}
    s_nop 0
    v_permlane32_swap_b32 v{G}, v{G+4}
    v_permlane32_swap_b32 v{G+1}, v{G+5}
    v_permlane32_swap_b32 v{G+2}, v{G+6}
    v_permlane32_swap_b32 v{G+3}, v{G+7}
    v_readlane_b32 s{sRow}, v{vRow}, s{sK}
    v_readlane_b32 s{sRem}, v{vSl}, s{sK}
    v_add_f32 v{G}, v{G}, v{G+4}
    v_add_f32 v{G+1}, v{G+1}, v{G+5}
    v_add_f32 v{G+2}, v{G+2}, v{G+6}
    v_add_f32 v{G+3}, v{G+3}, v{G+7}
    v_mul_f32 v{G}, s{sDis}, v{G}
    v_mul_f32 v{G+1}, s{sDis}, v{G+1}
    v_mul_f32 v{G+2}, s{sDis}, v{G+2}
    v_mul_f32 v{G+3}, s{sDis}, v{G+3}
    v_readlane_b32 s{sDis}, v{vDis}, s{sK}
    v_cvt_pk_bf16_f32 v{G+4}, v{G}, v{G+1}
    v_cvt_pk_bf16_f32 v{G+5}, v{G+2}, v{G+3}
    ds_write_b64 v{vAd}, {vr(G+4,2)}
    v_mov_b64 {vr(G,2)}, 0
    v_mov_b64 {vr(G+2,2)}, 0
    v_mov_b64 {vr(G+6,2)}, 0
    v_mov_b64 {vr(G+4,2)}, 0
    s_setpc_b64 {pr(sRet)}
    """)

    a("L_slow:")
    mksrd(sT1, pSRC, 640000)
    mksrd(sT2, pDST, 640000)
    mksrd(sWt, pDIS, 20000)
    a(f"""
    s_sub_u32 s{sK}, s{sK}, 1
    s_mov_b32 s{sRow}, {L_DUMMY}
    s_mov_b32 s{sDis}, 0
    s_call_b64 {pr(sRet)}, L_flush
    s_mul_i32 s{sRnd}, s{sCG}, 10
    s_add_u32 s{sRnd}, s{sRnd}, s{sNB}
    s_add_u32 s{sPad}, s{sRnd}, 10
    v_lshlrev_b32 v16, 2, v{vL}
    v_and_b32 v17, 32, v{vL}
    v_lshl_add_u32 v17, v17, 22, v{vM16}
    v_mov_b32 v24, 0
    L_sn:
    s_mov_b32 s{s2_}, 0
    L_sc:
    buffer_load_dword v18, v16, {srd(sT2)}, s{s2_} offen
    buffer_load_dword v19, v16, {srd(sT1)}, s{s2_} offen
    s_waitcnt vmcnt(0)
    v_cmp_eq_u32 vcc, s{sRnd}, v18
    s_cbranch_vccz L_sx
    L_se:
    s_ff1_i32_b64 s{s0}, vcc
    s_bitset0_b64 vcc, s{s0}
    v_readlane_b32 s{s1}, v19, s{s0}
    s_nop 0
    s_lshl_b32 s{s3_}, s{s1}, 9
    s_lshl_b32 s{s1}, s{s1}, 1
    buffer_load_dwordx4 v[20:23], v17, {srd(sX)}, s{s3_} offen
    buffer_load_short_d16_hi v{vAraw}, v24, {srd(sWt)}, s{s1} offen
    s_waitcnt vmcnt(0)
    v_perm_b32 v{vA0}, v{vAraw}, v{vAraw}, v{vSH0}
    v_perm_b32 v{vA0+1}, v{vAraw}, v{vAraw}, v{vSH1}
    s_nop 1
    v_mfma_f32_4x4x4_16b_bf16 {vr(G,4)}, {vr(vA0,2)}, v[20:21], {vr(G,4)}
    v_mfma_f32_4x4x4_16b_bf16 {vr(G+4,4)}, {vr(vA0,2)}, v[22:23], {vr(G+4,4)}
    s_cmp_lg_u64 vcc, 0
    s_cbranch_scc1 L_se
    L_sx:
    s_add_u32 s{s2_}, s{s2_}, 256
    s_cmp_lt_u32 s{s2_}, 640000
    s_cbranch_scc1 L_sc
    s_call_b64 {pr(sRet)}, L_flush
    s_add_u32 s{sRnd}, s{sRnd}, 1
    s_cmp_lt_u32 s{sRnd}, s{sPad}
    s_cbranch_scc1 L_sn
    s_branch L_gdone
    """)
    hdr = open("standalone__hybrid_graph_tf_exphormer__graph.s.ref").read().split("; Override")[0]
    return wrap(a.text(), NWG, 512, LDS, 256, header=hdr)


if __name__ == "__main__":
    kw = dict(x.split("=") for x in sys.argv[2:])
    kw = {k: int(v) for k, v in kw.items()}
    open(sys.argv[1], "w").write(gen(**kw))
```

```python
import sys
from asmlib import Asm, wrap

NWG, NPW, EPW = 250, 40, 640
TILE, PITCH = 8448, 1056
L_E = 0
L_R1 = 10 * TILE
L_R2 = L_R1 + 2 * TILE + TILE // 2
L_R3 = L_R2 + 3 * TILE
L_LIST = L_R3 + 2 * TILE + TILE // 2
W_OFFS, W_ENT, W_MFR = 0, 0x40000, 0x100000
STAMP_OFF = 128 << 20


def gen(R=16, stamps=False, probe=-1, pw=4, pk=4):
    CAP = {16: 128, 24: 144}[R]
    LIST_B = 4 * CAP * 8
    L_CNT = L_LIST + LIST_B
    L_BASE = L_CNT + 256
    L_SYNC = L_BASE + 256
    L_HIST = L_SYNC + 64
    L_SORT = L_HIST + 1024
    L_DUMMY = L_SORT + 2560
    LDS = L_DUMMY + 512
    assert LDS <= 163840, LDS
    n_null, n_init = LIST_B // 16, (L_SORT - L_LIST) // 16
    assert n_init <= 512
    SY_X, SY_Y, SY_M, SY_C1, SY_C2, SY_A, SY_B, SY_OV = [4 * i for i in range(8)]

    a = Asm()
    sX, sWt, sWS, sOUT, sT1, sT2 = 8, 12, 16, 20, 24, 28
    pX, pSRC, pDST, pESRC, pDIS, pWL, pWQ, pWK, pWV, pOUT, pDBG, pWS = 32, 34, 36, 38, 42, 44, 46, 48, 50, 52, 54, 56
    sW, sCG, sNB, sBeta = 3, 4, 5, 6
    s0, s1, s2_, s3_ = 58, 59, 60, 61
    sRem, sK, sRow, sDis, sRnd, sPad = 62, 63, 64, 65, 66, 67
    sRet = 68
    sSelLo, sSelHi = 70, 71
    sC512 = 7
    ST0 = 72
    nst = [0]
    NSTAMP = 14

    def srd(s): return f"s[{s}:{s+3}]"
    def pr(s): return f"s[{s}:{s+1}]"
    def vr(b, n): return f"v[{b}:{b+n-1}]"
    def stamp(i):
        if stamps:
            a(f"s_memrealtime {pr(ST0+2*i)}\ns_waitcnt lgkmcnt(0)")
    def mksrd(s, p, size):
        a(f"s_mov_b32 s{s}, s{p}\ns_mov_b32 s{s+1}, s{p+1}\ns_mov_b32 s{s+2}, {size}\ns_mov_b32 s{s+3}, 0x20000")

    vL, vFrag, vM16, vSy, vT0, vT1, vT2, vT3 = 0, 1, 2, 3, 4, 5, 6, 7
    WF = 120

    def signal(off):
        a(f"""
        s_mov_b64 exec, 1
        v_mov_b32 v{vT0}, 1
        ds_add_u32 v{vSy}, v{vT0} offset:{off}
        s_mov_b64 exec, -1
        """)
    def wait(off, n):
        lp = a.label("Lw")
        a(f"""
        s_mov_b32 s{s1}, 0
        {lp}:
        ds_read_b32 v{vT0}, v{vSy} offset:{off}
        s_add_u32 s{s1}, s{s1}, 1
        s_cmp_gt_u32 s{s1}, 0x400000
        s_cbranch_scc1 L_end
        s_waitcnt lgkmcnt(0)
        v_readfirstlane_b32 s{s0}, v{vT0}
        s_nop 0
        s_cmp_lt_u32 s{s0}, {n}
        s_cbranch_scc1 {lp}
        """)

    a(f"""
    s_cmp_ge_u32 s2, {NWG}
    s_cbranch_scc1 L_exit
    """)
    if stamps:
        for i in range(NSTAMP): a(f"s_mov_b64 {pr(ST0+2*i)}, 0")
        a(f"s_memrealtime {pr(ST0)}")
    a(f"""
    s_load_dwordx16 s[32:47], s[0:1], 0
    s_load_dwordx8 s[48:55], s[0:1], 64
    s_load_dwordx2 s[56:57], s[0:1], 96
    v_lshrrev_b32 v1, 6, v0
    v_mov_b32 v8, 0xffff
    v_readfirstlane_b32 s{sW}, v1
    v_cmp_gt_u32 vcc, {n_null}, v0
    v_lshlrev_b32 v4, 4, v0
    v_add_u32 v4, {L_LIST}, v4
    v_cndmask_b32 v8, 0, v8, vcc
    v_mov_b32 v9, v8
    v_mov_b32 v10, v8
    v_mov_b32 v11, v8
    v_cmp_gt_u32 vcc, {n_init}, v0
    s_and_saveexec_b64 s[58:59], vcc
    ds_write_b128 v4, v[8:11]
    s_mov_b64 exec, -1
    v_and_b32 v{vL}, 63, v0
    s_and_b32 s{s0}, s2, 7
    s_lshr_b32 s{s1}, s2, 3
    s_mul_i32 s{sBeta}, s{s0}, 31
    s_min_u32 s{s0}, s{s0}, 2
    s_add_u32 s{sBeta}, s{sBeta}, s{s0}
    s_add_u32 s{sBeta}, s{sBeta}, s{s1}
    s_mul_i32 s{sNB}, s{sBeta}, {NPW}
    s_and_b32 s{sCG}, s{sW}, 3
    s_movk_i32 s{sC512}, 512
    v_and_b32 v{vT0}, 7, v{vL}
    v_mul_u32_u24 v{vFrag}, {PITCH}, v{vT0}
    v_and_b32 v{vT0}, 8, v{vL}
    v_lshl_add_u32 v{vFrag}, v{vT0}, 6, v{vFrag}
    v_and_b32 v{vT0}, 48, v{vL}
    v_add_u32 v{vFrag}, v{vT0}, v{vFrag}
    v_and_b32 v{vM16}, 31, v{vL}
    v_lshlrev_b32 v{vM16}, 4, v{vM16}
    v_mov_b32 v{vSy}, {L_SYNC}
    s_mov_b32 s{sSelLo}, 0x05040100
    s_mov_b32 s{sSelHi}, 0x07060302
    s_waitcnt lgkmcnt(0)
    s_barrier
    """)
    mksrd(sX, pX, 10000 * 512)
    mksrd(sWS, pWS, 0x200000)
    a(f"""
    s_cmp_ge_u32 s{sW}, 4
    s_cselect_b32 s{sWt}, s{pWL}, s{pWV}
    s_cselect_b32 s{sWt+1}, s{pWL+1}, s{pWV+1}
    s_mov_b32 s{sWt+2}, 131072
    s_mov_b32 s{sWt+3}, 0x20000
    s_cbranch_scc1 L_preB
    """)

    IDX = 16
    mksrd(sT1, pESRC, 40000 * 4)
    a(f"""
    v_and_b32 v{vT0}, 32, v{vL}
    s_mul_i32 s{s0}, s{sBeta}, 640
    s_lshl_b32 s{s1}, s{sW}, 6
    s_add_u32 s{s0}, s{s0}, s{s1}
    """)
    for gi in range(3):
        for q in range(2):
            a(f"buffer_load_dwordx4 {vr(IDX+8*gi+4*q,4)}, v{vT0}, {srd(sT1)}, s{s0} offen offset:{256*gi+16*q}")
    a(f"""
    v_lshl_add_u32 v{vT1}, v{vT0}, 7, v{vM16}
    v_lshl_add_u32 v{vT2}, v{vT0}, 6, v{vM16}
    s_add_u32 s{s0}, s{sNB}, s{sW}
    s_lshl_b32 s{s0}, s{s0}, 9
    s_mul_i32 s{s1}, s{sW}, {PITCH}
    """)
    for (dr, di, v) in ((0, 0, vT1), (4, 4, vT1), (16, 8, vT1), (20, 12, vT1), (32, 16, vT2)):
        a(f"""
        s_add_u32 m0, s{s1}, {L_R1 + di*PITCH}
        s_add_u32 s{s2_}, s{s0}, {dr*512}
        buffer_load_dwordx4 v{v}, {srd(sX)}, s{s2_} offen lds
        """)
    a(f"s_mul_i32 s{s1}, s{sW}, {TILE}\ns_waitcnt vmcnt(5)")
    for gi in range(3):
        if gi == 2: a(f"s_cmp_ge_u32 s{sW}, 2\ns_cbranch_scc1 L_wload")
        for u in range(8):
            a(f"""
            s_add_u32 m0, s{s1}, {L_E + gi*4*TILE + u*PITCH}
            v_lshl_add_u32 v{vT0+(u&1)}, v{IDX+8*gi+u}, 9, v{vM16}
            buffer_load_dwordx4 v{vT0+(u&1)}, {srd(sX)}, 0 offen lds
            """)
    a("s_branch L_wload")

    a(f"""
    L_preB:
    s_cmp_eq_u32 s{sW}, 5
    s_cbranch_scc1 L_mtask
    s_cmp_eq_u32 s{sW}, 4
    s_cbranch_scc1 L_prod
    """)
    mksrd(sT1, pDIS, 20000)
    a(f"""
    s_sub_u32 s{s0}, s{sW}, 6
    s_mul_i32 s{s0}, s{s0}, 10240
    v_lshlrev_b32 v{vT0}, 4, v{vL}
    """)
    for i in range(10):
        if i % 4 == 0:
            a(f"s_add_u32 m0, s{s0}, {L_R3 + i*1024}\ns_add_u32 s{s1}, s{s0}, {i*1024}")
        a(f"buffer_load_dwordx4 v{vT0}, {srd(sT1)}, s{s1} offen offset:{(i%4)*1024} lds")
    a("s_branch L_wload")

    a(f"""
    L_mtask:
    s_cmp_ge_u32 s2, 128
    s_cbranch_scc1 L_mdone
    s_setprio 2
    """)
    mksrd(sT1, pWQ, 131072)
    mksrd(sT2, pWK, 131072)
    a(f"""
    v_and_b32 v{vT0}, 32, v{vL}
    v_lshl_add_u32 v{vT0}, v{vT0}, 8, v{vM16}
    s_and_b32 s{s0}, s2, 7
    s_lshl_b32 s{s0}, s{s0}, 14
    s_lshr_b32 s{s1}, s2, 4
    s_lshl_b32 s{s1}, s{s1}, 14
    s_bfe_u32 s{s2_}, s2, 0x10003
    s_lshl_b32 s{s2_}, s{s2_}, 11
    s_add_u32 s{s1}, s{s1}, s{s2_}
    """)
    for t in range(3):
        for u in range(8):
            row = 8 * (u >> 2) + (u & 3) + (4 * t if t < 2 else 0)
            a(f"""
            s_mov_b32 m0, {L_R2 + t*TILE + u*PITCH}
            s_add_u32 s{s2_}, s{s0 if t < 2 else s1}, {row*512}
            buffer_load_dwordx4 v{vT0}, {srd(sT1 if t < 2 else sT2)}, s{s2_} offen lds
            """)
    a(f"""
    v_add_u32 v{vT1}, {L_R2}, v{vFrag}
    s_lshr_b32 s{s0}, s2, 4
    s_lshl_b32 s{s0}, s{s0}, 3
    s_and_b32 s{s1}, s2, 7
    s_add_u32 s{s0}, s{s0}, s{s1}
    s_lshl_b32 s{s0}, s{s0}, 1
    s_bfe_u32 s{s1}, s2, 0x10003
    s_add_u32 s{s0}, s{s0}, s{s1}
    s_lshl_b32 s{s0}, s{s0}, 10
    s_add_u32 s{s0}, s{s0}, {W_MFR}
    v_lshlrev_b32 v{vT2}, 4, v{vL}
    s_waitcnt vmcnt(0)
    """)
    for half in range(2):
        for ks in range(4):
            for t in range(3):
                a(f"ds_read_b128 {vr(16+12*ks+4*t,4)}, v{vT1} offset:{t*TILE + (4*half+ks)*64}")
        for ks in range(4):
            a(f"s_waitcnt lgkmcnt({9-3*ks})")
            for t in range(2):
                c = "0" if (half == 0 and ks == 0) else vr(8 + 4 * t, 4)
                a(f"v_mfma_f32_16x16x32_bf16 {vr(8+4*t,4)}, {vr(16+12*ks+4*t,4)}, {vr(16+12*ks+8,4)}, {c}")
    a(f"""
    s_nop 7
    v_cvt_pk_bf16_f32 v16, v8, v9
    v_cvt_pk_bf16_f32 v17, v10, v11
    v_cvt_pk_bf16_f32 v18, v12, v13
    v_cvt_pk_bf16_f32 v19, v14, v15
    buffer_store_dwordx4 v[16:19], v{vT2}, {srd(sWS)}, s{s0} offen sc1
    s_waitcnt vmcnt(0)
    s_setprio 0
    L_mdone:
    """)
    signal(SY_M)
    stamp(1)
    a("s_branch L_wload")

    SRCV, DSTV, AV, PV = 16, 26, 36, 46
    a("L_prod:\ns_setprio 3")
    mksrd(sT1, pSRC, 640000)
    mksrd(sT2, pDST, 640000)
    a(f"""
    v_lshlrev_b32 v{vT1}, 4, v{vL}
    v_lshlrev_b32 v{vT2}, 3, v{vL}
    s_mul_i32 s{s0}, s2, {EPW*4}
    buffer_load_dwordx4 {vr(DSTV,4)}, v{vT1}, {srd(sT2)}, s{s0} offen
    buffer_load_dwordx4 {vr(DSTV+4,4)}, v{vT1}, {srd(sT2)}, s{s0} offen offset:1024
    buffer_load_dwordx2 {vr(DSTV+8,2)}, v{vT2}, {srd(sT2)}, s{s0} offen offset:2048
    buffer_load_dwordx4 {vr(SRCV,4)}, v{vT1}, {srd(sT1)}, s{s0} offen
    buffer_load_dwordx4 {vr(SRCV+4,4)}, v{vT1}, {srd(sT1)}, s{s0} offen offset:1024
    buffer_load_dwordx2 {vr(SRCV+8,2)}, v{vT2}, {srd(sT1)}, s{s0} offen offset:2048
    v_mov_b32 v8, 1
    v_mov_b32 v9, 4
    v_mov_b32 v10, {L_HIST}
    v_add_u32 v11, {L_HIST}, v{vT1}
    s_lshl_b32 s{s1}, s2, 10
    s_add_u32 s{s0}, s{s0}, {W_ENT}
    s_waitcnt vmcnt(3)
    """)
    stamp(1)
    for j in range(10):
        a(f"""
        v_mul_u32_u24 v{AV+j}, 52429, v{DSTV+j}
        v_lshrrev_b32 v{AV+j}, 21, v{AV+j}
        v_lshl_add_u32 v{AV+j}, v{AV+j}, 2, v10
        ds_add_u32 v{AV+j}, v8
        """)
    a("ds_read_b128 v[12:15], v11\ns_waitcnt vmcnt(0)")
    for j in range(10):
        a(f"v_lshl_or_b32 v{SRCV+j}, v{DSTV+j}, 16, v{SRCV+j}")
    a(f"""
    s_waitcnt lgkmcnt(0)
    v_add_u32 v56, v12, v13
    v_add3_u32 v57, v56, v14, v15
    v_mov_b32 v58, v57
    s_nop 1
    v_add_u32_dpp v58, v58, v58 row_shr:1 row_mask:0xf bank_mask:0xf bound_ctrl:1
    s_nop 1
    v_add_u32_dpp v58, v58, v58 row_shr:2 row_mask:0xf bank_mask:0xf bound_ctrl:1
    s_nop 1
    v_add_u32_dpp v58, v58, v58 row_shr:4 row_mask:0xf bank_mask:0xf bound_ctrl:1
    s_nop 1
    v_add_u32_dpp v58, v58, v58 row_shr:8 row_mask:0xf bank_mask:0xf bound_ctrl:1
    s_nop 1
    v_add_u32_dpp v58, v58, v58 row_bcast:15 row_mask:0xa bank_mask:0xf
    s_nop 1
    v_add_u32_dpp v58, v58, v58 row_bcast:31 row_mask:0xc bank_mask:0xf
    v_mov_b32 v59, {L_SORT}
    v_sub_u32 v60, v58, v57
    v_add_u32 v61, v60, v12
    v_add_u32 v62, v60, v56
    v_add_u32 v63, v62, v14
    v_lshl_add_u32 v64, v60, 2, v59
    v_lshl_add_u32 v65, v61, 2, v59
    v_lshl_add_u32 v66, v62, 2, v59
    v_lshl_add_u32 v67, v63, 2, v59
    ds_write_b128 v11, v[64:67]
    """)
    for j in range(10):
        a(f"ds_add_rtn_u32 v{PV+j}, v{AV+j}, v9")
    a(f"""
    v_lshl_or_b32 v60, v12, 16, v60
    v_lshl_or_b32 v61, v13, 16, v61
    v_lshl_or_b32 v62, v14, 16, v62
    v_lshl_or_b32 v63, v15, 16, v63
    buffer_store_dwordx4 v[60:63], v{vT1}, {srd(sWS)}, s{s1} offen sc1
    v_add_u32 v11, {L_SORT}, v{vT1}
    v_add_u32 v10, {L_SORT}, v{vT2}
    """)
    for j in range(10):
        a(f"s_waitcnt lgkmcnt(9)\nds_write_b32 v{PV+j}, v{SRCV+j}")
    a(f"""
    ds_read_b128 v[64:67], v11
    ds_read_b128 v[68:71], v11 offset:1024
    ds_read_b64 v[72:73], v10 offset:2048
    s_waitcnt lgkmcnt(2)
    buffer_store_dwordx4 v[64:67], v{vT1}, {srd(sWS)}, s{s0} offen sc1
    s_waitcnt lgkmcnt(1)
    buffer_store_dwordx4 v[68:71], v{vT1}, {srd(sWS)}, s{s0} offen offset:1024 sc1
    s_waitcnt lgkmcnt(0)
    buffer_store_dwordx2 v[72:73], v{vT2}, {srd(sWS)}, s{s0} offen offset:2048 sc1
    """)
    stamp(2)
    wait(SY_M, 1)
    a(f"""
    v_mov_b32 v{vT1}, s2
    s_waitcnt vmcnt(0)
    s_mov_b64 exec, 1
    global_store_byte v{vT1}, v8, {pr(pDBG)} sc1
    s_mov_b64 exec, -1
    s_setprio 0
    """)
    stamp(3)

    a(f"""
    L_wload:
    v_and_b32 v{vT0}, 15, v{vL}
    v_lshlrev_b32 v{vT0}, 2, v{vT0}
    v_and_b32 v{vT1}, 48, v{vL}
    v_lshl_add_u32 v{vT0}, v{vT1}, 8, v{vT0}
    s_lshl_b32 s{s0}, s{sCG}, 7
    """)
    AHEAD = 6
    def wissue(n):
        s, seg = n >> 1, n & 1
        if seg == 0 and s > 0: a(f"s_add_u32 s{s0}, s{s0}, 16384")
        for j in range(8):
            a(f"buffer_load_dword v{WF+8*(n+1)+j}, v{vT0}, {srd(sWt)}, s{s0} offen offset:{j*512+seg*64}")
    for n in range(AHEAD):
        if n >= 2 and n % 2 == 0: a("s_waitcnt vmcnt(46)")
        wissue(n)
    for n in range(16):
        left = min(AHEAD - 1, 15 - n)
        a(f"s_waitcnt vmcnt({8*left})")
        r, o = WF + 8 * (n + 1), WF + 8 * n
        for q in range(4):
            a(f"v_perm_b32 v{o+q}, v{r+2*q+1}, v{r+2*q}, s{sSelLo}")
            a(f"v_perm_b32 v{o+4+q}, v{r+2*q+1}, v{r+2*q}, s{sSelHi}")
        if n + AHEAD < 16: wissue(n + AHEAD)
    stamp(4)
    a(f"""
    s_lshr_b32 s{s0}, s{sW}, 2
    s_lshl_b32 s{s0}, s{s0}, 2
    s_mov_b64 exec, 1
    v_add_u32 v{vT1}, s{s0}, v{vSy}
    v_mov_b32 v{vT0}, 1
    ds_add_u32 v{vT1}, v{vT0}
    s_mov_b64 exec, -1
    v_lshlrev_b32 v{vT1}, 2, v{vL}
    v_mov_b32 v{vT2}, 0x01010101
    v_mov_b32 v{vT3}, 0x0101
    v_cmp_eq_u32 vcc, 62, v{vL}
    s_mov_b32 s{s1}, 0
    s_nop 0
    v_cndmask_b32 v{vT2}, v{vT2}, v{vT3}, vcc
    v_cmp_gt_u32 vcc, 63, v{vL}
    s_nop 1
    v_cndmask_b32 v{vT2}, 0, v{vT2}, vcc
    L_poll:
    global_load_dword v{vT0}, v{vT1}, {pr(pDBG)} sc1
    s_add_u32 s{s1}, s{s1}, 1
    s_cmp_gt_u32 s{s1}, 0x40000
    s_cbranch_scc1 L_end
    s_waitcnt vmcnt(0)
    v_cmp_ne_u32 vcc, v{vT0}, v{vT2}
    s_cbranch_vccz L_polled
    s_sleep 2
    s_branch L_poll
    L_polled:
    """)
    stamp(5)
    a(f"s_cmp_ge_u32 s{sW}, 4\ns_cbranch_scc1 L_postB")

    MR, XB = 16, 80
    ACC = [104, 108, 112, 116, 248, 252]
    vXa, vQw, vMo = 8, 9, 10
    a(f"""
    v_lshlrev_b32 v{vMo}, 4, v{vL}
    s_lshl_b32 s{s2_}, s{sW}, 15
    s_add_u32 s{s2_}, s{s2_}, {W_MFR}
    """)
    def mload(i):
        if i % 4 == 0 and i: a(f"s_add_u32 s{s2_}, s{s2_}, 4096")
        a(f"buffer_load_dwordx4 {vr(MR+4*(i%16),4)}, v{vMo}, {srd(sWS)}, s{s2_} offen offset:{(i%4)*1024} sc1")
    for i in range(16): mload(i)
    a(f"""
    v_add_u32 v{vXa}, {L_R1}, v{vFrag}
    s_lshl_b32 s{s3_}, s{sW}, 7
    s_add_u32 s{s3_}, s{s3_}, {L_R2}
    v_add_u32 v{vQw}, s{s3_}, v{vFrag}
    """)
    wait(SY_X, 4)
    def xread(s):
        for rt in range(3):
            a(f"ds_read_b128 {vr(XB+12*(s&1)+4*rt,4)}, v{vXa} offset:{rt*TILE+(s&7)*64}")
    xread(0)
    for u in range(2):
        for s in range(8):
            last = (u == 1 and s == 7)
            if not last: xread(s + 1)
            vm = 14 if u == 0 else 14 - 2 * s
            a(f"s_waitcnt vmcnt({vm}) lgkmcnt({0 if last else 3})")
            for rt in range(3):
                for t in range(2):
                    d = vr(ACC[2 * rt + t], 4)
                    a(f"v_mfma_f32_16x16x32_bf16 {d}, {vr(MR+8*s+4*t,4)}, {vr(XB+12*(s&1)+4*rt,4)}, {'0' if s == 0 else d}")
            if u == 0:
                mload(16 + 2 * s); mload(17 + 2 * s)
        a("s_nop 3")
        for rt in range(3):
            d0, d1 = ACC[2 * rt], ACC[2 * rt + 1]
            a(f"""
            v_cvt_pk_bf16_f32 v12, v{d0}, v{d0+1}
            v_cvt_pk_bf16_f32 v13, v{d0+2}, v{d0+3}
            v_cvt_pk_bf16_f32 v14, v{d1}, v{d1+1}
            v_cvt_pk_bf16_f32 v15, v{d1+2}, v{d1+3}
            ds_write_b128 v{vQw}, v[12:15] offset:{rt*TILE+u*64}
            """)
    signal(SY_A)
    stamp(6)

    vSL0, vSL1, vSH0, vSH1 = 8, 9, 10, 11
    vEa, vQa, vEr, vAw = 12, 13, 14, 15
    def selregs(lo):
        a(f"""
        v_and_b32 v{vT0}, 3, v{vL}
        v_mov_b32 v{vT1}, 0x0c0c0c0c
        v_mov_b32 v{vT2}, 0x0c0c0302
        v_mov_b32 v{vT3}, 0x03020c0c
        v_cmp_eq_u32 s[58:59], 0, v{vT0}
        v_cmp_eq_u32 s[60:61], 2, v{vT0}
        v_cmp_eq_u32 vcc, 1, v{vT0}
        v_cndmask_b32 v{vSH0}, v{vT1}, v{vT2}, s[58:59]
        v_cndmask_b32 v{vSH1}, v{vT1}, v{vT2}, s[60:61]
        v_cndmask_b32 v{vSH0}, v{vSH0}, v{vT3}, vcc
        v_cmp_eq_u32 vcc, 3, v{vT0}
        s_nop 1
        v_cndmask_b32 v{vSH1}, v{vSH1}, v{vT3}, vcc
        """)
        if lo:
            a(f"v_and_b32 v{vSL0}, 0xfdfdfdfd, v{vSH0}\nv_and_b32 v{vSL1}, 0xfdfdfdfd, v{vSH1}")
    selregs(True)
    sG = sK
    a(f"s_mov_b32 s{sG}, s{sW}")
    wait(SY_A, 4)
    EA, QB, RB, AJ, DK = 16, 48, 16, 80, 88
    a(f"""
    L_grp:
    s_mul_i32 s{s0}, s{sG}, {TILE}
    s_lshr_b32 s{s1}, s{sG}, 2
    s_mul_i32 s{s1}, s{s1}, {TILE}
    s_and_b32 s{s2_}, s{sG}, 1
    s_bfe_u32 s{s3_}, s{sG}, 0x10001
    s_cmp_ge_u32 s{sG}, 8
    s_cselect_b32 s{s3_}, s{s2_}, s{s3_}
    s_cselect_b32 s{s2_}, 0, s{s2_}
    s_mul_i32 s{s2_}, s{s2_}, {TILE//2}
    s_lshl_b32 s{s3_}, s{s3_}, 9
    s_add_u32 s{s1}, s{s1}, s{s2_}
    s_add_u32 s{s1}, s{s1}, s{s3_}
    s_add_u32 s{s1}, s{s1}, {L_R2}
    v_add_u32 v{vEa}, s{s0}, v{vFrag}
    v_bfe_u32 v{vT0}, v{vL}, 2, 2
    v_mul_u32_u24 v{vT0}, {PITCH}, v{vT0}
    v_and_b32 v{vT1}, 48, v{vL}
    v_add3_u32 v{vQa}, v{vT0}, v{vT1}, s{s1}
    v_lshl_add_u32 v{vEr}, v{vL}, 3, s{s0}
    v_lshl_add_u32 v{vAw}, v{vL}, 3, s{s1}
    """)
    for half in range(2):
        for s in range(4 * half, 4 * half + 4):
            a(f"ds_read_b128 {vr(EA+4*s,4)}, v{vEa} offset:{s*64}")
            a(f"ds_read_b128 {vr(QB+4*s,4)}, v{vQa} offset:{s*64}")
        if half == 0: a("s_waitcnt lgkmcnt(7)")
    for s in range(8):
        a(f"s_waitcnt lgkmcnt({14-2*s})")
        a(f"v_mfma_f32_16x16x32_bf16 v[104:107], {vr(EA+4*s,4)}, {vr(QB+4*s,4)}, {'0' if s == 0 else 'v[104:107]'}")
    for j in range(4):
        for k in range(4):
            i = 4 * k + j
            if j == 3 and k == 3: a("s_waitcnt lgkmcnt(14)")
            a(f"ds_read_b64 {vr(RB+8*j+2*k,2)}, v{vEr} offset:{(i&7)*PITCH+(i>>3)*512}")
    a(f"""
    v_mul_f32 v104, 0x3db8aa3b, v104
    v_mul_f32 v105, 0x3db8aa3b, v105
    v_mul_f32 v106, 0x3db8aa3b, v106
    v_mul_f32 v107, 0x3db8aa3b, v107
    v_exp_f32 v104, v104
    v_exp_f32 v105, v105
    v_exp_f32 v106, v106
    v_exp_f32 v107, v107
    v_add_f32 v108, v104, v105
    v_add_f32 v109, v106, v107
    v_add_f32 v108, v108, v109
    v_add_f32 v108, 0x3089705f, v108
    v_rcp_f32 v108, v108
    s_nop 0
    v_mul_f32 v104, v104, v108
    v_mul_f32 v105, v105, v108
    v_mul_f32 v106, v106, v108
    v_mul_f32 v107, v107, v108
    v_cvt_pk_bf16_f32 v104, v104, v105
    v_cvt_pk_bf16_f32 v106, v106, v107
    """)
    for j in range(4):
        src = 104 + (j & 2)
        a(f"v_perm_b32 v{AJ+2*j}, v{src}, v{src}, v{vSH0 if j & 1 else vSL0}")
        a(f"v_perm_b32 v{AJ+2*j+1}, v{src}, v{src}, v{vSH1 if j & 1 else vSL1}")
    a("s_waitcnt lgkmcnt(0)")
    for j in range(4):
        for k in range(4):
            d = vr(DK + 4 * k, 4)
            a(f"v_mfma_f32_4x4x4_16b_bf16 {d}, {vr(AJ+2*j,2)}, {vr(RB+8*j+2*k,2)}, {'0' if j == 0 else d} cbsz:4 abid:{5*k}")
    a(f"s_add_u32 s{sG}, s{sG}, 4\ns_nop 1")
    for k in range(4):
        d = DK + 4 * k
        a(f"""
        v_cvt_pk_bf16_f32 v{AJ+2*k}, v{d}, v{d+1}
        v_cvt_pk_bf16_f32 v{AJ+2*k+1}, v{d+2}, v{d+3}
        ds_write_b64 v{vAw}, {vr(AJ+2*k,2)} offset:{k*PITCH}
        """)
    a(f"s_cmp_lt_u32 s{sG}, 10\ns_cbranch_scc1 L_grp")
    signal(SY_B)
    stamp(7)

    GA, GC = 16, 48
    vAa, vH = 8, 9
    def wgemm(first_c_zero):
        for s in range(8):
            a(f"ds_read_b128 {vr(GA+4*s,4)}, v{vAa} offset:{s*64}")
        for s in range(8):
            a(f"s_waitcnt lgkmcnt({7-s})")
            for q in range(4):
                d = vr(GC + 4 * q, 4)
                a(f"v_mfma_f32_16x16x32_bf16 {d}, {vr(GA+4*s,4)}, {vr(WF+16*s+4*q,4)}, {'0' if (s == 0 and first_c_zero) else d}")
    a(f"""
    v_add_u32 v{vAa}, {L_R2}, v{vFrag}
    s_mul_i32 s{s2_}, s{sCG}, 12288
    v_lshl_add_u32 v{vH}, v{vL}, 4, s{s2_}
    s_mov_b32 s{sK}, 0
    """)
    wait(SY_B, 4)
    a("L_wvt:")
    wgemm(True)
    a(f"""
    v_add_u32 v{vAa}, {TILE}, v{vAa}
    s_add_u32 s{sK}, s{sK}, 1
    s_nop 2
    """)
    for q in range(4):
        a(f"ds_write_b128 v{vH}, {vr(GC+4*q,4)} offset:{q*1024}")
    a(f"""
    v_add_u32 v{vH}, 4096, v{vH}
    s_cmp_lt_u32 s{sK}, 3
    s_cbranch_scc1 L_wvt
    s_waitcnt lgkmcnt(0)
    """)
    stamp(8)
    a("s_barrier\ns_branch L_end")

    EV, LA, RK, WV = 16, 32, 48, 72
    vDis, vRow, vSl, vEnt, vAad, vFo = 8, 9, 12, 13, 14, 15
    vCnt, vEa2, vKey, vSuf, vC4, vR3, vCb = 64, 65, 66, 67, 68, 69, 70
    a("L_postB:\ns_setprio 1")
    mksrd(sT1, pWS, NWG * 1024)
    a(f"""
    s_lshl_b32 s{s0}, s{sCG}, 6
    v_add_u32 v{vT1}, s{s0}, v{vL}
    v_lshlrev_b32 v{vT2}, 10, v{vT1}
    s_lshl_b32 s{s0}, s{sBeta}, 2
    buffer_load_dword v{vCnt}, v{vT2}, {srd(sT1)}, s{s0} offen sc1
    v_mul_u32_u24 v{vEa2}, {EPW*4}, v{vT1}
    """)
    mksrd(sOUT, pOUT, 10000 * 512)
    selregs(False)
    a(f"""
    v_lshrrev_b32 v{vT1}, 4, v{vL}
    v_and_b32 v{vT2}, 15, v{vL}
    v_mad_u32_u24 v{vKey}, v{vT1}, 10, v{vT2}
    v_lshrrev_b32 v{vT1}, 4, v{vKey}
    v_mul_u32_u24 v{vRow}, {TILE}, v{vT1}
    v_cmp_le_u32 vcc, 32, v{vKey}
    v_and_b32 v{vT1}, 7, v{vKey}
    v_and_b32 v{vT2}, 3, v{vKey}
    v_cndmask_b32 v{vT1}, v{vT1}, v{vT2}, vcc
    v_mul_u32_u24 v{vT1}, {PITCH}, v{vT1}
    v_bfe_u32 v{vT2}, v{vKey}, 3, 1
    v_bfe_u32 v{vT3}, v{vKey}, 2, 1
    v_cndmask_b32 v{vT2}, v{vT2}, v{vT3}, vcc
    v_lshl_add_u32 v{vT1}, v{vT2}, 9, v{vT1}
    v_mov_b32 v{vR3}, {L_R3}
    v_add3_u32 v{vRow}, v{vRow}, v{vT1}, v{vR3}
    v_lshrrev_b32 v{vT1}, 5, v{vL}
    v_lshl_add_u32 v{vFo}, v{vT1}, 3, v{vM16}
    v_mov_b32 v{vC4}, 4
    s_lshl_b32 s{s0}, s{sNB}, 2
    s_sub_u32 s{s0}, {L_CNT}, s{s0}
    v_mov_b32 v{vCb}, s{s0}
    """)
    wait(SY_Y, 4)
    a(f"""
    v_add_u32 v{vT1}, s{sNB}, v{vKey}
    v_lshl_add_u32 v{vT1}, v{vT1}, 1, v{vR3}
    ds_read_u16 v{vDis}, v{vT1}
    s_mov_b32 s{s0}, {W_ENT}
    s_waitcnt vmcnt(0)
    v_mad_u32_u16 v{vEa2}, v{vCnt}, 4, v{vEa2}
    v_lshrrev_b32 v{vCnt}, 16, v{vCnt}
    """)
    stamp(6)
    for q in range(4):
        a(f"""
        v_cmpx_lt_u32 vcc, {4*q}, v{vCnt}
        s_cbranch_execz L_entld
        buffer_load_dwordx4 {vr(EV+4*q,4)}, v{vEa2}, {srd(sWS)}, s{s0} offen offset:{16*q} sc1
        """)
    a(f"""
    v_cmpx_lt_u32 vcc, 16, v{vCnt}
    s_cbranch_execz L_entld
    ds_write_b32 v{vSy}, v{vC4} offset:{SY_OV}
    L_entld:
    s_mov_b64 exec, -1
    s_waitcnt vmcnt(0)
    """)
    stamp(7)
    for j in range(16):
        a(f"""
        v_cmpx_lt_u32 vcc, {j}, v{vCnt}
        s_cbranch_execz L_l1
        v_mad_u32_u16 v{LA+j}, v{EV+j}, 4, v{vCb} op_sel:[1,0,0,0]
        v_mad_u32_u16 v{vT1}, v{EV+j}, 2, v{vR3}
        ds_add_rtn_u32 v{RK+j}, v{LA+j}, v{vC4}
        ds_read_u16 v{WV+j}, v{vT1}
        """)
        if j % 4 == 3 and j < 15: a("s_waitcnt lgkmcnt(4)")
    a("L_l1:\ns_mov_b64 exec, -1")
    signal(SY_C1)
    a(f"""
    v_lshlrev_b32 v{vKey}, 2, v{vKey}
    v_add_u32 v{vKey}, {L_CNT}, v{vKey}
    v_lshrrev_b32 v{vT2}, 4, v{vL}
    v_mul_u32_u24 v{vT2}, {CAP*8}, v{vT2}
    v_add_u32 v{vT2}, {L_LIST + CAP*8}, v{vT2}
    v_and_b32 v{vT3}, 15, v{vL}
    """)
    wait(SY_C1, 4)
    a(f"""
    ds_read_b32 v{vSl}, v{vKey}
    ds_read_b32 v{vT1}, v{vSy} offset:{SY_OV}
    v_cmp_gt_u32 s[60:61], 10, v{vT3}
    v_lshlrev_b32 v{vDis}, 16, v{vDis}
    s_waitcnt lgkmcnt(1)
    v_add_u32 v{vSl}, 4, v{vSl}
    v_lshrrev_b32 v{vSl}, 3, v{vSl}
    v_max_u32 v{vSl}, 1, v{vSl}
    v_cndmask_b32 v{vSl}, 0, v{vSl}, s[60:61]
    v_mov_b32 v{vSuf}, v{vSl}
    s_nop 1
    v_add_u32_dpp v{vSuf}, v{vSuf}, v{vSuf} row_shl:1 row_mask:0xf bank_mask:0xf bound_ctrl:1
    s_nop 1
    v_add_u32_dpp v{vSuf}, v{vSuf}, v{vSuf} row_shl:2 row_mask:0xf bank_mask:0xf bound_ctrl:1
    s_nop 1
    v_add_u32_dpp v{vSuf}, v{vSuf}, v{vSuf} row_shl:4 row_mask:0xf bank_mask:0xf bound_ctrl:1
    s_nop 1
    v_add_u32_dpp v{vSuf}, v{vSuf}, v{vSuf} row_shl:8 row_mask:0xf bank_mask:0xf bound_ctrl:1
    s_waitcnt lgkmcnt(0)
    v_lshl_add_u32 v{vT1}, v{vT1}, 10, v{vSuf}
    v_lshlrev_b32 v{vT3}, 3, v{vSuf}
    v_cmp_le_u32 vcc, {CAP}, v{vT1}
    v_sub_u32 v{vT2}, v{vT2}, v{vT3}
    v_subrev_u32 v{vSl}, 1, v{vSl}
    s_lshl_b32 s{sK}, s{sCG}, 4
    s_cbranch_vccnz L_slow
    s_mov_b64 exec, s[60:61]
    ds_write_b32 v{vKey}, v{vT2} offset:{L_BASE-L_CNT}
    s_mov_b64 exec, -1
    """)
    for j in range(16):
        a(f"""
        v_cmpx_lt_u32 vcc, {j}, v{vCnt}
        s_cbranch_execz L_l2
        ds_read_b32 v{LA+j}, v{LA+j} offset:{L_BASE-L_CNT}
        """)
        if j == 12: a("s_waitcnt lgkmcnt(8)")
    a(f"""
    L_l2:
    s_mov_b64 exec, -1
    s_nop 3
    v_readlane_b32 s{sPad}, v{vSuf}, s{sK}
    s_waitcnt lgkmcnt(0)
    """)
    for j in range(16):
        a(f"""
        v_cmpx_lt_u32 vcc, {j}, v{vCnt}
        s_cbranch_execz L_l3
        v_add_u32 v{LA+j}, v{LA+j}, v{RK+j}
        v_perm_b32 v{EV+j}, v{WV+j}, v{EV+j}, s{sSelLo}
        ds_write_b32 v{LA+j}, v{EV+j}
        """)
        if j == 12: a("s_waitcnt lgkmcnt(8)")
    a("L_l3:\ns_mov_b64 exec, -1")
    signal(SY_C2)
    if R == 16:
        a(f"s_lshr_b32 s{sRnd}, s{sPad}, 4")
    else:
        a(f"s_mul_i32 s{sRnd}, s{sPad}, 2731\ns_lshr_b32 s{sRnd}, s{sRnd}, 16")
    a(f"""
    s_add_u32 s{s2_}, s{sRnd}, 1
    s_mul_i32 s{s2_}, s{s2_}, {R}
    s_sub_u32 s{sPad}, s{s2_}, s{sPad}
    s_sub_u32 s{sRem}, s{sPad}, 1
    s_add_u32 s{s3_}, s{sCG}, 1
    s_mul_i32 s{s3_}, s{s3_}, {CAP}
    s_sub_u32 s{s2_}, s{s3_}, s{s2_}
    s_lshl_b32 s{s2_}, s{s2_}, 3
    s_add_u32 s{s2_}, s{s2_}, {L_LIST}
    v_lshrrev_b32 v{vT1}, 5, v{vL}
    v_lshl_add_u32 v{vEnt}, v{vT1}, 2, s{s2_}
    v_bfe_u32 v{vT1}, v{vL}, 2, 3
    v_lshl_add_u32 v{vAad}, v{vT1}, 3, v{vEnt}
    s_mov_b32 s{sRow}, {L_DUMMY}
    s_mov_b32 s{sDis}, 0
    s_sub_u32 s{sK}, s{sK}, 1
    """)
    wait(SY_C2, 4)
    stamp(8)

    RING, ENT, GACC = 16, 16 + 4 * R, 248
    assert ENT + 8 <= WF
    vA0, vAraw, vAd = vT2, vT1, vT0
    def entread(slot):
        e = ENT + (slot & 7)
        a(f"ds_read2_b32 {vr(e,2)}, v{vEnt} offset0:{2*slot} offset1:{2*slot+2}")
    def gload(t):
        a(f"""
        v_mad_u32_u16 v{vAd}, v{ENT+(t&7)}, s{sC512}, v{vM16}
        buffer_load_dwordx4 {vr(RING+4*t,4)}, v{vAd}, {srd(sX)}, 0 offen
        """)
    for g in range(R // 8):
        nx = a.label("Lpg")
        a(f"s_cmp_ge_u32 s{sPad}, {8*g+8}\ns_cbranch_scc1 {nx}")
        for i in range(0, 8, 2): entread(8 * g + i)
        a("s_waitcnt lgkmcnt(0)")
        for t in range(8 * g, 8 * g + 8):
            if t % 8 < 7:
                sk = a.label("Lps")
                a(f"s_cmp_gt_u32 s{sPad}, {t}\ns_cbranch_scc1 {sk}")
                gload(t)
                a(f"{sk}:")
            else:
                gload(t)
        a(f"{nx}:")
    a(f"ds_read_b32 v{vAraw}, v{vAad}")
    for i in range(0, 8, 2): entread(R + i)
    stubs = []
    def consume(t, tag, vm, steady):
        if t % 8 == 0:
            a(f"""
            s_waitcnt lgkmcnt({3 if steady else 0})
            v_perm_b32 v{vA0}, v{vAraw}, v{vAraw}, v{vSH0}
            v_perm_b32 v{vA0+1}, v{vAraw}, v{vAraw}, v{vSH1}
            """)
            a(f"ds_read_b32 v{vAraw}, v{vAad} offset:{8*(t+8)}")
            a(f"s_waitcnt vmcnt({vm})")
        elif steady and t % 2 == 0:
            a(f"s_waitcnt vmcnt({vm}) lgkmcnt(3)")
        else:
            a(f"s_waitcnt vmcnt({vm})")
        for h in range(2):
            d = vr(GACC + 4 * h, 4)
            a(f"v_mfma_f32_4x4x4_16b_bf16 {d}, {vr(vA0,2)}, {vr(RING+4*t+2*h,2)}, {d} cbsz:3 abid:{t&7}")
        a(f"s_sub_u32 s{sRem}, s{sRem}, 1\ns_cbranch_scc1 Lf{tag}_{t}\nLb{tag}_{t}:")
        stubs.append((f"Lf{tag}_{t}", f"Lb{tag}_{t}"))
    a(f"s_cmp_eq_u32 s{sRnd}, 0\ns_cbranch_scc1 L_drain\nL_gl:")
    for t in range(R):
        consume(t, "s", R - 1, True)
        gload(t)
        if t % 2 == 1: entread(R + 8 + t - 1)
    a(f"""
    v_add_u32 v{vEnt}, {8*R}, v{vEnt}
    v_add_u32 v{vAad}, {8*R}, v{vAad}
    s_sub_u32 s{sRnd}, s{sRnd}, 1
    s_cmp_lg_u32 s{sRnd}, 0
    s_cbranch_scc1 L_gl
    L_drain:
    """)
    for t in range(R):
        consume(t, "d", R - 1 - t, False)
    a("L_gdone:")
    stamp(9)

    vOo, vOo2 = 10, 11
    a(f"""
    v_add_u32 v{vAa}, {L_R3}, v{vFrag}
    s_mul_i32 s{s2_}, s{sCG}, 12288
    v_lshl_add_u32 v{vH}, v{vL}, 4, s{s2_}
    v_and_b32 v{vT0}, 15, v{vL}
    v_lshlrev_b32 v{vT0}, 2, v{vT0}
    v_and_b32 v{vT1}, 48, v{vL}
    v_lshl_add_u32 v{vOo}, v{vT1}, 7, v{vT0}
    v_and_b32 v{vT1}, 32, v{vL}
    v_lshl_add_u32 v{vOo2}, v{vT1}, 6, v{vT0}
    v_and_b32 v{vT1}, 16, v{vL}
    v_lshl_add_u32 v{vOo2}, v{vT1}, 22, v{vOo2}
    s_lshl_b32 s{s2_}, s{sNB}, 9
    s_lshl_b32 s{s3_}, s{sCG}, 7
    s_add_u32 s{s2_}, s{s2_}, s{s3_}
    s_mov_b32 s{sK}, 0
    s_waitcnt lgkmcnt(0)
    s_barrier
    """)
    stamp(10)
    a("L_wlt:")
    for q in range(4):
        a(f"ds_read_b128 {vr(GC+4*q,4)}, v{vH} offset:{q*1024}")
    wgemm(False)
    a(f"""
    v_add_u32 v{vAa}, {TILE}, v{vAa}
    v_add_u32 v{vH}, 4096, v{vH}
    s_add_u32 s{sK}, s{sK}, 1
    s_nop 3
    """)
    for r in range(4):
        for seg in range(2):
            o = 64 + 2 * r + seg
            a(f"""
            v_cvt_pk_bf16_f32 v{o}, v{GC+8*seg+r}, v{GC+8*seg+4+r}
            buffer_store_dword v{o}, v{vOo}, {srd(sOUT)}, s{s2_} offen offset:{r*512+seg*64}
            """)
    a(f"""
    s_add_u32 s{s2_}, s{s2_}, 8192
    s_cmp_lt_u32 s{sK}, 2
    s_cbranch_scc1 L_wlt
    v_mov_b32 v{vOo}, v{vOo2}
    s_cmp_lt_u32 s{sK}, 3
    s_cbranch_scc1 L_wlt
    """)
    stamp(11)
    if stamps: a("s_waitcnt vmcnt(0)")
    stamp(12)
    a("L_end:")
    if probe >= 0:
        a(f"""
        s_cmp_eq_u32 s{sW}, {pw}
        s_cbranch_scc0 L_noprobe
        s_sub_u32 s{s0}, s{ST0+2*probe}, s{ST0}
        s_min_u32 s{s0}, s{s0}, 20000
        s_mul_i32 s{s0}, s{s0}, {pk}
        s_memrealtime s[60:61]
        L_probe:
        s_memrealtime s[62:63]
        s_waitcnt lgkmcnt(0)
        s_sub_u32 s62, s62, s60
        s_cmp_lt_u32 s62, s{s0}
        s_cbranch_scc1 L_probe
        L_noprobe:
        """)
    if stamps:
        a(f"""
        s_mov_b64 exec, -1
        s_add_u32 s{sT1}, s{pWS}, {STAMP_OFF}
        s_addc_u32 s{sT1+1}, s{pWS+1}, 0
        s_mov_b32 s{sT1+2}, 0x1000000
        s_mov_b32 s{sT1+3}, 0x20000
        s_lshl_b32 s{s0}, s2, 3
        s_add_u32 s{s0}, s{s0}, s{sW}
        s_mul_i32 s{s0}, s{s0}, {NSTAMP*8}
        v_mov_b32 v4, 0
        """)
        for i in range(NSTAMP):
            a(f"v_mov_b32 v6, s{ST0+2*i}\nv_mov_b32 v7, s{ST0+2*i+1}\nbuffer_store_dwordx2 v[6:7], v4, {srd(sT1)}, s{s0} offen offset:{8*i}\ns_nop 1")
    a("L_exit:\ns_endpgm")

    for f, b in stubs:
        a(f"{f}:\ns_call_b64 {pr(sRet)}, L_flush\ns_branch {b}")
    G = GACC
    a(f"""
    L_flush:
    s_add_u32 s{sK}, s{sK}, 1
    v_add_u32 v{vAd}, s{sRow}, v{vFo}
    s_nop 0
    v_permlane32_swap_b32 v{G}, v{G+4}
    v_permlane32_swap_b32 v{G+1}, v{G+5}
    v_permlane32_swap_b32 v{G+2}, v{G+6}
    v_permlane32_swap_b32 v{G+3}, v{G+7}
    v_readlane_b32 s{sRow}, v{vRow}, s{sK}
    v_readlane_b32 s{sRem}, v{vSl}, s{sK}
    v_add_f32 v{G}, v{G}, v{G+4}
    v_add_f32 v{G+1}, v{G+1}, v{G+5}
    v_add_f32 v{G+2}, v{G+2}, v{G+6}
    v_add_f32 v{G+3}, v{G+3}, v{G+7}
    v_mul_f32 v{G}, s{sDis}, v{G}
    v_mul_f32 v{G+1}, s{sDis}, v{G+1}
    v_mul_f32 v{G+2}, s{sDis}, v{G+2}
    v_mul_f32 v{G+3}, s{sDis}, v{G+3}
    v_readlane_b32 s{sDis}, v{vDis}, s{sK}
    v_cvt_pk_bf16_f32 v{G+4}, v{G}, v{G+1}
    v_cvt_pk_bf16_f32 v{G+5}, v{G+2}, v{G+3}
    ds_write_b64 v{vAd}, {vr(G+4,2)}
    v_mov_b64 {vr(G,2)}, 0
    v_mov_b64 {vr(G+2,2)}, 0
    v_mov_b64 {vr(G+6,2)}, 0
    v_mov_b64 {vr(G+4,2)}, 0
    s_setpc_b64 {pr(sRet)}
    """)

    a("L_slow:")
    mksrd(sT1, pSRC, 640000)
    mksrd(sT2, pDST, 640000)
    mksrd(sWt, pDIS, 20000)
    a(f"""
    s_sub_u32 s{sK}, s{sK}, 1
    s_mov_b32 s{sRow}, {L_DUMMY}
    s_mov_b32 s{sDis}, 0
    s_call_b64 {pr(sRet)}, L_flush
    s_mul_i32 s{sRnd}, s{sCG}, 10
    s_add_u32 s{sRnd}, s{sRnd}, s{sNB}
    s_add_u32 s{sPad}, s{sRnd}, 10
    v_lshlrev_b32 v16, 2, v{vL}
    v_and_b32 v17, 32, v{vL}
    v_lshl_add_u32 v17, v17, 22, v{vM16}
    v_mov_b32 v24, 0
    L_sn:
    s_mov_b32 s{s2_}, 0
    L_sc:
    buffer_load_dword v18, v16, {srd(sT2)}, s{s2_} offen
    buffer_load_dword v19, v16, {srd(sT1)}, s{s2_} offen
    s_waitcnt vmcnt(0)
    v_cmp_eq_u32 vcc, s{sRnd}, v18
    s_cbranch_vccz L_sx
    L_se:
    s_ff1_i32_b64 s{s0}, vcc
    s_bitset0_b64 vcc, s{s0}
    v_readlane_b32 s{s1}, v19, s{s0}
    s_nop 0
    s_lshl_b32 s{s3_}, s{s1}, 9
    s_lshl_b32 s{s1}, s{s1}, 1
    buffer_load_dwordx4 v[20:23], v17, {srd(sX)}, s{s3_} offen
    buffer_load_short_d16_hi v{vAraw}, v24, {srd(sWt)}, s{s1} offen
    s_waitcnt vmcnt(0)
    v_perm_b32 v{vA0}, v{vAraw}, v{vAraw}, v{vSH0}
    v_perm_b32 v{vA0+1}, v{vAraw}, v{vAraw}, v{vSH1}
    s_nop 1
    v_mfma_f32_4x4x4_16b_bf16 {vr(G,4)}, {vr(vA0,2)}, v[20:21], {vr(G,4)}
    v_mfma_f32_4x4x4_16b_bf16 {vr(G+4,4)}, {vr(vA0,2)}, v[22:23], {vr(G+4,4)}
    s_cmp_lg_u64 vcc, 0
    s_cbranch_scc1 L_se
    L_sx:
    s_add_u32 s{s2_}, s{s2_}, 256
    s_cmp_lt_u32 s{s2_}, 640000
    s_cbranch_scc1 L_sc
    s_call_b64 {pr(sRet)}, L_flush
    s_add_u32 s{sRnd}, s{sRnd}, 1
    s_cmp_lt_u32 s{sRnd}, s{sPad}
    s_cbranch_scc1 L_sn
    s_branch L_gdone
    """)
    hdr = open("standalone__hybrid_graph_tf_exphormer__graph.s.ref").read().split("; Override")[0]
    return wrap(a.text(), NWG, 512, LDS, 256, header=hdr)


if __name__ == "__main__":
    kw = dict(x.split("=") for x in sys.argv[2:])
    kw = {k: int(v) for k, v in kw.items()}
    open(sys.argv[1], "w").write(gen(**kw))
```

```python
import sys
from asmlib import Asm, wrap, NAME, text_size

NWG, NPW, EPW = 250, 40, 640
TILE, PITCH = 8448, 1056
L_E = 0
L_R1 = 10 * TILE
L_R2 = L_R1 + 2 * TILE + TILE // 2
L_R3 = L_R2 + 3 * TILE
L_LIST = L_R3 + 2 * TILE + TILE // 2
W_OFFS, W_ENT, W_FR, W_EP, WS_SIZE = 0, 0x40000, 0x100000, 0x180000, 0x200000
TMASK = 0xfffffc00
STAMP_OFF = 128 << 20


def gen(R=8, stamps=False, probe=-1, pw=8, pk=4, thr=63, prioA=0, prioB=0, psleep=2, dbg=0, D=0, sleep0=0, xa_at=0, e_at=2, epre=10, prioL=3, hyb=1, swap=1, touch=1, wsep=0, prioE=2, otouch=1, gmask=0xff, gnt=0, byoung=0):
    D = D or R
    CAP = {8: 80, 16: 80, 24: 72}[R]
    LIST_B = 8 * CAP * 8
    L_CNT = L_LIST + LIST_B
    L_BASE = L_CNT + 256
    L_SYNC = L_BASE + 256
    L_HIST = L_SYNC + 64
    L_SORT = L_HIST + 1024
    L_DUMMY = L_SORT + 2560
    LDS = L_DUMMY + 512
    assert LDS <= 163840, LDS
    n_null, n_init = LIST_B // 16, (L_SORT - L_LIST) // 16
    SY_X, SY_Y, SY_M, SY_C1, SY_C2, SY_A, SY_B, SY_OV, SY_GO, SY_T, SY_DUM, SY_V, SY_M2 = 0, 4, 8, 12, 16, 20, 24, 28, 32, 36, 48, 52, 56

    a = Asm()
    sX, sWS, sOUT, sT1, sT2, sT3 = 8, 16, 20, 24, 28, 12
    pX, pSRC, pDST, pESRC, pDIS, pWL, pWQ, pWK, pWV, pOUT, pDBG, pWS = 32, 34, 36, 38, 42, 44, 46, 48, 50, 52, 54, 56
    sW, sJ, sNB, sBeta, sC512 = 3, 4, 5, 6, 7
    s0, s1, s2_, s3_ = 58, 59, 60, 61
    sRem, sK, sRow, sDis, sRnd, sPad = 62, 63, 64, 65, 66, 67
    sRet, sSelLo, sSelHi = 68, 70, 71
    sFo, sTc = 100, 101
    sTag, sFlag = 40, 41
    ST0, NSTAMP = 72, 14

    def srd(s): return f"s[{s}:{s+3}]"
    def pr(s): return f"s[{s}:{s+1}]"
    def vr(b, n): return f"v[{b}:{b+n-1}]"
    def stamp(i):
        if stamps: a(f"s_memrealtime {pr(ST0+2*i)}\ns_waitcnt lgkmcnt(0)")
    def mksrd(s, p, size):
        a(f"s_mov_b32 s{s}, s{p}\ns_mov_b32 s{s+1}, s{p+1}\ns_mov_b32 s{s+2}, {size}\ns_mov_b32 s{s+3}, 0x20000")

    vL, vFrag, vM16, vSy, vT0, vT1, vT2, vT3 = 0, 1, 2, 3, 4, 5, 6, 7

    vTid16, vImg = 30, 31

    def signal(off):
        a(f"""
        s_mov_b64 exec, 1
        v_mov_b32 v{vT0}, 1
        ds_add_u32 v{vSy}, v{vT0} offset:{off}
        s_mov_b64 exec, -1
        """)
    def wait(off, n, sleep=0, cap=0x400000):
        lp, ok = a.label("Lw"), a.label("Lk")
        a(f"""
        s_mov_b32 s{s1}, 0
        {lp}:
        ds_read_b32 v{vT0}, v{vSy} offset:{off}
        s_waitcnt lgkmcnt(0)
        v_cmp_gt_u32 vcc, {n}, v{vT0}
        s_cbranch_vccz {ok}
        """)
        if sleep: a(f"s_sleep {sleep}")
        a(f"""
        s_add_u32 s{s1}, s{s1}, 1
        s_cmp_lt_u32 s{s1}, {cap}
        s_cbranch_scc1 {lp}
        s_branch L_end
        {ok}:
        """)

    a(f"s_cmp_ge_u32 s2, {NWG}\ns_cbranch_scc1 L_exit")
    if stamps:
        for i in range(NSTAMP): a(f"s_mov_b64 {pr(ST0+2*i)}, 0")
        a(f"s_memrealtime {pr(ST0)}")
    a(f"""
    s_load_dwordx16 s[32:47], s[0:1], 0
    s_load_dwordx8 s[48:55], s[0:1], 64
    s_load_dwordx2 s[56:57], s[0:1], 96
    s_getpc_b64 s[60:61]
    s_lshr_b32 s58, s2, 3
    v_lshl_add_u32 v1, v0, 5, s58
    v_cmp_gt_u32 vcc, CODE_LINES, v1
    v_lshlrev_b32 v1, 7, v1
    s_and_saveexec_b64 s[58:59], vcc
    s_cbranch_execz L_nopf
    global_load_dword v127, v1, s[60:61]
    L_nopf:
    s_mov_b64 exec, -1
    v_lshrrev_b32 v1, 6, v0
    v_mov_b32 v8, 0xffff
    v_readfirstlane_b32 s{sW}, v1
    v_cmp_gt_u32 vcc, {n_null}, v0
    v_lshlrev_b32 v{vTid16}, 4, v0
    v_add_u32 v4, {L_LIST}, v{vTid16}
    v_cndmask_b32 v8, 0, v8, vcc
    v_mov_b32 v9, v8
    v_mov_b32 v10, v8
    v_mov_b32 v11, v8
    v_cmp_gt_u32 vcc, {n_init}, v0
    s_and_saveexec_b64 s[58:59], vcc
    ds_write_b128 v4, v[8:11]
    s_mov_b64 exec, -1
    v_and_b32 v{vL}, 63, v0
    s_and_b32 s{s0}, s2, 7
    s_lshr_b32 s{s1}, s2, 3
    s_mul_i32 s{sBeta}, s{s0}, 31
    s_min_u32 s{s0}, s{s0}, 2
    s_add_u32 s{sBeta}, s{sBeta}, s{s0}
    s_add_u32 s{sBeta}, s{sBeta}, s{s1}
    s_mul_i32 s{sNB}, s{sBeta}, {NPW}
    s_and_b32 s{sJ}, s{sW}, 7
    {f's_xor_b32 s{sW}, s{sW}, 8' if swap else ''}
    s_movk_i32 s{sC512}, 512
    v_and_b32 v{vM16}, 31, v{vL}
    v_lshlrev_b32 v{vM16}, 4, v{vM16}
    v_mov_b32 v{vSy}, {L_SYNC}
    s_mov_b32 s{sSelLo}, 0x05040100
    s_mov_b32 s{sSelHi}, 0x07060302
    s_mov_b32 s{sX+2}, {10000*512}
    s_mov_b32 s{sX+3}, 0x20000
    s_mov_b32 s{sWS+2}, {WS_SIZE}
    s_mov_b32 s{sWS+3}, 0x20000
    s_mov_b32 s{sT1+3}, 0x20000
    s_mov_b32 s{sT2+3}, 0x20000
    s_mov_b32 s{sT3+3}, 0x20000
    s_cmp_eq_u32 s{sW}, 8
    s_waitcnt lgkmcnt(0)
    s_mov_b64 {pr(sX)}, {pr(pX)}
    s_mov_b64 {pr(sWS)}, {pr(pWS)}
    s_cbranch_scc0 L_notprod
    """)
    def base(s, p, size): a(f"s_mov_b64 {pr(s)}, {pr(p)}\ns_mov_b32 s{s+2}, {size}")
    def fragaddr():
        a(f"""
        v_and_b32 v{vT0}, 7, v{vL}
        v_mul_u32_u24 v{vFrag}, {PITCH}, v{vT0}
        v_and_b32 v{vT0}, 8, v{vL}
        v_lshl_add_u32 v{vFrag}, v{vT0}, 6, v{vFrag}
        v_and_b32 v{vT0}, 48, v{vL}
        v_add_u32 v{vFrag}, v{vT0}, v{vFrag}
        """)

    SRCV, DSTV, AV, PV = 16, 26, 36, 46
    a("s_setprio 3")
    base(sT1, pSRC, 640000)
    base(sT2, pDST, 640000)
    a(f"""
    v_lshlrev_b32 v{vT1}, 4, v{vL}
    v_lshlrev_b32 v{vT2}, 3, v{vL}
    s_mul_i32 s{s0}, s2, {EPW*4}
    buffer_load_dwordx4 {vr(DSTV,4)}, v{vT1}, {srd(sT2)}, s{s0} offen
    buffer_load_dwordx4 {vr(DSTV+4,4)}, v{vT1}, {srd(sT2)}, s{s0} offen offset:1024
    buffer_load_dwordx2 {vr(DSTV+8,2)}, v{vT2}, {srd(sT2)}, s{s0} offen offset:2048
    buffer_load_dwordx4 {vr(SRCV,4)}, v{vT1}, {srd(sT1)}, s{s0} offen
    buffer_load_dwordx4 {vr(SRCV+4,4)}, v{vT1}, {srd(sT1)}, s{s0} offen offset:1024
    buffer_load_dwordx2 {vr(SRCV+8,2)}, v{vT2}, {srd(sT1)}, s{s0} offen offset:2048
    s_mov_b32 s{s1}, {W_EP}
    s_load_dword s{sTag}, {pr(pWS)}, s{s1}
    s_barrier
    v_mov_b32 v8, 1
    v_mov_b32 v9, 4
    v_mov_b32 v10, {L_HIST}
    v_add_u32 v11, {L_HIST}, v{vT1}
    v_mov_b32 v59, {L_SORT}
    v_add_u32 v74, {L_SORT}, v{vT1}
    v_add_u32 v75, {L_SORT}, v{vT2}
    s_lshl_b32 s{s3_}, s2, 10
    s_add_u32 s{s0}, s{s0}, {W_ENT}
    s_waitcnt vmcnt(5)
    """)
    stamp(1)
    for j in range(10):
        if j == 4: a("s_waitcnt vmcnt(4)")
        if j == 8: a("s_waitcnt vmcnt(3)")
        a(f"""
        v_mul_u32_u24 v{AV+j}, 52429, v{DSTV+j}
        v_lshrrev_b32 v{AV+j}, 21, v{AV+j}
        v_lshl_add_u32 v{AV+j}, v{AV+j}, 2, v10
        ds_add_u32 v{AV+j}, v8
        """)
    a("ds_read_b128 v[12:15], v11\ns_waitcnt vmcnt(0)")
    for j in range(10):
        a(f"v_lshl_or_b32 v{SRCV+j}, v{DSTV+j}, 16, v{SRCV+j}")
    a(f"""
    s_waitcnt lgkmcnt(0)
    v_add_u32 v56, v12, v13
    v_add3_u32 v57, v56, v14, v15
    s_nop 1
    v_add_u32_dpp v58, v57, v57 row_shr:1 row_mask:0xf bank_mask:0xf bound_ctrl:1
    s_nop 1
    v_add_u32_dpp v58, v58, v58 row_shr:2 row_mask:0xf bank_mask:0xf bound_ctrl:1
    s_nop 1
    v_add_u32_dpp v58, v58, v58 row_shr:4 row_mask:0xf bank_mask:0xf bound_ctrl:1
    s_nop 1
    v_add_u32_dpp v58, v58, v58 row_shr:8 row_mask:0xf bank_mask:0xf bound_ctrl:1
    s_nop 1
    v_add_u32_dpp v58, v58, v58 row_bcast:15 row_mask:0xa bank_mask:0xf
    s_nop 1
    v_add_u32_dpp v58, v58, v58 row_bcast:31 row_mask:0xc bank_mask:0xf
    v_sub_u32 v60, v58, v57
    v_add_u32 v61, v60, v12
    v_add_u32 v62, v60, v56
    v_add_u32 v63, v62, v14
    v_lshl_add_u32 v64, v60, 2, v59
    v_lshl_add_u32 v65, v61, 2, v59
    v_lshl_add_u32 v66, v62, 2, v59
    v_lshl_add_u32 v67, v63, 2, v59
    ds_write_b128 v11, v[64:67]
    """)
    for j in range(10):
        a(f"ds_add_rtn_u32 v{PV+j}, v{AV+j}, v9")
    a(f"""
    s_add_u32 s{sTag}, s{sTag}, 0x400
    s_and_b32 s{sTag}, s{sTag}, {TMASK}
    v_or_b32 v60, s{sTag}, v60
    v_or_b32 v61, s{sTag}, v61
    v_or_b32 v62, s{sTag}, v62
    v_or_b32 v63, s{sTag}, v63
    s_or_b32 s{s2_}, s{sTag}, 1
    v_mov_b32 v12, s{s2_}
    """)
    for j in range(0, 10, 2):
        a(f"s_waitcnt lgkmcnt(8)\nds_write_b32 v{PV+j}, v{SRCV+j}\nds_write_b32 v{PV+j+1}, v{SRCV+j+1}")
    a(f"""
    ds_read_b128 v[64:67], v74
    ds_read_b128 v[68:71], v74 offset:1024
    ds_read_b64 v[72:73], v75 offset:2048
    s_waitcnt lgkmcnt(2)
    buffer_store_dwordx4 v[64:67], v{vT1}, {srd(sWS)}, s{s0} offen sc1
    s_waitcnt lgkmcnt(1)
    buffer_store_dwordx4 v[68:71], v{vT1}, {srd(sWS)}, s{s0} offen offset:1024 sc1
    s_waitcnt lgkmcnt(0)
    buffer_store_dwordx2 v[72:73], v{vT2}, {srd(sWS)}, s{s0} offen offset:2048 sc1
    """)
    stamp(2)
    wait(SY_M2, 2)
    a(f"""
    s_waitcnt vmcnt(0)
    buffer_store_dwordx4 v[60:63], v{vT1}, {srd(sWS)}, s{s3_} offen sc1
    ds_write_b32 v{vSy}, v12 offset:{SY_GO}
    """)
    stamp(3)
    a("s_branch L_preB")

    a(f"""
    L_notprod:
    s_cmp_lt_u32 s{sW}, 8
    s_cbranch_scc1 L_preA
    s_setprio 3
    s_cmp_eq_u32 s{sW}, 9
    s_cbranch_scc1 L_touch
    s_cmp_ge_u32 s{sW}, 13
    s_cbranch_scc1 L_notm
    s_cmp_ge_u32 s2, 128
    s_cbranch_scc1 L_b1
    s_and_b32 s{s0}, s2, 7
    s_lshr_b32 s{s1}, s2, 4
    s_sub_u32 s{s2_}, s{sW}, 10
    s_bfe_u32 s{s3_}, s2, 0x10003
    s_cmp_eq_u32 s{sW}, 12
    s_cselect_b32 s{s0}, s{s1}, s{s0}
    s_cselect_b32 s{s3_}, s{s3_}, s{s2_}
    s_cselect_b64 {pr(sT1)}, {pr(pWK)}, {pr(pWQ)}
    s_mov_b32 s{sT1+2}, 131072
    s_lshl_b32 s{s0}, s{s0}, 14
    s_lshl_b32 s{s3_}, s{s3_}, 11
    s_add_u32 s{s0}, s{s0}, s{s3_}
    s_mul_i32 s{s2_}, s{s2_}, {TILE}
    v_and_b32 v{vT0}, 32, v{vL}
    v_lshl_add_u32 v{vT0}, v{vT0}, 8, v{vM16}
    """)
    for u in range(8):
        k = u & 3
        a(f"s_add_u32 m0, s{s2_}, {L_R2 + u*PITCH - k*512}")
        a(f"s_add_u32 s{s0}, s{s0}, 4096" if u == 4 else "s_nop 0")
        a(f"buffer_load_dwordx4 v{vT0}, {srd(sT1)}, s{s0} offen offset:{k*512} lds")
    a(f"""
    s_branch L_b1
    L_notm:
    s_cmp_eq_u32 s{sW}, 13
    s_cbranch_scc0 L_b1
    s_cmp_lt_u32 s2, {NWG - (64 if hyb else 128)}
    s_cbranch_scc1 L_b1
    s_sub_u32 s{s0}, s2, {NWG-128}
    s_cmp_lt_u32 s{s0}, 64
    s_cselect_b64 {pr(sT1)}, {pr(pWV)}, {pr(pWL)}
    s_mov_b32 s{sT1+2}, 131072
    s_and_b32 s{s1}, s{s0}, 7
    s_lshl_b32 s{s1}, s{s1}, 14
    s_bfe_u32 s{s2_}, s{s0}, 0x30003
    s_lshl_b32 s{s2_}, s{s2_}, 6
    s_add_u32 s{s1}, s{s1}, s{s2_}
    v_and_b32 v{vT0}, 15, v{vL}
    v_lshlrev_b32 v{vT0}, 2, v{vT0}
    v_and_b32 v{vT1}, 48, v{vL}
    v_lshl_add_u32 v{vT0}, v{vT1}, 8, v{vT0}
    """)
    for j in range(8):
        a(f"buffer_load_dword v{16+j}, v{vT0}, {srd(sT1)}, s{s1} offen offset:{j*512}")
    a("s_branch L_b1\nL_touch:")
    if touch:
        base(sT1, pWV, 131072)
        base(sT2, pDIS, 20000)
        a(f"""
        s_lshr_b32 s{s0}, s2, 3
        s_mul_i32 s{s1}, s{s0}, 640
        s_mul_i32 s{s0}, s{s0}, {34*128}
        v_lshlrev_b32 v{vT0}, 7, v{vL}
        s_mov_b64 exec, 63
        buffer_load_dword v16, v{vT0}, {srd(sT2)}, s{s1} offen
        """)
        if otouch: a(f"s_lshl_b32 s{s1}, s2, 10\ns_mov_b64 exec, 255\nbuffer_load_dword v18, v{vT0}, {srd(sWS)}, s{s1} offen")
        if hyb: a(f"s_bfm_b64 exec, 34, 0\nbuffer_load_dword v17, v{vT0}, {srd(sT1)}, s{s0} offen")
        a("s_mov_b64 exec, -1\ns_barrier\ns_waitcnt vmcnt(0)")
        signal(SY_Y)
        a("s_branch L_preB")
    a("L_b1:\ns_barrier")
    base(sT2, pDIS, 20000)
    a(f"""
    s_cmp_eq_u32 s{sW}, 9
    s_cbranch_scc1 L_preB
    s_cmp_eq_u32 s{sW}, 10
    s_cbranch_scc1 L_disd
    s_cmp_eq_u32 s{sW}, 13
    s_cbranch_scc1 L_wtask
    s_cmp_lt_u32 s{sW}, 13
    s_cbranch_scc1 L_min
    """)
    if touch: wait(SY_Y, 1, sleep=1)
    a(f"""
    s_sub_u32 s{s0}, s{sW}, 14
    s_mul_i32 s{s0}, s{s0}, 10240
    v_lshlrev_b32 v{vT0}, 4, v{vL}
    """)
    for i in range(10):
        if i % 4 == 0: a(f"s_add_u32 m0, s{s0}, {L_R3 + i*1024}\ns_add_u32 s{s1}, s{s0}, {i*1024}")
        a(f"buffer_load_dwordx4 v{vT0}, {srd(sT2)}, s{s1} offen offset:{(i%4)*1024} lds")
    a("s_branch L_preB\nL_min:\ns_waitcnt vmcnt(0)")
    signal(SY_M)
    a(f"""
    s_branch L_preB
    L_disd:
    s_cmp_ge_u32 s2, 128
    s_cbranch_scc1 L_taskd
    s_setprio 3
    """)
    fragaddr()
    a(f"""
    v_add_u32 v{vT1}, {L_R2}, v{vFrag}
    s_lshr_b32 s{s0}, s2, 4
    s_lshl_b32 s{s0}, s{s0}, 3
    s_and_b32 s{s1}, s2, 7
    s_add_u32 s{s0}, s{s0}, s{s1}
    s_lshl_b32 s{s0}, s{s0}, 1
    s_bfe_u32 s{s1}, s2, 0x10003
    s_add_u32 s{s0}, s{s0}, s{s1}
    s_lshl_b32 s{s0}, s{s0}, 10
    s_add_u32 s{s0}, s{s0}, {W_FR}
    v_lshlrev_b32 v{vT2}, 4, v{vL}
    s_waitcnt vmcnt(0)
    """)
    wait(SY_M, 2)
    stamp(1)
    MB = 32
    for ks in range(4):
        for t in range(3):
            a(f"ds_read_b128 {vr(MB+12*ks+4*t,4)}, v{vT1} offset:{t*TILE + ks*64}")
    for ks in range(8):
        a(f"s_waitcnt lgkmcnt({min(9, 3*(7-ks))})")
        if ks < 4:
            for t in range(3):
                a(f"ds_read_b128 {vr(MB+12*(ks+4)+4*t,4)}, v{vT1} offset:{t*TILE + (ks+4)*64}")
        for t in range(2):
            c = "0" if ks == 0 else vr(8 + 4 * t, 4)
            a(f"v_mfma_f32_16x16x32_bf16 {vr(8+4*t,4)}, {vr(MB+12*ks+4*t,4)}, {vr(MB+12*ks+8,4)}, {c}")
    a(f"""
    s_nop 6
    v_cvt_pk_bf16_f32 v16, v8, v9
    v_cvt_pk_bf16_f32 v17, v10, v11
    v_cvt_pk_bf16_f32 v18, v12, v13
    v_cvt_pk_bf16_f32 v19, v14, v15
    buffer_store_dwordx4 v[16:19], v{vT2}, {srd(sWS)}, s{s0} offen sc1
    """)
    stamp(3)
    a(f"""
    s_branch L_taskw
    L_wtask:
    s_cmp_lt_u32 s2, {NWG - (64 if hyb else 128)}
    s_cbranch_scc1 L_taskd
    s_sub_u32 s{s0}, s2, {NWG-128}
    s_lshl_b32 s{s0}, s{s0}, 11
    s_add_u32 s{s0}, s{s0}, {W_FR + 131072}
    v_lshlrev_b32 v{vT2}, 4, v{vL}
    s_waitcnt vmcnt(0)
    """)
    for q in range(4):
        a(f"v_perm_b32 v{60+q}, v{17+2*q}, v{16+2*q}, s{sSelLo}")
        a(f"v_perm_b32 v{64+q}, v{17+2*q}, v{16+2*q}, s{sSelHi}")
    a(f"""
    buffer_store_dwordx4 v[60:63], v{vT2}, {srd(sWS)}, s{s0} offen sc1
    buffer_store_dwordx4 v[64:67], v{vT2}, {srd(sWS)}, s{s0} offen offset:1024 sc1
    """)

    a("L_taskw:\ns_waitcnt vmcnt(0)\nL_taskd:")
    signal(SY_M2)
    stamp(2)
    a("s_branch L_preB")

    FR, XB, ACC = 16, 80, 104
    vSL0, vSL1, vSH0, vSH1 = 8, 9, 10, 11
    def selregs(lo):
        a(f"""
        v_and_b32 v{vT0}, 3, v{vL}
        v_mov_b32 v{vT1}, 0x0c0c0c0c
        v_mov_b32 v{vT2}, 0x0c0c0302
        v_mov_b32 v{vT3}, 0x03020c0c
        v_cmp_eq_u32 s[58:59], 0, v{vT0}
        v_cmp_eq_u32 s[60:61], 2, v{vT0}
        v_cmp_eq_u32 vcc, 1, v{vT0}
        v_cndmask_b32 v{vSH0}, v{vT1}, v{vT2}, s[58:59]
        v_cndmask_b32 v{vSH1}, v{vT1}, v{vT2}, s[60:61]
        v_cndmask_b32 v{vSH0}, v{vSH0}, v{vT3}, vcc
        v_cmp_eq_u32 vcc, 3, v{vT0}
        s_nop 1
        v_cndmask_b32 v{vSH1}, v{vSH1}, v{vT3}, vcc
        """)
        if lo:
            a(f"v_and_b32 v{vSL0}, 0xfdfdfdfd, v{vSH0}\nv_and_b32 v{vSL1}, 0xfdfdfdfd, v{vSH1}")
    vXa, vQw, vMo = 12, 13, 14
    IDX = 104
    a(f"L_preA:\n{'' if xa_at < 0 else 's_barrier'}\ns_setprio {prioE}")
    base(sT3, pESRC, 160000)
    def xaload():
        a(f"""
        v_and_b32 v{vT2}, 32, v{vL}
        s_mul_i32 s{s0}, s{sBeta}, 640
        s_lshl_b32 s{s1}, s{sW}, 6
        s_add_u32 s{s1}, s{s0}, s{s1}
        s_lshr_b32 s{s2_}, s{sW}, 2
        s_lshl_b32 s{s2_}, s{s2_}, 6
        s_and_b32 s{s3_}, s{sW}, 3
        s_lshl_b32 s{s3_}, s{s3_}, 3
        s_add_u32 s{s0}, s{s0}, s{s2_}
        s_add_u32 s{s0}, s{s0}, s{s3_}
        buffer_load_dwordx4 {vr(IDX,4)}, v{vT2}, {srd(sT3)}, s{s1} offen
        buffer_load_dwordx4 {vr(IDX+4,4)}, v{vT2}, {srd(sT3)}, s{s1} offen offset:16
        buffer_load_dwordx2 {vr(IDX+8,2)}, v{vT2}, {srd(sT3)}, s{s0} offen offset:512
        v_lshl_add_u32 v{vT1}, v{vT2}, 7, v{vM16}
        v_lshl_add_u32 v{vT2}, v{vT2}, 6, v{vM16}
        s_add_u32 s{s0}, s{sW}, s{sNB}
        s_mul_i32 s{s1}, s{sW}, {PITCH}
        s_add_u32 m0, s{s1}, {L_R1}
        s_lshl_b32 s{s0}, s{s0}, 9
        buffer_load_dwordx4 v{vT1}, {srd(sX)}, s{s0} offen lds
        s_add_u32 m0, s{s1}, {L_R1 + 8*PITCH}
        s_add_u32 s{s0}, s{s0}, 8192
        buffer_load_dwordx4 v{vT1}, {srd(sX)}, s{s0} offen lds
        s_cmp_ge_u32 s{sW}, 4
        s_cbranch_scc1 L_xa2
        s_add_u32 m0, s{s1}, {L_R1 + 16*PITCH}
        s_add_u32 s{s0}, s{s0}, 8192
        buffer_load_dwordx4 v{vT2}, {srd(sX)}, s{s0} offen lds
        L_xa2:
        """)
    if xa_at <= 0: xaload()
    if xa_at < 0: a('s_barrier')
    if hyb:
        base(sT1, pWV, 131072)
        a(f"""
        v_and_b32 v{vT0}, 15, v{vL}
        v_lshlrev_b32 v{vT0}, 2, v{vT0}
        v_and_b32 v{vT3}, 48, v{vL}
        v_lshl_add_u32 v{vT3}, v{vT3}, 8, v{vT0}
        s_lshl_b32 s{sFo}, s{sW}, 6
        {'s_waitcnt vmcnt(0)' if wsep else ''}
        """)
        AH = 6
        if touch: wait(SY_Y, 1, sleep=1)
        def wissue(n):
            if n: a(f"s_add_u32 s{sFo}, s{sFo}, 16384")
            for j in range(8):
                a(f"buffer_load_dword v{FR+8*(n+1)+j}, v{vT3}, {srd(sT1)}, s{sFo} offen offset:{j*512}")
        for n in range(AH): wissue(n)
        for n in range(8):
            a(f"s_waitcnt vmcnt({8*min(AH-1, 7-n)})")
            if n + AH < 8: wissue(n + AH)
            r, o = FR + 8 * (n + 1), FR + 8 * n
            for q in range(4):
                a(f"v_perm_b32 v{o+q}, v{r+2*q+1}, v{r+2*q}, s{sSelLo}")
                a(f"v_perm_b32 v{o+4+q}, v{r+2*q+1}, v{r+2*q}, s{sSelHi}")
    stamp(1)
    if xa_at == 1: xaload()
    if xa_at == 2:
        wait(SY_GO, 1, sleep=1)
        xaload()
    fragaddr()
    mksrd(sOUT, pOUT, 10000 * 512)
    a(f"""
    v_lshlrev_b32 v{vMo}, 4, v{vL}
    s_lshl_b32 s{sFo}, s{sW}, 14
    s_add_u32 s{sFo}, s{sFo}, {W_FR}
    v_add_u32 v{vXa}, {L_R1}, v{vFrag}
    s_lshl_b32 s{s3_}, s{sW}, 6
    s_add_u32 s{s3_}, s{s3_}, {L_R2}
    v_add_u32 v{vQw}, s{s3_}, v{vFrag}
    s_mul_i32 s{s2_}, s{sW}, {2*PITCH}
    s_mul_i32 s{s3_}, s{sW}, {TILE}
    s_waitcnt vmcnt(0)
    """)
    signal(SY_X)
    stamp(2)
    for u in range(10): a(f"v_lshl_add_u32 v{IDX+u}, v{IDX+u}, 9, v{vM16}")
    def eload(u):
        if dbg & 8: return
        a(f"s_add_u32 m0, s{s3_}, {L_E + u*PITCH}" if u < 8 else f"s_add_u32 m0, s{s2_}, {L_E + 8*TILE + (u-8)*PITCH}")
        a(f"s_waitcnt vmcnt({min(thr, 63)})\nbuffer_load_dwordx4 v{IDX+u}, {srd(sX)}, 0 offen lds")
    if epre:
        if e_at == 1: wait(SY_GO, 1, sleep=1)
        if e_at == 2: wait(SY_V, 8, sleep=1)
        stamp(3)
        for u in range(epre): eload(u)
    stamp(4)
    wait(SY_V, 8, sleep=1)
    nf = [0]
    def fload(i, reg=None):
        if i % 4 == 0 and nf[0]: a(f"s_add_u32 s{sFo}, s{sFo}, {((i//16)*131072 + (i%16)*1024) - nf[1]}")
        if i % 4 == 0: nf[:] = [1, (i // 16) * 131072 + (i % 16) * 1024]
        reg = FR + 4 * (i % 16) if reg is None else reg
        a(f"buffer_load_dwordx4 {vr(reg,4)}, v{vMo}, {srd(sWS)}, s{sFo} offen offset:{(i%4)*1024} sc1")
    def xread(s):
        for rt in range(3):
            a(f"ds_read_b128 {vr(XB+12*(s&1)+4*rt,4)}, v{vXa} offset:{rt*TILE+s*64}")
    def gemm(vm, w_is_a):
        for s in range(8):
            if s < 7: xread(s + 1)
            a(f"s_waitcnt vmcnt({vm[s]}) lgkmcnt({3 if s < 7 else 0})")
            for rt in range(3):
                for t in range(2):
                    d, f, x = vr(ACC + 8 * rt + 4 * t, 4), vr(FR + 8 * s + 4 * t, 4), vr(XB + 12 * (s & 1) + 4 * rt, 4)
                    a(f"v_mfma_f32_16x16x32_bf16 {d}, {f if w_is_a else x}, {x if w_is_a else f}, {'0' if s == 0 else d}")
    def burst(mat):
        a(f"s_setprio {prioL}")
        for i in range(16): fload(16 * mat + i)
        a(f"s_setprio {prioA}")
    stamp(5)
    if dbg & 1: a("s_branch L_end")
    ne = 0 if dbg & 8 else 10 - epre
    a(f"s_setprio {prioL}")
    if not hyb:
        seq = []
        for s in range(8):
            seq += [("e", epre + k) for k in range(s * ne // 8, (s + 1) * ne // 8)] + [("f", 2 * s), ("f", 2 * s + 1)]
        for kind, i in seq: (eload if kind == "e" else fload)(i)
        a(f"s_setprio {prioA}")
        wait(SY_X, 8)
        xread(0)
        gemm([len(seq) - 1 - seq.index(("f", 2 * s + 1)) for s in range(8)], True)
        a("s_nop 3")
    else:
        MR, XQ = 80, [96, 100, 4, 8]
        for u in range(epre, epre + ne): eload(u)
        for i in range(4): fload(i, MR + 4 * i)
        wait(SY_X, 8)
        def xq(n): a(f"ds_read_b128 {vr(XQ[n%4],4)}, v{vXa} offset:{(n%3)*TILE+(n//3)*64}")
        for n in range(3): xq(n)
        for n in range(24):
            s, rt = n // 3, n % 3
            if n + 3 < 24: xq(n + 3)
            vm = f"vmcnt({2 if s < 7 else 0}) " if rt == 0 else ""
            a(f"s_waitcnt {vm}lgkmcnt({min(3, 23-n)})")
            for t in range(2):
                d = vr(ACC + 8 * rt + 4 * t, 4)
                a(f"v_mfma_f32_16x16x32_bf16 {d}, {vr(MR+8*(s&1)+4*t,4)}, {vr(XQ[n%4],4)}, {'0' if s == 0 else d}")
            if rt == 2 and s < 6:
                for t in range(2): fload(2 * s + 4 + t, MR + 8 * (s & 1) + 4 * t)
        a(f"s_setprio {prioA}\ns_nop 1")
    for rt in range(3):
        d0, d1, o = ACC + 8 * rt, ACC + 8 * rt + 4, XB + 4 * rt
        a(f"""
        v_cvt_pk_bf16_f32 v{o}, v{d0}, v{d0+1}
        v_cvt_pk_bf16_f32 v{o+1}, v{d0+2}, v{d0+3}
        v_cvt_pk_bf16_f32 v{o+2}, v{d1}, v{d1+1}
        v_cvt_pk_bf16_f32 v{o+3}, v{d1+2}, v{d1+3}
        ds_write_b128 v{vQw}, {vr(o,4)} offset:{rt*TILE}
        """)
    signal(SY_A)
    stamp(6)
    if not hyb: burst(1)
    selregs(True)

    vEa, vQa, vEr, vAw = 12, 13, 14, 2
    sG = sK
    P, RB, AJ = 80, 80, 112
    DK = [120, 124, 4, 12]
    a(f"s_mov_b32 s{sG}, s{sW}")
    def gsetup():
        a(f"""
        s_mul_i32 s{s0}, s{sG}, {TILE}
        s_lshr_b32 s{s1}, s{sG}, 2
        s_mul_i32 s{s1}, s{s1}, {TILE}
        s_and_b32 s{s2_}, s{sG}, 1
        s_bfe_u32 s{s3_}, s{sG}, 0x10001
        s_cmp_ge_u32 s{sG}, 8
        s_cselect_b32 s{s3_}, s{s2_}, s{s3_}
        s_cselect_b32 s{s2_}, 0, s{s2_}
        s_mul_i32 s{s2_}, s{s2_}, {TILE//2}
        s_lshl_b32 s{s3_}, s{s3_}, 9
        s_add_u32 s{s1}, s{s1}, s{s2_}
        s_add_u32 s{s1}, s{s1}, s{s3_}
        s_add_u32 s{s1}, s{s1}, {L_R2}
        v_add_u32 v{vEa}, s{s0}, v{vFrag}
        v_bfe_u32 v{vT0}, v{vL}, 2, 2
        v_mul_u32_u24 v{vT0}, {PITCH}, v{vT0}
        v_and_b32 v{vT1}, 48, v{vL}
        v_add3_u32 v{vQa}, v{vT0}, v{vT1}, s{s1}
        v_lshl_add_u32 v{vEr}, v{vL}, 3, s{s0}
        v_lshl_add_u32 v{vAw}, v{vL}, 3, s{s1}
        """)
    a("L_grp:")
    gsetup()
    a(f"s_cmp_ge_u32 s{sG}, 8\ns_cbranch_scc1 L_grp2")
    wait(SY_A, 8)
    a("L_grp2:\ns_waitcnt lgkmcnt(0)")
    def pread(s):
        a(f"ds_read_b128 {vr(P+8*(s%6),4)}, v{vEa} offset:{s*64}")
        a(f"ds_read_b128 {vr(P+8*(s%6)+4,4)}, v{vQa} offset:{s*64}")
    for s in range(6): pread(s)
    for s in range(8):
        a(f"s_waitcnt lgkmcnt({10 if s < 3 else 14-2*s})")
        a(f"v_mfma_f32_16x16x32_bf16 v[4:7], {vr(P+8*(s%6),4)}, {vr(P+8*(s%6)+4,4)}, {'0' if s == 0 else 'v[4:7]'}")
        if s < 2: pread(s + 6)
    order = [(j, k) for j in (2, 3, 0, 1) for k in range(4)]
    for n, (j, k) in enumerate(order):
        i = 4 * k + j
        if n == 15: a("s_waitcnt lgkmcnt(14)")
        a(f"ds_read_b64 {vr(RB+8*j+2*k,2)}, v{vEr} offset:{(i&7)*PITCH+(i>>3)*512}")
    a(f"""
    v_mul_f32 v4, 0x3db8aa3b, v4
    v_mul_f32 v5, 0x3db8aa3b, v5
    v_mul_f32 v6, 0x3db8aa3b, v6
    v_mul_f32 v7, 0x3db8aa3b, v7
    v_exp_f32 v4, v4
    v_exp_f32 v5, v5
    v_exp_f32 v6, v6
    v_exp_f32 v7, v7
    v_add_f32 v12, v4, v5
    v_add_f32 v13, v6, v7
    v_add_f32 v12, v12, v13
    v_add_f32 v12, 0x3089705f, v12
    v_rcp_f32 v12, v12
    s_add_u32 s{sG}, s{sG}, 8
    v_mul_f32 v4, v4, v12
    v_mul_f32 v5, v5, v12
    v_mul_f32 v6, v6, v12
    v_mul_f32 v7, v7, v12
    v_cvt_pk_bf16_f32 v4, v4, v5
    v_cvt_pk_bf16_f32 v6, v6, v7
    """)
    for j in range(4):
        src = 4 + (j & 2)
        a(f"v_perm_b32 v{AJ+2*j}, v{src}, v{src}, v{vSH0 if j & 1 else vSL0}")
        a(f"v_perm_b32 v{AJ+2*j+1}, v{src}, v{src}, v{vSH1 if j & 1 else vSL1}")
    a("s_waitcnt lgkmcnt(0)")
    for j in range(4):
        for k in range(4):
            d = vr(DK[k], 4)
            a(f"v_mfma_f32_4x4x4_16b_bf16 {d}, {vr(AJ+2*j,2)}, {vr(RB+8*j+2*k,2)}, {'0' if j == 0 else d} cbsz:4 abid:{5*k}")
    a("s_nop 1")
    for k in range(4):
        d = DK[k]
        a(f"""
        v_cvt_pk_bf16_f32 v{AJ+2*k}, v{d}, v{d+1}
        v_cvt_pk_bf16_f32 v{AJ+2*k+1}, v{d+2}, v{d+3}
        ds_write_b64 v{vAw}, {vr(AJ+2*k,2)} offset:{k*PITCH}
        """)
    a(f"s_cmp_lt_u32 s{sG}, 10\ns_cbranch_scc1 L_grp")
    signal(SY_B)
    stamp(7)
    vOo, vOo2 = 8, 9
    a(f"""
    v_add_u32 v{vXa}, {L_R2}, v{vFrag}
    v_lshlrev_b32 v{vMo}, 4, v{vL}
    v_and_b32 v{vT2}, 15, v{vL}
    v_lshlrev_b32 v{vT2}, 2, v{vT2}
    v_and_b32 v{vT1}, 48, v{vL}
    v_lshl_add_u32 v{vOo}, v{vT1}, 7, v{vT2}
    v_and_b32 v{vT1}, 32, v{vL}
    v_lshl_add_u32 v{vOo2}, v{vT1}, 6, v{vT2}
    v_and_b32 v{vT1}, 16, v{vL}
    v_lshl_add_u32 v{vOo2}, v{vT1}, 22, v{vOo2}
    s_lshl_b32 s{s2_}, s{sNB}, 9
    s_lshl_b32 s{s3_}, s{sW}, 6
    s_add_u32 s{s2_}, s{s2_}, s{s3_}
    """)
    wait(SY_B, 8)
    xread(0)
    gemm([14 - 2 * s for s in range(8)], False)
    stamp(8)
    burst(2)
    a(f"v_add_u32 v{vXa}, {L_R3}, v{vFrag}")
    for rt in range(3):
        wait(SY_T + 4 * rt, 16 if rt < 2 else 8, sleep=1 if rt < 2 else 0, cap=0x1000000)
        if rt == 2: stamp(10)
        for s in range(6):
            a(f"ds_read_b128 {vr(XB+4*s,4)}, v{vXa} offset:{rt*TILE+s*64}")
        for s in range(8):
            vm = f"vmcnt({14-2*s}) " if rt == 0 else ""
            a(f"s_waitcnt {vm}lgkmcnt({5 if s < 3 else 7-s})")
            for t in range(2):
                d = vr(ACC + 8 * rt + 4 * t, 4)
                a(f"v_mfma_f32_16x16x32_bf16 {d}, {vr(XB+4*(s%6),4)}, {vr(FR+8*s+4*t,4)}, {d}")
            if s < 2: a(f"ds_read_b128 {vr(XB+4*s,4)}, v{vXa} offset:{rt*TILE+(s+6)*64}")
        a("s_nop 7")
        for r in range(4):
            d = ACC + 8 * rt
            a(f"""
            v_cvt_pk_bf16_f32 v{d+r}, v{d+r}, v{d+4+r}
            buffer_store_dword v{d+r}, v{vOo if rt < 2 else vOo2}, {srd(sOUT)}, s{s2_} offen offset:{r*512}
            """)
        if rt < 2: a(f"s_add_u32 s{s2_}, s{s2_}, 8192")
        if rt == 0: stamp(9)
    stamp(11)
    if stamps: a("s_waitcnt vmcnt(0)")
    stamp(12)
    a("s_branch L_end")

    EV, LA, RK, WV = 16, 24, 32, 40
    vDis, vRow, vSl, vEnt, vAad, vFo = 8, 9, 12, 13, 14, 15
    vCnt, vEa2, vKey, vSuf, vC4, vR3, vCb, vOfa, vLb, vSub, vOf = 48, 49, 50, 51, 52, 53, 54, 55, 56, 57, 58
    def bsetup():
        selregs(False)
        a(f"""
        s_lshl_b32 s{s0}, s{sJ}, 5
        v_lshrrev_b32 v{vT1}, 1, v{vL}
        v_add_u32 v{vT1}, s{s0}, v{vT1}
        v_cmp_gt_u32 vcc, {NWG}, v{vT1}
        v_and_b32 v{vSub}, 1, v{vL}
        s_mov_b64 s[64:65], vcc
        v_lshlrev_b32 v{vOfa}, 10, v{vT1}
        v_mul_u32_u24 v{vEa2}, {EPW*4}, v{vT1}
        v_lshl_add_u32 v{vEa2}, v{vSub}, 4, v{vEa2}
        v_lshlrev_b32 v{vSub}, 2, v{vSub}
        v_lshrrev_b32 v{vT1}, 3, v{vL}
        v_and_b32 v{vT2}, 7, v{vL}
        v_cmp_gt_u32 s[62:63], 5, v{vT2}
        v_lshl_add_u32 v{vKey}, v{vT2}, 3, v{vT1}
        v_mul_u32_u24 v{vLb}, {CAP*8}, v{vT1}
        v_add_u32 v{vLb}, {L_LIST + CAP*8}, v{vLb}
        v_lshrrev_b32 v{vT1}, 4, v{vKey}
        v_mul_u32_u24 v{vRow}, {TILE}, v{vT1}
        v_lshl_add_u32 v{vRow}, v{vT1}, 26, v{vRow}
        v_cmp_le_u32 vcc, 32, v{vKey}
        v_and_b32 v{vT1}, 7, v{vKey}
        v_and_b32 v{vT2}, 3, v{vKey}
        v_cndmask_b32 v{vT1}, v{vT1}, v{vT2}, vcc
        v_mul_u32_u24 v{vT1}, {PITCH}, v{vT1}
        v_bfe_u32 v{vT2}, v{vKey}, 3, 1
        v_bfe_u32 v{vT3}, v{vKey}, 2, 1
        v_cndmask_b32 v{vT2}, v{vT2}, v{vT3}, vcc
        v_lshl_add_u32 v{vT1}, v{vT2}, 9, v{vT1}
        v_mov_b32 v{vR3}, {L_R3}
        v_add3_u32 v{vRow}, v{vRow}, v{vT1}, v{vR3}
        v_lshrrev_b32 v{vT1}, 5, v{vL}
        v_lshl_add_u32 v{vFo}, v{vT1}, 3, v{vM16}
        v_mov_b32 v{vC4}, 4
        s_lshl_b32 s{s0}, s{sNB}, 2
        s_sub_u32 s{s0}, {L_CNT}, s{s0}
        v_mov_b32 v{vCb}, s{s0}
        v_add_u32 v{vT1}, s{sNB}, v{vKey}
        v_lshl_add_u32 v{vDis}, v{vT1}, 1, v{vR3}
        v_lshlrev_b32 v{vKey}, 2, v{vKey}
        v_add_u32 v{vKey}, {L_CNT}, v{vKey}
        s_lshl_b32 s{s2_}, s{sBeta}, 2
        s_mov_b32 s{s3_}, {W_ENT}
        v_mov_b64 {vr(vOf,2)}, 0
        """)
        for j in range(0, 8, 2): a(f"v_mov_b64 {vr(EV+j,2)}, 0")
    a("L_preB:\ns_setprio 3")
    bsetup()
    wait(SY_GO, 1, sleep=1)
    a(f"v_readfirstlane_b32 s{sTag}, v{vT0}")
    stamp(4)
    if sleep0: a(f"s_sleep {sleep0}")
    a(f"""
    s_mov_b32 s{s1}, 0
    s_mov_b64 exec, s[64:65]
    s_bitset0_b32 s{sTag}, 0
    L_spoll:
    buffer_load_dwordx2 {vr(vOf,2)}, v{vOfa}, {srd(sWS)}, s{s2_} offen sc1
    s_add_u32 s{s1}, s{s1}, 1
    s_cmp_gt_u32 s{s1}, 0x40000
    s_cbranch_scc1 L_end
    s_waitcnt vmcnt(0)
    v_xor_b32 v{vOf}, s{sTag}, v{vOf}
    v_xor_b32 v{vOf+1}, s{sTag}, v{vOf+1}
    v_or_b32 v{vT1}, v{vOf}, v{vOf+1}
    v_cmpx_lt_u32 vcc, 0x3ff, v{vT1}
    s_cbranch_execz L_sok
    s_sleep {psleep}
    s_branch L_spoll
    L_sok:
    s_mov_b64 exec, -1
    v_lshl_add_u32 v{vEa2}, v{vOf}, 2, v{vEa2}
    v_sub_u32 v{vCnt}, v{vOf+1}, v{vOf}
    v_sub_u32 v{vCnt}, v{vCnt}, v{vSub}
    """)
    if stamps: a(f"s_mov_b32 s{ST0+11}, s{ST0+1}\ns_add_u32 s{ST0+10}, s{ST0}, s{s1}")
    stamp(6)
    for q in range(2):
        a(f"""
        v_cmpx_lt_i32 vcc, {8*q}, v{vCnt}
        s_cbranch_execz L_entld
        buffer_load_dwordx4 {vr(EV+4*q,4)}, v{vEa2}, {srd(sWS)}, s{s3_} offen offset:{32*q} sc1
        """)
    a(f"""
    v_cmpx_lt_i32 vcc, 16, v{vCnt}
    s_cbranch_execz L_entld
    ds_write_b32 v{vSy}, v{vC4} offset:{SY_OV}
    L_entld:
    """)
    signal(SY_V)
    a("s_waitcnt vmcnt(0)")
    stamp(7)
    TH = (0, 1, 2, 3, 8, 9, 10, 11)
    def ladder(lab, body, key):
        for j in range(8):
            a(key(j))
            if j >= 4: a(f"s_cbranch_execz {lab}")
            if j == 4: a("s_waitcnt lgkmcnt(2)")
            body(j)
        a(f"{lab}:\ns_mov_b64 exec, -1")
    live = lambda j: f"v_cmpx_lt_i32 vcc, {TH[j]}, v{vCnt}"
    ladder("L_l1", lambda j: a(f"""
        v_mad_u32_u16 v{LA+j}, v{EV+j}, 4, v{vCb} op_sel:[1,0,0,0]
        ds_add_rtn_u32 v{RK+j}, v{LA+j}, v{vC4}
        """), live)
    signal(SY_C1)
    for j in range(8): a(f"v_mad_u32_u16 v{WV+j}, v{EV+j}, 2, v{vR3}")
    wait(SY_C1, 8)
    a(f"""
    ds_read_b32 v{vSl}, v{vKey}
    ds_read_b32 v{vT1}, v{vSy} offset:{SY_OV}
    ds_read_u16 v{vDis}, v{vDis}
    """)
    for j in range(8): a(f"ds_read_u16 v{WV+j}, v{WV+j}")
    a(f"""
    s_lshl_b32 s{s0}, s2, 4
    s_add_u32 s{s0}, s{s0}, s{sW}
    s_cmp_eq_u32 s{s0}, 15
    s_cbranch_scc0 L_noep
    v_mov_b32 v{vT2}, s{sTag}
    v_mov_b32 v{vT3}, {W_EP}
    s_mov_b64 exec, 1
    buffer_store_dword v{vT2}, v{vT3}, {srd(sWS)}, 0 offen sc1
    s_mov_b64 exec, -1
    L_noep:
    s_waitcnt lgkmcnt(10)
    v_add_u32 v{vSl}, 4, v{vSl}
    v_lshrrev_b32 v{vSl}, 3, v{vSl}
    v_max_u32 v{vSl}, 1, v{vSl}
    v_cndmask_b32 v{vSl}, 0, v{vSl}, s[62:63]
    s_lshl_b32 s{sPad}, s{sJ}, 3
    s_nop 0
    v_add_u32_dpp v{vSuf}, v{vSl}, v{vSl} row_shl:1 row_mask:0xf bank_mask:0xf bound_ctrl:1
    s_nop 1
    v_add_u32_dpp v{vSuf}, v{vSuf}, v{vSuf} row_shl:2 row_mask:0xf bank_mask:0xf bound_ctrl:1
    s_nop 1
    v_add_u32_dpp v{vSuf}, v{vSl}, v{vSuf} row_shl:4 row_mask:0xf bank_mask:0x5 bound_ctrl:1
    s_waitcnt lgkmcnt(0)
    v_lshlrev_b32 v{vDis}, 16, v{vDis}
    v_lshl_add_u32 v{vT1}, v{vT1}, 10, v{vSuf}
    v_lshlrev_b32 v{vT3}, 3, v{vSuf}
    v_cmp_le_u32 vcc, {CAP}, v{vT1}
    v_sub_u32 v{vT2}, v{vLb}, v{vT3}
    v_subrev_u32 v{vSl}, 1, v{vSl}
    s_cbranch_vccnz L_slow
    s_mov_b64 exec, s[62:63]
    ds_write_b32 v{vKey}, v{vT2} offset:{L_BASE-L_CNT}
    s_mov_b64 exec, -1
    s_sub_u32 s{sK}, s{sPad}, 1
    v_readlane_b32 s{sPad}, v{vSuf}, s{sPad}
    """)
    ladder("L_l2", lambda j: a(f"ds_read_b32 v{LA+j}, v{LA+j} offset:{L_BASE-L_CNT}"), live)
    a(f"s_lshr_b32 s{sRnd}, s{sPad}, {R.bit_length()-1}" if R != 24 else f"s_mul_i32 s{sRnd}, s{sPad}, 2731\ns_lshr_b32 s{sRnd}, s{sRnd}, 16")
    a(f"""
    s_add_u32 s{s2_}, s{sRnd}, 1
    s_mul_i32 s{s2_}, s{s2_}, {R}
    s_sub_u32 s{sPad}, s{s2_}, s{sPad}
    s_sub_u32 s{sRem}, s{sPad}, 1
    s_add_u32 s{s3_}, s{sJ}, 1
    s_mul_i32 s{s3_}, s{s3_}, {CAP}
    s_sub_u32 s{s2_}, s{s3_}, s{s2_}
    s_lshl_b32 s{s2_}, s{s2_}, 3
    s_add_u32 s{s2_}, s{s2_}, {L_LIST}
    s_waitcnt lgkmcnt(0)
    """)
    def l3(j):
        if dbg & 16: a(f"v_and_b32 v{EV+j}, {gmask}, v{EV+j}")
        a(f"v_perm_b32 v{WV+j}, v{WV+j}, v{EV+j}, s{sSelLo}")
        a(f"v_add_u32 v{LA+j}, v{LA+j}, v{RK+j}\nds_write_b32 v{LA+j}, v{WV+j}")
    ladder("L_l3", l3, live)
    signal(SY_C2)
    a(f"""
    v_lshrrev_b32 v{vT1}, 5, v{vL}
    v_lshl_add_u32 v{vEnt}, v{vT1}, 2, s{s2_}
    v_bfe_u32 v{vT1}, v{vL}, 2, 3
    v_lshl_add_u32 v{vAad}, v{vT1}, 3, v{vEnt}
    s_mov_b32 s{sRow}, {L_DUMMY + (((SY_DUM - SY_T) // 4) << 26)}
    s_mov_b32 s{sDis}, 0
    """)
    wait(SY_C2, 8)
    stamp(8)
    if dbg & 4: a(f"v_mov_b32 v{vT0}, 64\nds_write_b32 v{vSy}, v{vT0} offset:{SY_T}\nds_write_b32 v{vSy}, v{vT0} offset:{SY_T+4}\nds_write_b32 v{vSy}, v{vT0} offset:{SY_T+8}\ns_branch L_end")
    a(f"s_setprio {prioB}")
    if byoung: a(f"s_cmp_lt_u32 s{sJ}, 4\ns_cbranch_scc1 L_old\ns_setprio {prioB+1}\nL_old:")

    RING, ENT, GACC = 16, 112, 120
    vA0, vAraw, vAd = vT2, vT1, vT0
    def entread(slot):
        a(f"ds_read2_b32 {vr(ENT+(slot&7),2)}, v{vEnt} offset0:{2*slot} offset1:{2*slot+2}")
    def gload(t, pro=False):
        a(f"""
        v_mad_u32_u16 v{vAd}, v{ENT+(t&7)}, s{sC512}, v{vM16}
        {f's_waitcnt vmcnt({D-1})' if pro and D < R and t >= D else ''}
        buffer_load_dwordx4 {vr(RING+4*t,4)}, v{vAd}, {srd(sX)}, 0 offen{' nt' if gnt else ''}
        """)
    for g in range(R // 8):
        nx = a.label("Lpg")
        a(f"s_cmp_ge_u32 s{sPad}, {8*g+8}\ns_cbranch_scc1 {nx}")
        for i in range(0, 8, 2): entread(8 * g + i)
        a("s_waitcnt lgkmcnt(0)")
        for t in range(8 * g, 8 * g + 8):
            if t % 8 < 7:
                sk = a.label("Lps")
                a(f"s_cmp_gt_u32 s{sPad}, {t}\ns_cbranch_scc1 {sk}")
                gload(t, True)
                a(f"{sk}:")
            else:
                gload(t, True)
        a(f"{nx}:")
    a(f"ds_read_b32 v{vAraw}, v{vAad}")
    for i in range(0, 8, 2): entread(R + i)
    stubs = []
    def consume(t, tag, vm, steady):
        if t % 8 == 0:
            a(f"""
            s_waitcnt lgkmcnt({3 if steady else 0})
            v_perm_b32 v{vA0}, v{vAraw}, v{vAraw}, v{vSH0}
            v_perm_b32 v{vA0+1}, v{vAraw}, v{vAraw}, v{vSH1}
            ds_read_b32 v{vAraw}, v{vAad} offset:{8*(t+8)}
            s_waitcnt vmcnt({vm})
            """)
        elif steady and t % 2 == 0:
            a(f"s_waitcnt vmcnt({vm}) lgkmcnt(3)")
        else:
            a(f"s_waitcnt vmcnt({vm})")
        for h in range(2):
            d = vr(GACC + 4 * h, 4)
            if not dbg & 2: a(f"v_mfma_f32_4x4x4_16b_bf16 {d}, {vr(vA0,2)}, {vr(RING+4*t+2*h,2)}, {d} cbsz:3 abid:{t&7}")
        a(f"s_sub_u32 s{sRem}, s{sRem}, 1\ns_cbranch_scc1 Lf{tag}_{t}\nLb{tag}_{t}:")
        stubs.append((f"Lf{tag}_{t}", f"Lb{tag}_{t}"))
    a(f"s_cmp_eq_u32 s{sRnd}, 0\ns_cbranch_scc1 L_drain\nL_gl:")
    for t in range(R):
        consume(t, "s", D - 1, True)
        gload(t)
        if t % 2 == 1: entread(R + 8 + t - 1)
    a(f"""
    v_add_u32 v{vEnt}, {8*R}, v{vEnt}
    v_add_u32 v{vAad}, {8*R}, v{vAad}
    s_sub_u32 s{sRnd}, s{sRnd}, 1
    s_cmp_lg_u32 s{sRnd}, 0
    s_cbranch_scc1 L_gl
    L_drain:
    """)
    for t in range(R):
        consume(t, "d", R - 1 - t, False)
    a("L_gdone:")
    stamp(9)
    a("L_end:")
    if probe >= 0:
        a(f"""
        s_cmp_eq_u32 s{sW}, {pw}
        s_cbranch_scc0 L_noprobe
        s_sub_u32 s{s0}, s{ST0+2*probe}, s{ST0}
        s_min_u32 s{s0}, s{s0}, 20000
        s_mul_i32 s{s0}, s{s0}, {pk}
        s_memrealtime s[60:61]
        L_probe:
        s_memrealtime s[62:63]
        s_waitcnt lgkmcnt(0)
        s_sub_u32 s62, s62, s60
        s_cmp_lt_u32 s62, s{s0}
        s_cbranch_scc1 L_probe
        L_noprobe:
        """)
    if stamps:
        a(f"""
        s_mov_b64 exec, -1
        s_add_u32 s{sT1}, s{pWS}, {STAMP_OFF}
        s_addc_u32 s{sT1+1}, s{pWS+1}, 0
        s_mov_b32 s{sT1+2}, 0x1000000
        s_mov_b32 s{sT1+3}, 0x20000
        s_lshl_b32 s{s0}, s2, 4
        s_add_u32 s{s0}, s{s0}, s{sW}
        s_mul_i32 s{s0}, s{s0}, {NSTAMP*8}
        v_lshlrev_b32 v4, 2, v0
        v_mov_b32 v6, 0
        """)
        for i in range(2 * NSTAMP): a(f"v_writelane_b32 v6, s{ST0+i}, {i}")
        a(f"s_bfm_b64 exec, {2*NSTAMP}, 0\nbuffer_store_dword v6, v4, {srd(sT1)}, s{s0} offen")
    a("L_exit:\ns_endpgm")

    for f, b in stubs:
        a(f"{f}:\ns_call_b64 {pr(sRet)}, L_flush\ns_branch {b}")
    G = GACC
    a(f"""
    L_flush:
    s_add_u32 s{sK}, s{sK}, 1
    s_lshr_b32 s{sTc}, s{sRow}, 24
    s_and_b32 s{sRow}, s{sRow}, 0xffffff
    v_permlane32_swap_b32 v{G}, v{G+4}
    v_permlane32_swap_b32 v{G+1}, v{G+5}
    v_permlane32_swap_b32 v{G+2}, v{G+6}
    v_permlane32_swap_b32 v{G+3}, v{G+7}
    v_add_u32 v{vAd}, s{sRow}, v{vFo}
    v_pk_add_f32 {vr(G,2)}, {vr(G,2)}, {vr(G+4,2)}
    v_pk_add_f32 {vr(G+2,2)}, {vr(G+2,2)}, {vr(G+6,2)}
    v_readlane_b32 s{sRow}, v{vRow}, s{sK}
    v_mul_f32 v{G}, s{sDis}, v{G}
    v_mul_f32 v{G+1}, s{sDis}, v{G+1}
    v_mul_f32 v{G+2}, s{sDis}, v{G+2}
    v_mul_f32 v{G+3}, s{sDis}, v{G+3}
    v_add_u32 v{G+6}, s{sTc}, v{vSy}
    v_mov_b32 v{G+7}, 1
    v_cvt_pk_bf16_f32 v{G+4}, v{G}, v{G+1}
    v_cvt_pk_bf16_f32 v{G+5}, v{G+2}, v{G+3}
    ds_write_b64 v{vAd}, {vr(G+4,2)}
    s_mov_b64 exec, 1
    ds_add_u32 v{G+6}, v{G+7} offset:{SY_T}
    s_mov_b64 exec, -1
    v_readlane_b32 s{sRem}, v{vSl}, s{sK}
    v_readlane_b32 s{sDis}, v{vDis}, s{sK}
    v_mov_b64 {vr(G,2)}, 0
    v_mov_b64 {vr(G+2,2)}, 0
    v_mov_b64 {vr(G+4,2)}, 0
    v_mov_b64 {vr(G+6,2)}, 0
    s_setpc_b64 {pr(sRet)}
    """)

    a("L_slow:\ns_setprio 0")
    signal(SY_C2)
    wait(SY_C2, 8)
    mksrd(sT1, pSRC, 640000)
    mksrd(sT2, pDST, 640000)
    mksrd(sT3, pDIS, 20000)
    a(f"""
    s_sub_u32 s{sK}, s{sPad}, 1
    s_mov_b32 s{sRow}, {L_DUMMY + (((SY_DUM - SY_T) // 4) << 26)}
    s_mov_b32 s{sDis}, 0
    s_call_b64 {pr(sRet)}, L_flush
    s_add_u32 s{sRnd}, s{sJ}, s{sNB}
    s_add_u32 s{sPad}, s{sRnd}, 40
    v_lshlrev_b32 v16, 2, v{vL}
    v_and_b32 v17, 32, v{vL}
    v_lshl_add_u32 v17, v17, 22, v{vM16}
    v_mov_b32 v24, 0
    L_sn:
    s_mov_b32 s{s2_}, 0
    L_sc:
    buffer_load_dword v18, v16, {srd(sT2)}, s{s2_} offen
    buffer_load_dword v19, v16, {srd(sT1)}, s{s2_} offen
    s_waitcnt vmcnt(0)
    v_cmp_eq_u32 vcc, s{sRnd}, v18
    s_cbranch_vccz L_sx
    L_se:
    s_ff1_i32_b64 s{s0}, vcc
    s_bitset0_b64 vcc, s{s0}
    v_readlane_b32 s{s1}, v19, s{s0}
    s_nop 0
    s_lshl_b32 s{s3_}, s{s1}, 9
    s_lshl_b32 s{s1}, s{s1}, 1
    buffer_load_dwordx4 v[20:23], v17, {srd(sX)}, s{s3_} offen
    buffer_load_short_d16_hi v{vAraw}, v24, {srd(sT3)}, s{s1} offen
    s_waitcnt vmcnt(0)
    v_perm_b32 v{vA0}, v{vAraw}, v{vAraw}, v{vSH0}
    v_perm_b32 v{vA0+1}, v{vAraw}, v{vAraw}, v{vSH1}
    s_nop 1
    v_mfma_f32_4x4x4_16b_bf16 {vr(G,4)}, {vr(vA0,2)}, v[20:21], {vr(G,4)}
    v_mfma_f32_4x4x4_16b_bf16 {vr(G+4,4)}, {vr(vA0,2)}, v[22:23], {vr(G+4,4)}
    s_cmp_lg_u64 vcc, 0
    s_cbranch_scc1 L_se
    L_sx:
    s_add_u32 s{s2_}, s{s2_}, 256
    s_cmp_lt_u32 s{s2_}, 640000
    s_cbranch_scc1 L_sc
    s_call_b64 {pr(sRet)}, L_flush
    s_add_u32 s{sRnd}, s{sRnd}, 8
    s_cmp_lt_u32 s{sRnd}, s{sPad}
    s_cbranch_scc1 L_sn
    s_branch L_gdone
    """)
    hdr = open("standalone__hybrid_graph_tf_exphormer__graph.s.ref").read().split("; Override")[0]
    text = wrap(a.text(), NWG, 1024, LDS, 128, header=hdr)
    lines = (text_size(text.replace("CODE_LINES", "100")) - 256) // 128
    assert 64 < lines < 200
    return text.replace("CODE_LINES", str(lines))


if __name__ == "__main__":
    kw = dict(x.split("=") for x in sys.argv[2:])
    kw = {k: int(v) for k, v in kw.items()}
    open(sys.argv[1], "w").write(gen(**kw))
```

```python
import sys
from asmlib import Asm, wrap, NAME, text_size

NWG, NPW, EPW = 250, 40, 640
TILE, PITCH = 8448, 1056
L_E = 0
L_R1 = 10 * TILE
L_R2 = L_R1 + 2 * TILE + TILE // 2
L_R3 = L_R2 + 3 * TILE
L_LIST = L_R3 + 2 * TILE + TILE // 2
W_OFFS, W_ENT, W_FR, W_EP, WS_SIZE = 0, 0x40000, 0x100000, 0x180000, 0x200000
TMASK = 0xfffffc00
STAMP_OFF = 128 << 20


def gen(R=8, stamps=False, probe=-1, pw=8, pk=4, thr=63, prioA=0, prioB=0, psleep=2, dbg=0, D=0, sleep0=0, xa_at=0, e_at=2, epre=10, prioL=3, hyb=1, swap=1, touch=1, wsep=0, prioE=2, otouch=1, gmask=0xff, gnt=0, byoung=0, ost=0, outtouch=0, nostore=0):
    D = D or R
    CAP = {8: 80, 16: 80, 24: 72}[R]
    LIST_B = 8 * CAP * 8
    L_CNT = L_LIST + LIST_B
    L_BASE = L_CNT + 256
    L_SYNC = L_BASE + 256
    L_HIST = L_SYNC + 64
    L_SORT = L_HIST + 1024
    L_DUMMY = L_SORT + 2560
    LDS = L_DUMMY + 512
    assert LDS <= 163840, LDS
    n_null, n_init = LIST_B // 16, (L_SORT - L_LIST) // 16
    SY_X, SY_Y, SY_M, SY_C1, SY_C2, SY_A, SY_B, SY_OV, SY_GO, SY_T, SY_DUM, SY_V, SY_M2 = 0, 4, 8, 12, 16, 20, 24, 28, 32, 36, 48, 52, 56

    a = Asm()
    sX, sWS, sOUT, sT1, sT2, sT3 = 8, 16, 20, 24, 28, 12
    pX, pSRC, pDST, pESRC, pDIS, pWL, pWQ, pWK, pWV, pOUT, pDBG, pWS = 32, 34, 36, 38, 42, 44, 46, 48, 50, 52, 54, 56
    sW, sJ, sNB, sBeta, sC512 = 3, 4, 5, 6, 7
    s0, s1, s2_, s3_ = 58, 59, 60, 61
    sRem, sK, sRow, sDis, sRnd, sPad = 62, 63, 64, 65, 66, 67
    sRet, sSelLo, sSelHi = 68, 70, 71
    sFo, sTc = 100, 101
    sTag, sFlag = 40, 41
    ST0, NSTAMP = 72, 14

    def srd(s): return f"s[{s}:{s+3}]"
    def pr(s): return f"s[{s}:{s+1}]"
    def vr(b, n): return f"v[{b}:{b+n-1}]"
    def stamp(i):
        if stamps: a(f"s_memrealtime {pr(ST0+2*i)}\ns_waitcnt lgkmcnt(0)")
    def mksrd(s, p, size):
        a(f"s_mov_b32 s{s}, s{p}\ns_mov_b32 s{s+1}, s{p+1}\ns_mov_b32 s{s+2}, {size}\ns_mov_b32 s{s+3}, 0x20000")

    vL, vFrag, vM16, vSy, vT0, vT1, vT2, vT3 = 0, 1, 2, 3, 4, 5, 6, 7

    vTid16, vImg = 30, 31

    def signal(off):
        a(f"""
        s_mov_b64 exec, 1
        v_mov_b32 v{vT0}, 1
        ds_add_u32 v{vSy}, v{vT0} offset:{off}
        s_mov_b64 exec, -1
        """)
    def wait(off, n, sleep=0, cap=0x400000):
        lp, ok = a.label("Lw"), a.label("Lk")
        a(f"""
        s_mov_b32 s{s1}, 0
        {lp}:
        ds_read_b32 v{vT0}, v{vSy} offset:{off}
        s_waitcnt lgkmcnt(0)
        v_cmp_gt_u32 vcc, {n}, v{vT0}
        s_cbranch_vccz {ok}
        """)
        if sleep: a(f"s_sleep {sleep}")
        a(f"""
        s_add_u32 s{s1}, s{s1}, 1
        s_cmp_lt_u32 s{s1}, {cap}
        s_cbranch_scc1 {lp}
        s_branch L_end
        {ok}:
        """)

    a(f"s_cmp_ge_u32 s2, {NWG}\ns_cbranch_scc1 L_exit")
    if stamps:
        for i in range(NSTAMP): a(f"s_mov_b64 {pr(ST0+2*i)}, 0")
        a(f"s_memrealtime {pr(ST0)}")
    a(f"""
    s_load_dwordx16 s[32:47], s[0:1], 0
    s_load_dwordx8 s[48:55], s[0:1], 64
    s_load_dwordx2 s[56:57], s[0:1], 96
    s_getpc_b64 s[60:61]
    s_lshr_b32 s58, s2, 3
    v_lshl_add_u32 v1, v0, 5, s58
    v_cmp_gt_u32 vcc, CODE_LINES, v1
    v_lshlrev_b32 v1, 7, v1
    s_and_saveexec_b64 s[58:59], vcc
    s_cbranch_execz L_nopf
    global_load_dword v127, v1, s[60:61]
    L_nopf:
    s_mov_b64 exec, -1
    v_lshrrev_b32 v1, 6, v0
    v_mov_b32 v8, 0xffff
    v_readfirstlane_b32 s{sW}, v1
    v_cmp_gt_u32 vcc, {n_null}, v0
    v_lshlrev_b32 v{vTid16}, 4, v0
    v_add_u32 v4, {L_LIST}, v{vTid16}
    v_cndmask_b32 v8, 0, v8, vcc
    v_mov_b32 v9, v8
    v_mov_b32 v10, v8
    v_mov_b32 v11, v8
    v_cmp_gt_u32 vcc, {n_init}, v0
    s_and_saveexec_b64 s[58:59], vcc
    ds_write_b128 v4, v[8:11]
    s_mov_b64 exec, -1
    v_and_b32 v{vL}, 63, v0
    s_and_b32 s{s0}, s2, 7
    s_lshr_b32 s{s1}, s2, 3
    s_mul_i32 s{sBeta}, s{s0}, 31
    s_min_u32 s{s0}, s{s0}, 2
    s_add_u32 s{sBeta}, s{sBeta}, s{s0}
    s_add_u32 s{sBeta}, s{sBeta}, s{s1}
    s_mul_i32 s{sNB}, s{sBeta}, {NPW}
    s_and_b32 s{sJ}, s{sW}, 7
    {f's_xor_b32 s{sW}, s{sW}, 8' if swap else ''}
    s_movk_i32 s{sC512}, 512
    v_and_b32 v{vM16}, 31, v{vL}
    v_lshlrev_b32 v{vM16}, 4, v{vM16}
    v_mov_b32 v{vSy}, {L_SYNC}
    s_mov_b32 s{sSelLo}, 0x05040100
    s_mov_b32 s{sSelHi}, 0x07060302
    s_mov_b32 s{sX+2}, {10000*512}
    s_mov_b32 s{sX+3}, 0x20000
    s_mov_b32 s{sWS+2}, {WS_SIZE}
    s_mov_b32 s{sWS+3}, 0x20000
    s_mov_b32 s{sT1+3}, 0x20000
    s_mov_b32 s{sT2+3}, 0x20000
    s_mov_b32 s{sT3+3}, 0x20000
    s_cmp_eq_u32 s{sW}, 8
    s_waitcnt lgkmcnt(0)
    s_mov_b64 {pr(sX)}, {pr(pX)}
    s_mov_b64 {pr(sWS)}, {pr(pWS)}
    s_cbranch_scc0 L_notprod
    """)
    def base(s, p, size): a(f"s_mov_b64 {pr(s)}, {pr(p)}\ns_mov_b32 s{s+2}, {size}")
    def fragaddr():
        a(f"""
        v_and_b32 v{vT0}, 7, v{vL}
        v_mul_u32_u24 v{vFrag}, {PITCH}, v{vT0}
        v_and_b32 v{vT0}, 8, v{vL}
        v_lshl_add_u32 v{vFrag}, v{vT0}, 6, v{vFrag}
        v_and_b32 v{vT0}, 48, v{vL}
        v_add_u32 v{vFrag}, v{vT0}, v{vFrag}
        """)

    SRCV, DSTV, AV, PV = 16, 26, 36, 46
    a("s_setprio 3")
    base(sT1, pSRC, 640000)
    base(sT2, pDST, 640000)
    a(f"""
    v_lshlrev_b32 v{vT1}, 4, v{vL}
    v_lshlrev_b32 v{vT2}, 3, v{vL}
    s_mul_i32 s{s0}, s2, {EPW*4}
    buffer_load_dwordx4 {vr(DSTV,4)}, v{vT1}, {srd(sT2)}, s{s0} offen
    buffer_load_dwordx4 {vr(DSTV+4,4)}, v{vT1}, {srd(sT2)}, s{s0} offen offset:1024
    buffer_load_dwordx2 {vr(DSTV+8,2)}, v{vT2}, {srd(sT2)}, s{s0} offen offset:2048
    buffer_load_dwordx4 {vr(SRCV,4)}, v{vT1}, {srd(sT1)}, s{s0} offen
    buffer_load_dwordx4 {vr(SRCV+4,4)}, v{vT1}, {srd(sT1)}, s{s0} offen offset:1024
    buffer_load_dwordx2 {vr(SRCV+8,2)}, v{vT2}, {srd(sT1)}, s{s0} offen offset:2048
    s_mov_b32 s{s1}, {W_EP}
    s_load_dword s{sTag}, {pr(pWS)}, s{s1}
    s_barrier
    v_mov_b32 v8, 1
    v_mov_b32 v9, 4
    v_mov_b32 v10, {L_HIST}
    v_add_u32 v11, {L_HIST}, v{vT1}
    v_mov_b32 v59, {L_SORT}
    v_add_u32 v74, {L_SORT}, v{vT1}
    v_add_u32 v75, {L_SORT}, v{vT2}
    s_lshl_b32 s{s3_}, s2, 10
    s_add_u32 s{s0}, s{s0}, {W_ENT}
    s_waitcnt vmcnt(5)
    """)
    stamp(1)
    for j in range(10):
        if j == 4: a("s_waitcnt vmcnt(4)")
        if j == 8: a("s_waitcnt vmcnt(3)")
        a(f"""
        v_mul_u32_u24 v{AV+j}, 52429, v{DSTV+j}
        v_lshrrev_b32 v{AV+j}, 21, v{AV+j}
        v_lshl_add_u32 v{AV+j}, v{AV+j}, 2, v10
        ds_add_u32 v{AV+j}, v8
        """)
    a("ds_read_b128 v[12:15], v11\ns_waitcnt vmcnt(0)")
    for j in range(10):
        a(f"v_lshl_or_b32 v{SRCV+j}, v{DSTV+j}, 16, v{SRCV+j}")
    a(f"""
    s_waitcnt lgkmcnt(0)
    v_add_u32 v56, v12, v13
    v_add3_u32 v57, v56, v14, v15
    s_nop 1
    v_add_u32_dpp v58, v57, v57 row_shr:1 row_mask:0xf bank_mask:0xf bound_ctrl:1
    s_nop 1
    v_add_u32_dpp v58, v58, v58 row_shr:2 row_mask:0xf bank_mask:0xf bound_ctrl:1
    s_nop 1
    v_add_u32_dpp v58, v58, v58 row_shr:4 row_mask:0xf bank_mask:0xf bound_ctrl:1
    s_nop 1
    v_add_u32_dpp v58, v58, v58 row_shr:8 row_mask:0xf bank_mask:0xf bound_ctrl:1
    s_nop 1
    v_add_u32_dpp v58, v58, v58 row_bcast:15 row_mask:0xa bank_mask:0xf
    s_nop 1
    v_add_u32_dpp v58, v58, v58 row_bcast:31 row_mask:0xc bank_mask:0xf
    v_sub_u32 v60, v58, v57
    v_add_u32 v61, v60, v12
    v_add_u32 v62, v60, v56
    v_add_u32 v63, v62, v14
    v_lshl_add_u32 v64, v60, 2, v59
    v_lshl_add_u32 v65, v61, 2, v59
    v_lshl_add_u32 v66, v62, 2, v59
    v_lshl_add_u32 v67, v63, 2, v59
    ds_write_b128 v11, v[64:67]
    """)
    for j in range(10):
        a(f"ds_add_rtn_u32 v{PV+j}, v{AV+j}, v9")
    a(f"""
    s_add_u32 s{sTag}, s{sTag}, 0x400
    s_and_b32 s{sTag}, s{sTag}, {TMASK}
    v_or_b32 v60, s{sTag}, v60
    v_or_b32 v61, s{sTag}, v61
    v_or_b32 v62, s{sTag}, v62
    v_or_b32 v63, s{sTag}, v63
    s_or_b32 s{s2_}, s{sTag}, 1
    v_mov_b32 v12, s{s2_}
    """)
    for j in range(0, 10, 2):
        a(f"s_waitcnt lgkmcnt(8)\nds_write_b32 v{PV+j}, v{SRCV+j}\nds_write_b32 v{PV+j+1}, v{SRCV+j+1}")
    a(f"""
    ds_read_b128 v[64:67], v74
    ds_read_b128 v[68:71], v74 offset:1024
    ds_read_b64 v[72:73], v75 offset:2048
    s_waitcnt lgkmcnt(2)
    buffer_store_dwordx4 v[64:67], v{vT1}, {srd(sWS)}, s{s0} offen sc1
    s_waitcnt lgkmcnt(1)
    buffer_store_dwordx4 v[68:71], v{vT1}, {srd(sWS)}, s{s0} offen offset:1024 sc1
    s_waitcnt lgkmcnt(0)
    buffer_store_dwordx2 v[72:73], v{vT2}, {srd(sWS)}, s{s0} offen offset:2048 sc1
    """)
    stamp(2)
    wait(SY_M2, 2)
    a(f"""
    s_waitcnt vmcnt(0)
    buffer_store_dwordx4 v[60:63], v{vT1}, {srd(sWS)}, s{s3_} offen sc1
    ds_write_b32 v{vSy}, v12 offset:{SY_GO}
    """)
    stamp(3)
    a("s_branch L_preB")

    a(f"""
    L_notprod:
    s_cmp_lt_u32 s{sW}, 8
    s_cbranch_scc1 L_preA
    s_setprio 3
    s_cmp_eq_u32 s{sW}, 9
    s_cbranch_scc1 L_touch
    s_cmp_ge_u32 s{sW}, 13
    s_cbranch_scc1 L_notm
    s_cmp_ge_u32 s2, 128
    s_cbranch_scc1 L_b1
    s_and_b32 s{s0}, s2, 7
    s_lshr_b32 s{s1}, s2, 4
    s_sub_u32 s{s2_}, s{sW}, 10
    s_bfe_u32 s{s3_}, s2, 0x10003
    s_cmp_eq_u32 s{sW}, 12
    s_cselect_b32 s{s0}, s{s1}, s{s0}
    s_cselect_b32 s{s3_}, s{s3_}, s{s2_}
    s_cselect_b64 {pr(sT1)}, {pr(pWK)}, {pr(pWQ)}
    s_mov_b32 s{sT1+2}, 131072
    s_lshl_b32 s{s0}, s{s0}, 14
    s_lshl_b32 s{s3_}, s{s3_}, 11
    s_add_u32 s{s0}, s{s0}, s{s3_}
    s_mul_i32 s{s2_}, s{s2_}, {TILE}
    v_and_b32 v{vT0}, 32, v{vL}
    v_lshl_add_u32 v{vT0}, v{vT0}, 8, v{vM16}
    """)
    for u in range(8):
        k = u & 3
        a(f"s_add_u32 m0, s{s2_}, {L_R2 + u*PITCH - k*512}")
        a(f"s_add_u32 s{s0}, s{s0}, 4096" if u == 4 else "s_nop 0")
        a(f"buffer_load_dwordx4 v{vT0}, {srd(sT1)}, s{s0} offen offset:{k*512} lds")
    a(f"""
    s_branch L_b1
    L_notm:
    s_cmp_eq_u32 s{sW}, 13
    s_cbranch_scc0 L_b1
    s_cmp_lt_u32 s2, {NWG - (64 if hyb else 128)}
    s_cbranch_scc1 L_b1
    s_sub_u32 s{s0}, s2, {NWG-128}
    s_cmp_lt_u32 s{s0}, 64
    s_cselect_b64 {pr(sT1)}, {pr(pWV)}, {pr(pWL)}
    s_mov_b32 s{sT1+2}, 131072
    s_and_b32 s{s1}, s{s0}, 7
    s_lshl_b32 s{s1}, s{s1}, 14
    s_bfe_u32 s{s2_}, s{s0}, 0x30003
    s_lshl_b32 s{s2_}, s{s2_}, 6
    s_add_u32 s{s1}, s{s1}, s{s2_}
    v_and_b32 v{vT0}, 15, v{vL}
    v_lshlrev_b32 v{vT0}, 2, v{vT0}
    v_and_b32 v{vT1}, 48, v{vL}
    v_lshl_add_u32 v{vT0}, v{vT1}, 8, v{vT0}
    """)
    for j in range(8):
        a(f"buffer_load_dword v{16+j}, v{vT0}, {srd(sT1)}, s{s1} offen offset:{j*512}")
    a("s_branch L_b1\nL_touch:")
    if touch:
        base(sT1, pWV, 131072)
        base(sT2, pDIS, 20000)
        a(f"""
        s_lshr_b32 s{s0}, s2, 3
        s_mul_i32 s{s1}, s{s0}, 640
        s_mul_i32 s{s0}, s{s0}, {34*128}
        v_lshlrev_b32 v{vT0}, 7, v{vL}
        s_mov_b64 exec, 63
        buffer_load_dword v16, v{vT0}, {srd(sT2)}, s{s1} offen
        """)
        if otouch: a(f"s_lshl_b32 s{s1}, s2, 10\ns_mov_b64 exec, 255\nbuffer_load_dword v18, v{vT0}, {srd(sWS)}, s{s1} offen")
        if hyb: a(f"s_bfm_b64 exec, 34, 0\nbuffer_load_dword v17, v{vT0}, {srd(sT1)}, s{s0} offen")
        a("s_mov_b64 exec, -1\ns_barrier\ns_waitcnt vmcnt(0)")
        signal(SY_Y)
        a("s_branch L_preB")
    a("L_b1:\ns_barrier")
    base(sT2, pDIS, 20000)
    a(f"""
    s_cmp_eq_u32 s{sW}, 9
    s_cbranch_scc1 L_preB
    s_cmp_eq_u32 s{sW}, 10
    s_cbranch_scc1 L_disd
    s_cmp_eq_u32 s{sW}, 13
    s_cbranch_scc1 L_wtask
    s_cmp_lt_u32 s{sW}, 13
    s_cbranch_scc1 L_min
    """)
    if touch: wait(SY_Y, 1, sleep=1)
    a(f"""
    s_sub_u32 s{s0}, s{sW}, 14
    s_mul_i32 s{s0}, s{s0}, 10240
    v_lshlrev_b32 v{vT0}, 4, v{vL}
    """)
    for i in range(10):
        if i % 4 == 0: a(f"s_add_u32 m0, s{s0}, {L_R3 + i*1024}\ns_add_u32 s{s1}, s{s0}, {i*1024}")
        a(f"buffer_load_dwordx4 v{vT0}, {srd(sT2)}, s{s1} offen offset:{(i%4)*1024} lds")
    a("s_branch L_preB\nL_min:\ns_waitcnt vmcnt(0)")
    signal(SY_M)
    a(f"""
    s_branch L_preB
    L_disd:
    s_cmp_ge_u32 s2, 128
    s_cbranch_scc1 L_taskd
    s_setprio 3
    """)
    fragaddr()
    a(f"""
    v_add_u32 v{vT1}, {L_R2}, v{vFrag}
    s_lshr_b32 s{s0}, s2, 4
    s_lshl_b32 s{s0}, s{s0}, 3
    s_and_b32 s{s1}, s2, 7
    s_add_u32 s{s0}, s{s0}, s{s1}
    s_lshl_b32 s{s0}, s{s0}, 1
    s_bfe_u32 s{s1}, s2, 0x10003
    s_add_u32 s{s0}, s{s0}, s{s1}
    s_lshl_b32 s{s0}, s{s0}, 10
    s_add_u32 s{s0}, s{s0}, {W_FR}
    v_lshlrev_b32 v{vT2}, 4, v{vL}
    s_waitcnt vmcnt(0)
    """)
    wait(SY_M, 2)
    stamp(1)
    MB = 32
    for ks in range(4):
        for t in range(3):
            a(f"ds_read_b128 {vr(MB+12*ks+4*t,4)}, v{vT1} offset:{t*TILE + ks*64}")
    for ks in range(8):
        a(f"s_waitcnt lgkmcnt({min(9, 3*(7-ks))})")
        if ks < 4:
            for t in range(3):
                a(f"ds_read_b128 {vr(MB+12*(ks+4)+4*t,4)}, v{vT1} offset:{t*TILE + (ks+4)*64}")
        for t in range(2):
            c = "0" if ks == 0 else vr(8 + 4 * t, 4)
            a(f"v_mfma_f32_16x16x32_bf16 {vr(8+4*t,4)}, {vr(MB+12*ks+4*t,4)}, {vr(MB+12*ks+8,4)}, {c}")
    a(f"""
    s_nop 6
    v_cvt_pk_bf16_f32 v16, v8, v9
    v_cvt_pk_bf16_f32 v17, v10, v11
    v_cvt_pk_bf16_f32 v18, v12, v13
    v_cvt_pk_bf16_f32 v19, v14, v15
    buffer_store_dwordx4 v[16:19], v{vT2}, {srd(sWS)}, s{s0} offen sc1
    """)
    stamp(3)
    a(f"""
    s_branch L_taskw
    L_wtask:
    s_cmp_lt_u32 s2, {NWG - (64 if hyb else 128)}
    s_cbranch_scc1 L_taskd
    s_sub_u32 s{s0}, s2, {NWG-128}
    s_lshl_b32 s{s0}, s{s0}, 11
    s_add_u32 s{s0}, s{s0}, {W_FR + 131072}
    v_lshlrev_b32 v{vT2}, 4, v{vL}
    s_waitcnt vmcnt(0)
    """)
    for q in range(4):
        a(f"v_perm_b32 v{60+q}, v{17+2*q}, v{16+2*q}, s{sSelLo}")
        a(f"v_perm_b32 v{64+q}, v{17+2*q}, v{16+2*q}, s{sSelHi}")
    a(f"""
    buffer_store_dwordx4 v[60:63], v{vT2}, {srd(sWS)}, s{s0} offen sc1
    buffer_store_dwordx4 v[64:67], v{vT2}, {srd(sWS)}, s{s0} offen offset:1024 sc1
    """)

    a("L_taskw:\ns_waitcnt vmcnt(0)\nL_taskd:")
    signal(SY_M2)
    stamp(2)
    a("s_branch L_preB")

    FR, XB, ACC = 16, 80, 104
    vSL0, vSL1, vSH0, vSH1 = 8, 9, 10, 11
    def selregs(lo):
        a(f"""
        v_and_b32 v{vT0}, 3, v{vL}
        v_mov_b32 v{vT1}, 0x0c0c0c0c
        v_mov_b32 v{vT2}, 0x0c0c0302
        v_mov_b32 v{vT3}, 0x03020c0c
        v_cmp_eq_u32 s[58:59], 0, v{vT0}
        v_cmp_eq_u32 s[60:61], 2, v{vT0}
        v_cmp_eq_u32 vcc, 1, v{vT0}
        v_cndmask_b32 v{vSH0}, v{vT1}, v{vT2}, s[58:59]
        v_cndmask_b32 v{vSH1}, v{vT1}, v{vT2}, s[60:61]
        v_cndmask_b32 v{vSH0}, v{vSH0}, v{vT3}, vcc
        v_cmp_eq_u32 vcc, 3, v{vT0}
        s_nop 1
        v_cndmask_b32 v{vSH1}, v{vSH1}, v{vT3}, vcc
        """)
        if lo:
            a(f"v_and_b32 v{vSL0}, 0xfdfdfdfd, v{vSH0}\nv_and_b32 v{vSL1}, 0xfdfdfdfd, v{vSH1}")
    vXa, vQw, vMo = 12, 13, 14
    IDX = 104
    a(f"L_preA:\n{'' if xa_at < 0 else 's_barrier'}\ns_setprio {prioE}")
    base(sT3, pESRC, 160000)
    def xaload():
        a(f"""
        v_and_b32 v{vT2}, 32, v{vL}
        s_mul_i32 s{s0}, s{sBeta}, 640
        s_lshl_b32 s{s1}, s{sW}, 6
        s_add_u32 s{s1}, s{s0}, s{s1}
        s_lshr_b32 s{s2_}, s{sW}, 2
        s_lshl_b32 s{s2_}, s{s2_}, 6
        s_and_b32 s{s3_}, s{sW}, 3
        s_lshl_b32 s{s3_}, s{s3_}, 3
        s_add_u32 s{s0}, s{s0}, s{s2_}
        s_add_u32 s{s0}, s{s0}, s{s3_}
        buffer_load_dwordx4 {vr(IDX,4)}, v{vT2}, {srd(sT3)}, s{s1} offen
        buffer_load_dwordx4 {vr(IDX+4,4)}, v{vT2}, {srd(sT3)}, s{s1} offen offset:16
        buffer_load_dwordx2 {vr(IDX+8,2)}, v{vT2}, {srd(sT3)}, s{s0} offen offset:512
        v_lshl_add_u32 v{vT1}, v{vT2}, 7, v{vM16}
        v_lshl_add_u32 v{vT2}, v{vT2}, 6, v{vM16}
        s_add_u32 s{s0}, s{sW}, s{sNB}
        s_mul_i32 s{s1}, s{sW}, {PITCH}
        s_add_u32 m0, s{s1}, {L_R1}
        s_lshl_b32 s{s0}, s{s0}, 9
        buffer_load_dwordx4 v{vT1}, {srd(sX)}, s{s0} offen lds
        s_add_u32 m0, s{s1}, {L_R1 + 8*PITCH}
        s_add_u32 s{s0}, s{s0}, 8192
        buffer_load_dwordx4 v{vT1}, {srd(sX)}, s{s0} offen lds
        s_cmp_ge_u32 s{sW}, 4
        s_cbranch_scc1 L_xa2
        s_add_u32 m0, s{s1}, {L_R1 + 16*PITCH}
        s_add_u32 s{s0}, s{s0}, 8192
        buffer_load_dwordx4 v{vT2}, {srd(sX)}, s{s0} offen lds
        L_xa2:
        """)
    if xa_at <= 0: xaload()
    if xa_at < 0: a('s_barrier')
    if hyb:
        base(sT1, pWV, 131072)
        a(f"""
        v_and_b32 v{vT0}, 15, v{vL}
        v_lshlrev_b32 v{vT0}, 2, v{vT0}
        v_and_b32 v{vT3}, 48, v{vL}
        v_lshl_add_u32 v{vT3}, v{vT3}, 8, v{vT0}
        s_lshl_b32 s{sFo}, s{sW}, 6
        {'s_waitcnt vmcnt(0)' if wsep else ''}
        """)
        AH = 6
        if touch: wait(SY_Y, 1, sleep=1)
        def wissue(n):
            if n: a(f"s_add_u32 s{sFo}, s{sFo}, 16384")
            for j in range(8):
                a(f"buffer_load_dword v{FR+8*(n+1)+j}, v{vT3}, {srd(sT1)}, s{sFo} offen offset:{j*512}")
        for n in range(AH): wissue(n)
        for n in range(8):
            a(f"s_waitcnt vmcnt({8*min(AH-1, 7-n)})")
            if n + AH < 8: wissue(n + AH)
            r, o = FR + 8 * (n + 1), FR + 8 * n
            for q in range(4):
                a(f"v_perm_b32 v{o+q}, v{r+2*q+1}, v{r+2*q}, s{sSelLo}")
                a(f"v_perm_b32 v{o+4+q}, v{r+2*q+1}, v{r+2*q}, s{sSelHi}")
    stamp(1)
    if xa_at == 1: xaload()
    if xa_at == 2:
        wait(SY_GO, 1, sleep=1)
        xaload()
    fragaddr()
    mksrd(sOUT, pOUT, 10000 * 512)
    if outtouch:
        a(f"""
        s_lshl_b32 s{s0}, s{sNB}, 9
        v_mul_u32_u24 v{vT0}, {39*512}, v{vL}
        s_mov_b64 exec, 3
        buffer_load_dword v{vT1}, v{vT0}, {srd(sOUT)}, s{s0} offen
        s_mov_b64 exec, -1
        """)
    a(f"""
    v_lshlrev_b32 v{vMo}, 4, v{vL}
    s_lshl_b32 s{sFo}, s{sW}, 14
    s_add_u32 s{sFo}, s{sFo}, {W_FR}
    v_add_u32 v{vXa}, {L_R1}, v{vFrag}
    s_lshl_b32 s{s3_}, s{sW}, 6
    s_add_u32 s{s3_}, s{s3_}, {L_R2}
    v_add_u32 v{vQw}, s{s3_}, v{vFrag}
    s_mul_i32 s{s2_}, s{sW}, {2*PITCH}
    s_mul_i32 s{s3_}, s{sW}, {TILE}
    s_waitcnt vmcnt(0)
    """)
    signal(SY_X)
    stamp(2)
    for u in range(10): a(f"v_lshl_add_u32 v{IDX+u}, v{IDX+u}, 9, v{vM16}")
    def eload(u):
        if dbg & 8: return
        a(f"s_add_u32 m0, s{s3_}, {L_E + u*PITCH}" if u < 8 else f"s_add_u32 m0, s{s2_}, {L_E + 8*TILE + (u-8)*PITCH}")
        a(f"s_waitcnt vmcnt({min(thr, 63)})\nbuffer_load_dwordx4 v{IDX+u}, {srd(sX)}, 0 offen lds")
    if epre:
        if e_at == 1: wait(SY_GO, 1, sleep=1)
        if e_at == 2: wait(SY_V, 8, sleep=1)
        stamp(3)
        for u in range(epre): eload(u)
    stamp(4)
    wait(SY_V, 8, sleep=1)
    nf = [0]
    def fload(i, reg=None):
        if i % 4 == 0 and nf[0]: a(f"s_add_u32 s{sFo}, s{sFo}, {((i//16)*131072 + (i%16)*1024) - nf[1]}")
        if i % 4 == 0: nf[:] = [1, (i // 16) * 131072 + (i % 16) * 1024]
        reg = FR + 4 * (i % 16) if reg is None else reg
        a(f"buffer_load_dwordx4 {vr(reg,4)}, v{vMo}, {srd(sWS)}, s{sFo} offen offset:{(i%4)*1024} sc1")
    def xread(s):
        for rt in range(3):
            a(f"ds_read_b128 {vr(XB+12*(s&1)+4*rt,4)}, v{vXa} offset:{rt*TILE+s*64}")
    def gemm(vm, w_is_a):
        for s in range(8):
            if s < 7: xread(s + 1)
            a(f"s_waitcnt vmcnt({vm[s]}) lgkmcnt({3 if s < 7 else 0})")
            for rt in range(3):
                for t in range(2):
                    d, f, x = vr(ACC + 8 * rt + 4 * t, 4), vr(FR + 8 * s + 4 * t, 4), vr(XB + 12 * (s & 1) + 4 * rt, 4)
                    a(f"v_mfma_f32_16x16x32_bf16 {d}, {f if w_is_a else x}, {x if w_is_a else f}, {'0' if s == 0 else d}")
    def burst(mat):
        a(f"s_setprio {prioL}")
        for i in range(16): fload(16 * mat + i)
        a(f"s_setprio {prioA}")
    stamp(5)
    if dbg & 1: a("s_branch L_end")
    ne = 0 if dbg & 8 else 10 - epre
    a(f"s_setprio {prioL}")
    if not hyb:
        seq = []
        for s in range(8):
            seq += [("e", epre + k) for k in range(s * ne // 8, (s + 1) * ne // 8)] + [("f", 2 * s), ("f", 2 * s + 1)]
        for kind, i in seq: (eload if kind == "e" else fload)(i)
        a(f"s_setprio {prioA}")
        wait(SY_X, 8)
        xread(0)
        gemm([len(seq) - 1 - seq.index(("f", 2 * s + 1)) for s in range(8)], True)
        a("s_nop 3")
    else:
        MR, XQ = 80, [96, 100, 4, 8]
        for u in range(epre, epre + ne): eload(u)
        for i in range(4): fload(i, MR + 4 * i)
        wait(SY_X, 8)
        def xq(n): a(f"ds_read_b128 {vr(XQ[n%4],4)}, v{vXa} offset:{(n%3)*TILE+(n//3)*64}")
        for n in range(3): xq(n)
        for n in range(24):
            s, rt = n // 3, n % 3
            if n + 3 < 24: xq(n + 3)
            vm = f"vmcnt({2 if s < 7 else 0}) " if rt == 0 else ""
            a(f"s_waitcnt {vm}lgkmcnt({min(3, 23-n)})")
            for t in range(2):
                d = vr(ACC + 8 * rt + 4 * t, 4)
                a(f"v_mfma_f32_16x16x32_bf16 {d}, {vr(MR+8*(s&1)+4*t,4)}, {vr(XQ[n%4],4)}, {'0' if s == 0 else d}")
            if rt == 2 and s < 6:
                for t in range(2): fload(2 * s + 4 + t, MR + 8 * (s & 1) + 4 * t)
        a(f"s_setprio {prioA}\ns_nop 1")
    for rt in range(3):
        d0, d1, o = ACC + 8 * rt, ACC + 8 * rt + 4, XB + 4 * rt
        a(f"""
        v_cvt_pk_bf16_f32 v{o}, v{d0}, v{d0+1}
        v_cvt_pk_bf16_f32 v{o+1}, v{d0+2}, v{d0+3}
        v_cvt_pk_bf16_f32 v{o+2}, v{d1}, v{d1+1}
        v_cvt_pk_bf16_f32 v{o+3}, v{d1+2}, v{d1+3}
        ds_write_b128 v{vQw}, {vr(o,4)} offset:{rt*TILE}
        """)
    signal(SY_A)
    stamp(6)
    if not hyb: burst(1)
    selregs(True)

    vEa, vQa, vEr, vAw = 12, 13, 14, 2
    sG = sK
    P, RB, AJ = 80, 80, 112
    DK = [120, 124, 4, 12]
    a(f"s_mov_b32 s{sG}, s{sW}")
    def gsetup():
        a(f"""
        s_mul_i32 s{s0}, s{sG}, {TILE}
        s_lshr_b32 s{s1}, s{sG}, 2
        s_mul_i32 s{s1}, s{s1}, {TILE}
        s_and_b32 s{s2_}, s{sG}, 1
        s_bfe_u32 s{s3_}, s{sG}, 0x10001
        s_cmp_ge_u32 s{sG}, 8
        s_cselect_b32 s{s3_}, s{s2_}, s{s3_}
        s_cselect_b32 s{s2_}, 0, s{s2_}
        s_mul_i32 s{s2_}, s{s2_}, {TILE//2}
        s_lshl_b32 s{s3_}, s{s3_}, 9
        s_add_u32 s{s1}, s{s1}, s{s2_}
        s_add_u32 s{s1}, s{s1}, s{s3_}
        s_add_u32 s{s1}, s{s1}, {L_R2}
        v_add_u32 v{vEa}, s{s0}, v{vFrag}
        v_bfe_u32 v{vT0}, v{vL}, 2, 2
        v_mul_u32_u24 v{vT0}, {PITCH}, v{vT0}
        v_and_b32 v{vT1}, 48, v{vL}
        v_add3_u32 v{vQa}, v{vT0}, v{vT1}, s{s1}
        v_lshl_add_u32 v{vEr}, v{vL}, 3, s{s0}
        v_lshl_add_u32 v{vAw}, v{vL}, 3, s{s1}
        """)
    a("L_grp:")
    gsetup()
    a(f"s_cmp_ge_u32 s{sG}, 8\ns_cbranch_scc1 L_grp2")
    wait(SY_A, 8)
    a("L_grp2:\ns_waitcnt lgkmcnt(0)")
    def pread(s):
        a(f"ds_read_b128 {vr(P+8*(s%6),4)}, v{vEa} offset:{s*64}")
        a(f"ds_read_b128 {vr(P+8*(s%6)+4,4)}, v{vQa} offset:{s*64}")
    for s in range(6): pread(s)
    for s in range(8):
        a(f"s_waitcnt lgkmcnt({10 if s < 3 else 14-2*s})")
        a(f"v_mfma_f32_16x16x32_bf16 v[4:7], {vr(P+8*(s%6),4)}, {vr(P+8*(s%6)+4,4)}, {'0' if s == 0 else 'v[4:7]'}")
        if s < 2: pread(s + 6)
    order = [(j, k) for j in (2, 3, 0, 1) for k in range(4)]
    for n, (j, k) in enumerate(order):
        i = 4 * k + j
        if n == 15: a("s_waitcnt lgkmcnt(14)")
        a(f"ds_read_b64 {vr(RB+8*j+2*k,2)}, v{vEr} offset:{(i&7)*PITCH+(i>>3)*512}")
    a(f"""
    v_mul_f32 v4, 0x3db8aa3b, v4
    v_mul_f32 v5, 0x3db8aa3b, v5
    v_mul_f32 v6, 0x3db8aa3b, v6
    v_mul_f32 v7, 0x3db8aa3b, v7
    v_exp_f32 v4, v4
    v_exp_f32 v5, v5
    v_exp_f32 v6, v6
    v_exp_f32 v7, v7
    v_add_f32 v12, v4, v5
    v_add_f32 v13, v6, v7
    v_add_f32 v12, v12, v13
    v_add_f32 v12, 0x3089705f, v12
    v_rcp_f32 v12, v12
    s_add_u32 s{sG}, s{sG}, 8
    v_mul_f32 v4, v4, v12
    v_mul_f32 v5, v5, v12
    v_mul_f32 v6, v6, v12
    v_mul_f32 v7, v7, v12
    v_cvt_pk_bf16_f32 v4, v4, v5
    v_cvt_pk_bf16_f32 v6, v6, v7
    """)
    for j in range(4):
        src = 4 + (j & 2)
        a(f"v_perm_b32 v{AJ+2*j}, v{src}, v{src}, v{vSH0 if j & 1 else vSL0}")
        a(f"v_perm_b32 v{AJ+2*j+1}, v{src}, v{src}, v{vSH1 if j & 1 else vSL1}")
    a("s_waitcnt lgkmcnt(0)")
    for j in range(4):
        for k in range(4):
            d = vr(DK[k], 4)
            a(f"v_mfma_f32_4x4x4_16b_bf16 {d}, {vr(AJ+2*j,2)}, {vr(RB+8*j+2*k,2)}, {'0' if j == 0 else d} cbsz:4 abid:{5*k}")
    a("s_nop 1")
    for k in range(4):
        d = DK[k]
        a(f"""
        v_cvt_pk_bf16_f32 v{AJ+2*k}, v{d}, v{d+1}
        v_cvt_pk_bf16_f32 v{AJ+2*k+1}, v{d+2}, v{d+3}
        ds_write_b64 v{vAw}, {vr(AJ+2*k,2)} offset:{k*PITCH}
        """)
    a(f"s_cmp_lt_u32 s{sG}, 10\ns_cbranch_scc1 L_grp")
    signal(SY_B)
    stamp(7)
    vOo, vOo2 = 8, 9
    a(f"""
    v_add_u32 v{vXa}, {L_R2}, v{vFrag}
    v_lshlrev_b32 v{vMo}, 4, v{vL}
    v_and_b32 v{vT2}, 15, v{vL}
    v_lshlrev_b32 v{vT2}, 2, v{vT2}
    v_and_b32 v{vT1}, 48, v{vL}
    v_lshl_add_u32 v{vOo}, v{vT1}, 7, v{vT2}
    v_and_b32 v{vT1}, 32, v{vL}
    v_lshl_add_u32 v{vOo2}, v{vT1}, 6, v{vT2}
    v_and_b32 v{vT1}, 16, v{vL}
    v_lshl_add_u32 v{vOo2}, v{vT1}, 22, v{vOo2}
    s_lshl_b32 s{s2_}, s{sNB}, 9
    s_lshl_b32 s{s3_}, s{sW}, 6
    s_add_u32 s{s2_}, s{s2_}, s{s3_}
    """)
    wait(SY_B, 8)
    xread(0)
    gemm([14 - 2 * s for s in range(8)], False)
    stamp(8)
    burst(2)
    a(f"v_add_u32 v{vXa}, {L_R3}, v{vFrag}")
    for rt in range(3):
        wait(SY_T + 4 * rt, 16 if rt < 2 else 8, sleep=1 if rt < 2 else 0, cap=0x1000000)
        if rt == 2: stamp(10)
        for s in range(6):
            a(f"ds_read_b128 {vr(XB+4*s,4)}, v{vXa} offset:{rt*TILE+s*64}")
        for s in range(8):
            vm = f"vmcnt({14-2*s}) " if rt == 0 else ""
            a(f"s_waitcnt {vm}lgkmcnt({5 if s < 3 else 7-s})")
            for t in range(2):
                d = vr(ACC + 8 * rt + 4 * t, 4)
                a(f"v_mfma_f32_16x16x32_bf16 {d}, {vr(XB+4*(s%6),4)}, {vr(FR+8*s+4*t,4)}, {d}")
            if s < 2: a(f"ds_read_b128 {vr(XB+4*s,4)}, v{vXa} offset:{rt*TILE+(s+6)*64}")
        a("s_nop 7")
        for r in range(4):
            d = ACC + 8 * rt
            a(f"""
            v_cvt_pk_bf16_f32 v{d+r}, v{d+r}, v{d+4+r}
            buffer_store_dword v{d+r}, v{vOo if rt < 2 else vOo2}, {srd(sOUT)}, s{s2_} offen offset:{r*512}{['', ' sc1', ' nt', ' sc0 sc1', ' sc1 nt'][ost]}
            """)
        if rt < 2: a(f"s_add_u32 s{s2_}, s{s2_}, 8192")
        if rt == 0: stamp(9)
    stamp(11)
    if stamps: a("s_waitcnt vmcnt(0)")
    stamp(12)
    a("s_branch L_end")

    EV, LA, RK, WV = 16, 24, 32, 40
    vDis, vRow, vSl, vEnt, vAad, vFo = 8, 9, 12, 13, 14, 15
    vCnt, vEa2, vKey, vSuf, vC4, vR3, vCb, vOfa, vLb, vSub, vOf = 48, 49, 50, 51, 52, 53, 54, 55, 56, 57, 58
    def bsetup():
        selregs(False)
        a(f"""
        s_lshl_b32 s{s0}, s{sJ}, 5
        v_lshrrev_b32 v{vT1}, 1, v{vL}
        v_add_u32 v{vT1}, s{s0}, v{vT1}
        v_cmp_gt_u32 vcc, {NWG}, v{vT1}
        v_and_b32 v{vSub}, 1, v{vL}
        s_mov_b64 s[64:65], vcc
        v_lshlrev_b32 v{vOfa}, 10, v{vT1}
        v_mul_u32_u24 v{vEa2}, {EPW*4}, v{vT1}
        v_lshl_add_u32 v{vEa2}, v{vSub}, 4, v{vEa2}
        v_lshlrev_b32 v{vSub}, 2, v{vSub}
        v_lshrrev_b32 v{vT1}, 3, v{vL}
        v_and_b32 v{vT2}, 7, v{vL}
        v_cmp_gt_u32 s[62:63], 5, v{vT2}
        v_lshl_add_u32 v{vKey}, v{vT2}, 3, v{vT1}
        v_mul_u32_u24 v{vLb}, {CAP*8}, v{vT1}
        v_add_u32 v{vLb}, {L_LIST + CAP*8}, v{vLb}
        v_lshrrev_b32 v{vT1}, 4, v{vKey}
        v_mul_u32_u24 v{vRow}, {TILE}, v{vT1}
        v_lshl_add_u32 v{vRow}, v{vT1}, 26, v{vRow}
        v_cmp_le_u32 vcc, 32, v{vKey}
        v_and_b32 v{vT1}, 7, v{vKey}
        v_and_b32 v{vT2}, 3, v{vKey}
        v_cndmask_b32 v{vT1}, v{vT1}, v{vT2}, vcc
        v_mul_u32_u24 v{vT1}, {PITCH}, v{vT1}
        v_bfe_u32 v{vT2}, v{vKey}, 3, 1
        v_bfe_u32 v{vT3}, v{vKey}, 2, 1
        v_cndmask_b32 v{vT2}, v{vT2}, v{vT3}, vcc
        v_lshl_add_u32 v{vT1}, v{vT2}, 9, v{vT1}
        v_mov_b32 v{vR3}, {L_R3}
        v_add3_u32 v{vRow}, v{vRow}, v{vT1}, v{vR3}
        v_lshrrev_b32 v{vT1}, 5, v{vL}
        v_lshl_add_u32 v{vFo}, v{vT1}, 3, v{vM16}
        v_mov_b32 v{vC4}, 4
        s_lshl_b32 s{s0}, s{sNB}, 2
        s_sub_u32 s{s0}, {L_CNT}, s{s0}
        v_mov_b32 v{vCb}, s{s0}
        v_add_u32 v{vT1}, s{sNB}, v{vKey}
        v_lshl_add_u32 v{vDis}, v{vT1}, 1, v{vR3}
        v_lshlrev_b32 v{vKey}, 2, v{vKey}
        v_add_u32 v{vKey}, {L_CNT}, v{vKey}
        s_lshl_b32 s{s2_}, s{sBeta}, 2
        s_mov_b32 s{s3_}, {W_ENT}
        v_mov_b64 {vr(vOf,2)}, 0
        """)
        for j in range(0, 8, 2): a(f"v_mov_b64 {vr(EV+j,2)}, 0")
    a("L_preB:\ns_setprio 3")
    bsetup()
    wait(SY_GO, 1, sleep=1)
    a(f"v_readfirstlane_b32 s{sTag}, v{vT0}")
    stamp(4)
    if sleep0: a(f"s_sleep {sleep0}")
    a(f"""
    s_mov_b32 s{s1}, 0
    s_mov_b64 exec, s[64:65]
    s_bitset0_b32 s{sTag}, 0
    L_spoll:
    buffer_load_dwordx2 {vr(vOf,2)}, v{vOfa}, {srd(sWS)}, s{s2_} offen sc1
    s_add_u32 s{s1}, s{s1}, 1
    s_cmp_gt_u32 s{s1}, 0x40000
    s_cbranch_scc1 L_end
    s_waitcnt vmcnt(0)
    v_xor_b32 v{vOf}, s{sTag}, v{vOf}
    v_xor_b32 v{vOf+1}, s{sTag}, v{vOf+1}
    v_or_b32 v{vT1}, v{vOf}, v{vOf+1}
    v_cmpx_lt_u32 vcc, 0x3ff, v{vT1}
    s_cbranch_execz L_sok
    s_sleep {psleep}
    s_branch L_spoll
    L_sok:
    s_mov_b64 exec, -1
    v_lshl_add_u32 v{vEa2}, v{vOf}, 2, v{vEa2}
    v_sub_u32 v{vCnt}, v{vOf+1}, v{vOf}
    v_sub_u32 v{vCnt}, v{vCnt}, v{vSub}
    """)
    if stamps: a(f"s_mov_b32 s{ST0+11}, s{ST0+1}\ns_add_u32 s{ST0+10}, s{ST0}, s{s1}")
    stamp(6)
    for q in range(2):
        a(f"""
        v_cmpx_lt_i32 vcc, {8*q}, v{vCnt}
        s_cbranch_execz L_entld
        buffer_load_dwordx4 {vr(EV+4*q,4)}, v{vEa2}, {srd(sWS)}, s{s3_} offen offset:{32*q} sc1
        """)
    a(f"""
    v_cmpx_lt_i32 vcc, 16, v{vCnt}
    s_cbranch_execz L_entld
    ds_write_b32 v{vSy}, v{vC4} offset:{SY_OV}
    L_entld:
    """)
    signal(SY_V)
    a("s_waitcnt vmcnt(0)")
    stamp(7)
    TH = (0, 1, 2, 3, 8, 9, 10, 11)
    def ladder(lab, body, key):
        for j in range(8):
            a(key(j))
            if j >= 4: a(f"s_cbranch_execz {lab}")
            if j == 4: a("s_waitcnt lgkmcnt(2)")
            body(j)
        a(f"{lab}:\ns_mov_b64 exec, -1")
    live = lambda j: f"v_cmpx_lt_i32 vcc, {TH[j]}, v{vCnt}"
    ladder("L_l1", lambda j: a(f"""
        v_mad_u32_u16 v{LA+j}, v{EV+j}, 4, v{vCb} op_sel:[1,0,0,0]
        ds_add_rtn_u32 v{RK+j}, v{LA+j}, v{vC4}
        """), live)
    signal(SY_C1)
    for j in range(8): a(f"v_mad_u32_u16 v{WV+j}, v{EV+j}, 2, v{vR3}")
    wait(SY_C1, 8)
    a(f"""
    ds_read_b32 v{vSl}, v{vKey}
    ds_read_b32 v{vT1}, v{vSy} offset:{SY_OV}
    ds_read_u16 v{vDis}, v{vDis}
    """)
    for j in range(8): a(f"ds_read_u16 v{WV+j}, v{WV+j}")
    a(f"""
    s_lshl_b32 s{s0}, s2, 4
    s_add_u32 s{s0}, s{s0}, s{sW}
    s_cmp_eq_u32 s{s0}, 15
    s_cbranch_scc0 L_noep
    v_mov_b32 v{vT2}, s{sTag}
    v_mov_b32 v{vT3}, {W_EP}
    s_mov_b64 exec, 1
    buffer_store_dword v{vT2}, v{vT3}, {srd(sWS)}, 0 offen sc1
    s_mov_b64 exec, -1
    L_noep:
    s_waitcnt lgkmcnt(10)
    v_add_u32 v{vSl}, 4, v{vSl}
    v_lshrrev_b32 v{vSl}, 3, v{vSl}
    v_max_u32 v{vSl}, 1, v{vSl}
    v_cndmask_b32 v{vSl}, 0, v{vSl}, s[62:63]
    s_lshl_b32 s{sPad}, s{sJ}, 3
    s_nop 0
    v_add_u32_dpp v{vSuf}, v{vSl}, v{vSl} row_shl:1 row_mask:0xf bank_mask:0xf bound_ctrl:1
    s_nop 1
    v_add_u32_dpp v{vSuf}, v{vSuf}, v{vSuf} row_shl:2 row_mask:0xf bank_mask:0xf bound_ctrl:1
    s_nop 1
    v_add_u32_dpp v{vSuf}, v{vSl}, v{vSuf} row_shl:4 row_mask:0xf bank_mask:0x5 bound_ctrl:1
    s_waitcnt lgkmcnt(0)
    v_lshlrev_b32 v{vDis}, 16, v{vDis}
    v_lshl_add_u32 v{vT1}, v{vT1}, 10, v{vSuf}
    v_lshlrev_b32 v{vT3}, 3, v{vSuf}
    v_cmp_le_u32 vcc, {CAP}, v{vT1}
    v_sub_u32 v{vT2}, v{vLb}, v{vT3}
    v_subrev_u32 v{vSl}, 1, v{vSl}
    s_cbranch_vccnz L_slow
    s_mov_b64 exec, s[62:63]
    ds_write_b32 v{vKey}, v{vT2} offset:{L_BASE-L_CNT}
    s_mov_b64 exec, -1
    s_sub_u32 s{sK}, s{sPad}, 1
    v_readlane_b32 s{sPad}, v{vSuf}, s{sPad}
    """)
    ladder("L_l2", lambda j: a(f"ds_read_b32 v{LA+j}, v{LA+j} offset:{L_BASE-L_CNT}"), live)
    a(f"s_lshr_b32 s{sRnd}, s{sPad}, {R.bit_length()-1}" if R != 24 else f"s_mul_i32 s{sRnd}, s{sPad}, 2731\ns_lshr_b32 s{sRnd}, s{sRnd}, 16")
    a(f"""
    s_add_u32 s{s2_}, s{sRnd}, 1
    s_mul_i32 s{s2_}, s{s2_}, {R}
    s_sub_u32 s{sPad}, s{s2_}, s{sPad}
    s_sub_u32 s{sRem}, s{sPad}, 1
    s_add_u32 s{s3_}, s{sJ}, 1
    s_mul_i32 s{s3_}, s{s3_}, {CAP}
    s_sub_u32 s{s2_}, s{s3_}, s{s2_}
    s_lshl_b32 s{s2_}, s{s2_}, 3
    s_add_u32 s{s2_}, s{s2_}, {L_LIST}
    s_waitcnt lgkmcnt(0)
    """)
    def l3(j):
        if dbg & 16: a(f"v_and_b32 v{EV+j}, {gmask}, v{EV+j}")
        a(f"v_perm_b32 v{WV+j}, v{WV+j}, v{EV+j}, s{sSelLo}")
        a(f"v_add_u32 v{LA+j}, v{LA+j}, v{RK+j}\nds_write_b32 v{LA+j}, v{WV+j}")
    ladder("L_l3", l3, live)
    signal(SY_C2)
    a(f"""
    v_lshrrev_b32 v{vT1}, 5, v{vL}
    v_lshl_add_u32 v{vEnt}, v{vT1}, 2, s{s2_}
    v_bfe_u32 v{vT1}, v{vL}, 2, 3
    v_lshl_add_u32 v{vAad}, v{vT1}, 3, v{vEnt}
    s_mov_b32 s{sRow}, {L_DUMMY + (((SY_DUM - SY_T) // 4) << 26)}
    s_mov_b32 s{sDis}, 0
    """)
    wait(SY_C2, 8)
    stamp(8)
    if dbg & 4: a(f"v_mov_b32 v{vT0}, 64\nds_write_b32 v{vSy}, v{vT0} offset:{SY_T}\nds_write_b32 v{vSy}, v{vT0} offset:{SY_T+4}\nds_write_b32 v{vSy}, v{vT0} offset:{SY_T+8}\ns_branch L_end")
    a(f"s_setprio {prioB}")
    if byoung: a(f"s_cmp_lt_u32 s{sJ}, 4\ns_cbranch_scc1 L_old\ns_setprio {prioB+1}\nL_old:")

    RING, ENT, GACC = 16, 112, 120
    vA0, vAraw, vAd = vT2, vT1, vT0
    def entread(slot):
        a(f"ds_read2_b32 {vr(ENT+(slot&7),2)}, v{vEnt} offset0:{2*slot} offset1:{2*slot+2}")
    def gload(t, pro=False):
        a(f"""
        v_mad_u32_u16 v{vAd}, v{ENT+(t&7)}, s{sC512}, v{vM16}
        {f's_waitcnt vmcnt({D-1})' if pro and D < R and t >= D else ''}
        buffer_load_dwordx4 {vr(RING+4*t,4)}, v{vAd}, {srd(sX)}, 0 offen{' nt' if gnt else ''}
        """)
    for g in range(R // 8):
        nx = a.label("Lpg")
        a(f"s_cmp_ge_u32 s{sPad}, {8*g+8}\ns_cbranch_scc1 {nx}")
        for i in range(0, 8, 2): entread(8 * g + i)
        a("s_waitcnt lgkmcnt(0)")
        for t in range(8 * g, 8 * g + 8):
            if t % 8 < 7:
                sk = a.label("Lps")
                a(f"s_cmp_gt_u32 s{sPad}, {t}\ns_cbranch_scc1 {sk}")
                gload(t, True)
                a(f"{sk}:")
            else:
                gload(t, True)
        a(f"{nx}:")
    a(f"ds_read_b32 v{vAraw}, v{vAad}")
    for i in range(0, 8, 2): entread(R + i)
    stubs = []
    def consume(t, tag, vm, steady):
        if t % 8 == 0:
            a(f"""
            s_waitcnt lgkmcnt({3 if steady else 0})
            v_perm_b32 v{vA0}, v{vAraw}, v{vAraw}, v{vSH0}
            v_perm_b32 v{vA0+1}, v{vAraw}, v{vAraw}, v{vSH1}
            ds_read_b32 v{vAraw}, v{vAad} offset:{8*(t+8)}
            s_waitcnt vmcnt({vm})
            """)
        elif steady and t % 2 == 0:
            a(f"s_waitcnt vmcnt({vm}) lgkmcnt(3)")
        else:
            a(f"s_waitcnt vmcnt({vm})")
        for h in range(2):
            d = vr(GACC + 4 * h, 4)
            if not dbg & 2: a(f"v_mfma_f32_4x4x4_16b_bf16 {d}, {vr(vA0,2)}, {vr(RING+4*t+2*h,2)}, {d} cbsz:3 abid:{t&7}")
        a(f"s_sub_u32 s{sRem}, s{sRem}, 1\ns_cbranch_scc1 Lf{tag}_{t}\nLb{tag}_{t}:")
        stubs.append((f"Lf{tag}_{t}", f"Lb{tag}_{t}"))
    a(f"s_cmp_eq_u32 s{sRnd}, 0\ns_cbranch_scc1 L_drain\nL_gl:")
    for t in range(R):
        consume(t, "s", D - 1, True)
        gload(t)
        if t % 2 == 1: entread(R + 8 + t - 1)
    a(f"""
    v_add_u32 v{vEnt}, {8*R}, v{vEnt}
    v_add_u32 v{vAad}, {8*R}, v{vAad}
    s_sub_u32 s{sRnd}, s{sRnd}, 1
    s_cmp_lg_u32 s{sRnd}, 0
    s_cbranch_scc1 L_gl
    L_drain:
    """)
    for t in range(R):
        consume(t, "d", R - 1 - t, False)
    a("L_gdone:")
    stamp(9)
    a("L_end:")
    if probe >= 0:
        a(f"""
        s_cmp_eq_u32 s{sW}, {pw}
        s_cbranch_scc0 L_noprobe
        s_sub_u32 s{s0}, s{ST0+2*probe}, s{ST0}
        s_min_u32 s{s0}, s{s0}, 20000
        s_mul_i32 s{s0}, s{s0}, {pk}
        s_memrealtime s[60:61]
        L_probe:
        s_memrealtime s[62:63]
        s_waitcnt lgkmcnt(0)
        s_sub_u32 s62, s62, s60
        s_cmp_lt_u32 s62, s{s0}
        s_cbranch_scc1 L_probe
        L_noprobe:
        """)
    if stamps:
        a(f"""
        s_mov_b64 exec, -1
        s_add_u32 s{sT1}, s{pWS}, {STAMP_OFF}
        s_addc_u32 s{sT1+1}, s{pWS+1}, 0
        s_mov_b32 s{sT1+2}, 0x1000000
        s_mov_b32 s{sT1+3}, 0x20000
        s_lshl_b32 s{s0}, s2, 4
        s_add_u32 s{s0}, s{s0}, s{sW}
        s_mul_i32 s{s0}, s{s0}, {NSTAMP*8}
        v_lshlrev_b32 v4, 2, v0
        v_mov_b32 v6, 0
        """)
        for i in range(2 * NSTAMP): a(f"v_writelane_b32 v6, s{ST0+i}, {i}")
        if not nostore: a(f"s_bfm_b64 exec, {2*NSTAMP}, 0\nbuffer_store_dword v6, v4, {srd(sT1)}, s{s0} offen")
    a("L_exit:\ns_endpgm")

    for f, b in stubs:
        a(f"{f}:\ns_call_b64 {pr(sRet)}, L_flush\ns_branch {b}")
    G = GACC
    a(f"""
    L_flush:
    s_add_u32 s{sK}, s{sK}, 1
    s_lshr_b32 s{sTc}, s{sRow}, 24
    s_and_b32 s{sRow}, s{sRow}, 0xffffff
    v_permlane32_swap_b32 v{G}, v{G+4}
    v_permlane32_swap_b32 v{G+1}, v{G+5}
    v_permlane32_swap_b32 v{G+2}, v{G+6}
    v_permlane32_swap_b32 v{G+3}, v{G+7}
    v_add_u32 v{vAd}, s{sRow}, v{vFo}
    v_pk_add_f32 {vr(G,2)}, {vr(G,2)}, {vr(G+4,2)}
    v_pk_add_f32 {vr(G+2,2)}, {vr(G+2,2)}, {vr(G+6,2)}
    v_readlane_b32 s{sRow}, v{vRow}, s{sK}
    v_mul_f32 v{G}, s{sDis}, v{G}
    v_mul_f32 v{G+1}, s{sDis}, v{G+1}
    v_mul_f32 v{G+2}, s{sDis}, v{G+2}
    v_mul_f32 v{G+3}, s{sDis}, v{G+3}
    v_add_u32 v{G+6}, s{sTc}, v{vSy}
    v_mov_b32 v{G+7}, 1
    v_cvt_pk_bf16_f32 v{G+4}, v{G}, v{G+1}
    v_cvt_pk_bf16_f32 v{G+5}, v{G+2}, v{G+3}
    ds_write_b64 v{vAd}, {vr(G+4,2)}
    s_mov_b64 exec, 1
    ds_add_u32 v{G+6}, v{G+7} offset:{SY_T}
    s_mov_b64 exec, -1
    v_readlane_b32 s{sRem}, v{vSl}, s{sK}
    v_readlane_b32 s{sDis}, v{vDis}, s{sK}
    v_mov_b64 {vr(G,2)}, 0
    v_mov_b64 {vr(G+2,2)}, 0
    v_mov_b64 {vr(G+4,2)}, 0
    v_mov_b64 {vr(G+6,2)}, 0
    s_setpc_b64 {pr(sRet)}
    """)

    a("L_slow:\ns_setprio 0")
    signal(SY_C2)
    wait(SY_C2, 8)
    mksrd(sT1, pSRC, 640000)
    mksrd(sT2, pDST, 640000)
    mksrd(sT3, pDIS, 20000)
    a(f"""
    s_sub_u32 s{sK}, s{sPad}, 1
    s_mov_b32 s{sRow}, {L_DUMMY + (((SY_DUM - SY_T) // 4) << 26)}
    s_mov_b32 s{sDis}, 0
    s_call_b64 {pr(sRet)}, L_flush
    s_add_u32 s{sRnd}, s{sJ}, s{sNB}
    s_add_u32 s{sPad}, s{sRnd}, 40
    v_lshlrev_b32 v16, 2, v{vL}
    v_and_b32 v17, 32, v{vL}
    v_lshl_add_u32 v17, v17, 22, v{vM16}
    v_mov_b32 v24, 0
    L_sn:
    s_mov_b32 s{s2_}, 0
    L_sc:
    buffer_load_dword v18, v16, {srd(sT2)}, s{s2_} offen
    buffer_load_dword v19, v16, {srd(sT1)}, s{s2_} offen
    s_waitcnt vmcnt(0)
    v_cmp_eq_u32 vcc, s{sRnd}, v18
    s_cbranch_vccz L_sx
    L_se:
    s_ff1_i32_b64 s{s0}, vcc
    s_bitset0_b64 vcc, s{s0}
    v_readlane_b32 s{s1}, v19, s{s0}
    s_nop 0
    s_lshl_b32 s{s3_}, s{s1}, 9
    s_lshl_b32 s{s1}, s{s1}, 1
    buffer_load_dwordx4 v[20:23], v17, {srd(sX)}, s{s3_} offen
    buffer_load_short_d16_hi v{vAraw}, v24, {srd(sT3)}, s{s1} offen
    s_waitcnt vmcnt(0)
    v_perm_b32 v{vA0}, v{vAraw}, v{vAraw}, v{vSH0}
    v_perm_b32 v{vA0+1}, v{vAraw}, v{vAraw}, v{vSH1}
    s_nop 1
    v_mfma_f32_4x4x4_16b_bf16 {vr(G,4)}, {vr(vA0,2)}, v[20:21], {vr(G,4)}
    v_mfma_f32_4x4x4_16b_bf16 {vr(G+4,4)}, {vr(vA0,2)}, v[22:23], {vr(G+4,4)}
    s_cmp_lg_u64 vcc, 0
    s_cbranch_scc1 L_se
    L_sx:
    s_add_u32 s{s2_}, s{s2_}, 256
    s_cmp_lt_u32 s{s2_}, 640000
    s_cbranch_scc1 L_sc
    s_call_b64 {pr(sRet)}, L_flush
    s_add_u32 s{sRnd}, s{sRnd}, 8
    s_cmp_lt_u32 s{sRnd}, s{sPad}
    s_cbranch_scc1 L_sn
    s_branch L_gdone
    """)
    hdr = open("standalone__hybrid_graph_tf_exphormer__graph.s.ref").read().split("; Override")[0]
    text = wrap(a.text(), NWG, 1024, LDS, 128, header=hdr)
    lines = (text_size(text.replace("CODE_LINES", "100")) - 256) // 128
    assert 64 < lines < 200
    return text.replace("CODE_LINES", str(lines))


if __name__ == "__main__":
    kw = dict(x.split("=") for x in sys.argv[2:])
    kw = {k: int(v) for k, v in kw.items()}
    open(sys.argv[1], "w").write(gen(**kw))
```

```python
import sys
from asmlib import Asm, wrap, NAME, text_size

NWG, NPW, EPW = 250, 40, 640
TILE, PITCH = 8448, 1056
L_E = 0
L_R1 = 10 * TILE
L_R2 = L_R1 + 2 * TILE + TILE // 2
L_R3 = L_R2 + 3 * TILE + 128
L_LIST = L_R3 + 2 * TILE + TILE // 2
W_OFFS, W_ENT, W_FR, W_EP, WS_SIZE = 0, 0x40000, 0x100000, 0x180000, 0x200000
TMASK = 0xfffffc00
STAMP_OFF = 128 << 20


def gen(R=8, stamps=False, probe=-1, pw=8, pk=4, thr=63, prioA=0, prioB=0, psleep=2, dbg=0, D=0, sleep0=0, xa_at=0, e_at=2, epre=10, prioL=3, hyb=0, park=1, swap=1, touch=1, wsep=0, prioE=2, otouch=1, gmask=0xff, gnt=0, byoung=0, ost=0, nostore=0, AH=2, ftouch=0, fst=0, prioP=1, pd=16):
    D = D or R
    TM = 's_memtime' if stamps == 2 else 's_memrealtime'
    CAP = {8: 80, 16: 80, 24: 72}[R]
    LIST_B = 8 * CAP * 8
    L_CNT = L_LIST + LIST_B
    L_BASE = L_CNT + 256
    L_SYNC = L_BASE + 256
    L_HIST = L_SYNC + 128
    L_SORT = L_HIST + 1024
    L_DUMMY = L_SORT + 2560
    LDS = L_DUMMY + 512
    assert LDS <= 163840, LDS
    n_null, n_init = LIST_B // 16, (L_SORT - L_LIST) // 16
    SY_X, SY_Y, SY_M, SY_C1, SY_C2, SY_A, SY_B, SY_OV, SY_GO, SY_T, SY_DUM, SY_V, SY_M2 = 0, 4, 8, 12, 16, 20, 24, 28, 32, 36, 48, 52, 56
    SY_LA, SY_RA, SY_LB, SY_RB, SY_H, SY_D = 60, 64, 68, 72, 76, 80

    a = Asm()
    sX, sWS, sOUT, sT1, sT2, sT3 = 8, 16, 20, 24, 28, 12
    pX, pSRC, pDST, pESRC, pDIS, pWL, pWQ, pWK, pWV, pOUT, pDBG, pWS = 32, 34, 36, 38, 42, 44, 46, 48, 50, 52, 54, 56
    sW, sJ, sNB, sBeta, sC512 = 3, 4, 5, 6, 7
    s0, s1, s2_, s3_ = 58, 59, 60, 61
    sRem, sK, sRow, sDis, sRnd, sPad = 62, 63, 64, 65, 66, 67
    sRet, sSelLo, sSelHi = 68, 70, 71
    sFo, sTc = 100, 101
    sTag, sFlag = 40, 41
    ST0, NSTAMP = 72, 14

    def srd(s): return f"s[{s}:{s+3}]"
    def pr(s): return f"s[{s}:{s+1}]"
    def vr(b, n): return f"v[{b}:{b+n-1}]"
    def stamp(i):
        if stamps: a(f"{TM} {pr(ST0+2*i)}\ns_waitcnt lgkmcnt(0)")
    def mksrd(s, p, size):
        a(f"s_mov_b32 s{s}, s{p}\ns_mov_b32 s{s+1}, s{p+1}\ns_mov_b32 s{s+2}, {size}\ns_mov_b32 s{s+3}, 0x20000")

    vL, vFrag, vM16, vSy, vT0, vT1, vT2, vT3 = 0, 1, 2, 3, 4, 5, 6, 7

    vTid16, vImg = 30, 31

    def signal(off):
        a(f"""
        s_mov_b64 exec, 1
        v_mov_b32 v{vT0}, 1
        ds_add_u32 v{vSy}, v{vT0} offset:{off}
        s_mov_b64 exec, -1
        """)
    def wait(off, n, sleep=0, cap=0x400000):
        lp, ok = a.label("Lw"), a.label("Lk")
        a(f"""
        s_mov_b32 s{s1}, 0
        {lp}:
        ds_read_b32 v{vT0}, v{vSy} offset:{off}
        s_waitcnt lgkmcnt(0)
        v_cmp_gt_u32 vcc, {n}, v{vT0}
        s_cbranch_vccz {ok}
        """)
        if sleep: a(f"s_sleep {sleep}")
        a(f"""
        s_add_u32 s{s1}, s{s1}, 1
        s_cmp_lt_u32 s{s1}, {cap}
        s_cbranch_scc1 {lp}
        s_branch L_end
        {ok}:
        """)

    a(f"s_cmp_ge_u32 s2, {NWG}\ns_cbranch_scc1 L_exit")
    if stamps:
        for i in range(NSTAMP): a(f"s_mov_b64 {pr(ST0+2*i)}, 0")
        a(f"{TM} {pr(ST0)}")
    a(f"""
    s_load_dwordx16 s[32:47], s[0:1], 0
    s_load_dwordx8 s[48:55], s[0:1], 64
    s_load_dwordx2 s[56:57], s[0:1], 96
    s_getpc_b64 s[60:61]
    s_lshr_b32 s58, s2, 3
    v_lshl_add_u32 v1, v0, 5, s58
    v_cmp_gt_u32 vcc, CODE_LINES, v1
    v_lshlrev_b32 v1, 7, v1
    s_and_saveexec_b64 s[58:59], vcc
    s_cbranch_execz L_nopf
    global_load_dword v127, v1, s[60:61]
    L_nopf:
    s_mov_b64 exec, -1
    v_lshrrev_b32 v1, 6, v0
    v_mov_b32 v8, 0xffff
    v_readfirstlane_b32 s{sW}, v1
    v_cmp_gt_u32 vcc, {n_null}, v0
    v_lshlrev_b32 v{vTid16}, 4, v0
    v_add_u32 v4, {L_LIST}, v{vTid16}
    v_cndmask_b32 v8, 0, v8, vcc
    v_mov_b32 v9, v8
    v_mov_b32 v10, v8
    v_mov_b32 v11, v8
    v_cmp_gt_u32 vcc, {n_init}, v0
    s_and_saveexec_b64 s[58:59], vcc
    ds_write_b128 v4, v[8:11]
    s_mov_b64 exec, -1
    v_and_b32 v{vL}, 63, v0
    s_and_b32 s{s0}, s2, 7
    s_lshr_b32 s{s1}, s2, 3
    s_mul_i32 s{sBeta}, s{s0}, 31
    s_min_u32 s{s0}, s{s0}, 2
    s_add_u32 s{sBeta}, s{sBeta}, s{s0}
    s_add_u32 s{sBeta}, s{sBeta}, s{s1}
    s_mul_i32 s{sNB}, s{sBeta}, {NPW}
    s_and_b32 s{sJ}, s{sW}, 7
    {f's_xor_b32 s{sW}, s{sW}, 8' if swap else ''}
    s_movk_i32 s{sC512}, 512
    v_and_b32 v{vM16}, 31, v{vL}
    v_lshlrev_b32 v{vM16}, 4, v{vM16}
    v_mov_b32 v{vSy}, {L_SYNC}
    s_mov_b32 s{sSelLo}, 0x05040100
    s_mov_b32 s{sSelHi}, 0x07060302
    s_mov_b32 s{sX+2}, {10000*512}
    s_mov_b32 s{sX+3}, 0x20000
    s_mov_b32 s{sWS+2}, {WS_SIZE}
    s_mov_b32 s{sWS+3}, 0x20000
    s_mov_b32 s{sT1+3}, 0x20000
    s_mov_b32 s{sT2+3}, 0x20000
    s_mov_b32 s{sT3+3}, 0x20000
    s_cmp_eq_u32 s{sW}, 8
    s_waitcnt lgkmcnt(0)
    s_mov_b64 {pr(sX)}, {pr(pX)}
    s_mov_b64 {pr(sWS)}, {pr(pWS)}
    s_cbranch_scc0 L_notprod
    """)
    def base(s, p, size): a(f"s_mov_b64 {pr(s)}, {pr(p)}\ns_mov_b32 s{s+2}, {size}")
    def fragaddr():
        a(f"""
        v_and_b32 v{vT0}, 7, v{vL}
        v_mul_u32_u24 v{vFrag}, {PITCH}, v{vT0}
        v_and_b32 v{vT0}, 8, v{vL}
        v_lshl_add_u32 v{vFrag}, v{vT0}, 6, v{vFrag}
        v_and_b32 v{vT0}, 48, v{vL}
        v_add_u32 v{vFrag}, v{vT0}, v{vFrag}
        """)

    SRCV, DSTV, AV, PV = 16, 26, 36, 46
    a("s_setprio 3")
    base(sT1, pSRC, 640000)
    base(sT2, pDST, 640000)
    a(f"""
    v_lshlrev_b32 v{vT1}, 4, v{vL}
    v_lshlrev_b32 v{vT2}, 3, v{vL}
    s_mul_i32 s{s0}, s2, {EPW*4}
    buffer_load_dwordx4 {vr(DSTV,4)}, v{vT1}, {srd(sT2)}, s{s0} offen
    buffer_load_dwordx4 {vr(DSTV+4,4)}, v{vT1}, {srd(sT2)}, s{s0} offen offset:1024
    buffer_load_dwordx2 {vr(DSTV+8,2)}, v{vT2}, {srd(sT2)}, s{s0} offen offset:2048
    buffer_load_dwordx4 {vr(SRCV,4)}, v{vT1}, {srd(sT1)}, s{s0} offen
    buffer_load_dwordx4 {vr(SRCV+4,4)}, v{vT1}, {srd(sT1)}, s{s0} offen offset:1024
    buffer_load_dwordx2 {vr(SRCV+8,2)}, v{vT2}, {srd(sT1)}, s{s0} offen offset:2048
    s_mov_b32 s{s1}, {W_EP}
    s_load_dword s{sTag}, {pr(pWS)}, s{s1}
    s_barrier
    v_mov_b32 v8, 1
    v_mov_b32 v9, 4
    v_mov_b32 v10, {L_HIST}
    v_add_u32 v11, {L_HIST}, v{vT1}
    v_mov_b32 v59, {L_SORT}
    v_add_u32 v74, {L_SORT}, v{vT1}
    v_add_u32 v75, {L_SORT}, v{vT2}
    s_lshl_b32 s{s3_}, s2, 10
    s_add_u32 s{s0}, s{s0}, {W_ENT}
    s_waitcnt vmcnt(5)
    """)
    stamp(1)
    for j in range(10):
        if j == 4: a("s_waitcnt vmcnt(4)")
        if j == 8: a("s_waitcnt vmcnt(3)")
        a(f"""
        v_mul_u32_u24 v{AV+j}, 52429, v{DSTV+j}
        v_lshrrev_b32 v{AV+j}, 21, v{AV+j}
        v_lshl_add_u32 v{AV+j}, v{AV+j}, 2, v10
        ds_add_u32 v{AV+j}, v8
        """)
    a("ds_read_b128 v[12:15], v11\ns_waitcnt vmcnt(0)")
    for j in range(10):
        a(f"v_lshl_or_b32 v{SRCV+j}, v{DSTV+j}, 16, v{SRCV+j}")
    a(f"""
    s_waitcnt lgkmcnt(0)
    v_add_u32 v56, v12, v13
    v_add3_u32 v57, v56, v14, v15
    s_nop 1
    v_add_u32_dpp v58, v57, v57 row_shr:1 row_mask:0xf bank_mask:0xf bound_ctrl:1
    s_nop 1
    v_add_u32_dpp v58, v58, v58 row_shr:2 row_mask:0xf bank_mask:0xf bound_ctrl:1
    s_nop 1
    v_add_u32_dpp v58, v58, v58 row_shr:4 row_mask:0xf bank_mask:0xf bound_ctrl:1
    s_nop 1
    v_add_u32_dpp v58, v58, v58 row_shr:8 row_mask:0xf bank_mask:0xf bound_ctrl:1
    s_nop 1
    v_add_u32_dpp v58, v58, v58 row_bcast:15 row_mask:0xa bank_mask:0xf
    s_nop 1
    v_add_u32_dpp v58, v58, v58 row_bcast:31 row_mask:0xc bank_mask:0xf
    v_sub_u32 v60, v58, v57
    v_add_u32 v61, v60, v12
    v_add_u32 v62, v60, v56
    v_add_u32 v63, v62, v14
    v_lshl_add_u32 v64, v60, 2, v59
    v_lshl_add_u32 v65, v61, 2, v59
    v_lshl_add_u32 v66, v62, 2, v59
    v_lshl_add_u32 v67, v63, 2, v59
    ds_write_b128 v11, v[64:67]
    """)
    for j in range(10):
        a(f"ds_add_rtn_u32 v{PV+j}, v{AV+j}, v9")
    a(f"""
    s_add_u32 s{sTag}, s{sTag}, 0x400
    s_and_b32 s{sTag}, s{sTag}, {TMASK}
    v_or_b32 v60, s{sTag}, v60
    v_or_b32 v61, s{sTag}, v61
    v_or_b32 v62, s{sTag}, v62
    v_or_b32 v63, s{sTag}, v63
    s_or_b32 s{s2_}, s{sTag}, 1
    v_mov_b32 v12, s{s2_}
    """)
    for j in range(0, 10, 2):
        a(f"s_waitcnt lgkmcnt(8)\nds_write_b32 v{PV+j}, v{SRCV+j}\nds_write_b32 v{PV+j+1}, v{SRCV+j+1}")
    a(f"""
    ds_read_b128 v[64:67], v74
    ds_read_b128 v[68:71], v74 offset:1024
    ds_read_b64 v[72:73], v75 offset:2048
    s_waitcnt lgkmcnt(2)
    buffer_store_dwordx4 v[64:67], v{vT1}, {srd(sWS)}, s{s0} offen sc1
    s_waitcnt lgkmcnt(1)
    buffer_store_dwordx4 v[68:71], v{vT1}, {srd(sWS)}, s{s0} offen offset:1024 sc1
    s_waitcnt lgkmcnt(0)
    buffer_store_dwordx2 v[72:73], v{vT2}, {srd(sWS)}, s{s0} offen offset:2048 sc1
    """)
    stamp(2)
    wait(SY_M2, 2)
    a(f"""
    s_waitcnt vmcnt(0)
    buffer_store_dwordx4 v[60:63], v{vT1}, {srd(sWS)}, s{s3_} offen sc1
    ds_write_b32 v{vSy}, v12 offset:{SY_GO}
    """)
    stamp(3)
    a("s_branch L_preB")

    a(f"""
    L_notprod:
    s_cmp_lt_u32 s{sW}, 8
    s_cbranch_scc1 L_preA
    s_setprio 3
    s_cmp_eq_u32 s{sW}, 9
    s_cbranch_scc1 L_touch
    s_cmp_ge_u32 s{sW}, 13
    s_cbranch_scc1 L_notm
    s_cmp_ge_u32 s2, 128
    s_cbranch_scc1 L_b1
    s_and_b32 s{s0}, s2, 7
    s_lshr_b32 s{s1}, s2, 4
    s_sub_u32 s{s2_}, s{sW}, 10
    s_bfe_u32 s{s3_}, s2, 0x10003
    s_cmp_eq_u32 s{sW}, 12
    s_cselect_b32 s{s0}, s{s1}, s{s0}
    s_cselect_b32 s{s3_}, s{s3_}, s{s2_}
    s_cselect_b64 {pr(sT1)}, {pr(pWK)}, {pr(pWQ)}
    s_mov_b32 s{sT1+2}, 131072
    s_lshl_b32 s{s0}, s{s0}, 14
    s_lshl_b32 s{s3_}, s{s3_}, 11
    s_add_u32 s{s0}, s{s0}, s{s3_}
    s_mul_i32 s{s2_}, s{s2_}, {TILE}
    v_and_b32 v{vT0}, 32, v{vL}
    v_lshl_add_u32 v{vT0}, v{vT0}, 8, v{vM16}
    """)
    for u in range(8):
        k = u & 3
        a(f"s_add_u32 m0, s{s2_}, {L_R2 + u*PITCH - k*512}")
        a(f"s_add_u32 s{s0}, s{s0}, 4096" if u == 4 else "s_nop 0")
        a(f"buffer_load_dwordx4 v{vT0}, {srd(sT1)}, s{s0} offen offset:{k*512} lds")
    a(f"""
    s_branch L_b1
    L_notm:
    s_cmp_eq_u32 s{sW}, 13
    s_cbranch_scc0 L_b1
    s_cmp_lt_u32 s2, {NWG - (64 if hyb or park else 128)}
    s_cbranch_scc1 L_b1
    s_sub_u32 s{s0}, s2, {NWG - (64 if park else 128)}
    s_cmp_lt_u32 s{s0}, 64
    s_cselect_b64 {pr(sT1)}, {pr(pWV)}, {pr(pWL)}
    s_mov_b32 s{sT1+2}, 131072
    s_and_b32 s{s1}, s{s0}, 7
    s_lshl_b32 s{s1}, s{s1}, 14
    s_bfe_u32 s{s2_}, s{s0}, 0x30003
    s_lshl_b32 s{s2_}, s{s2_}, 6
    s_add_u32 s{s1}, s{s1}, s{s2_}
    v_and_b32 v{vT0}, 15, v{vL}
    v_lshlrev_b32 v{vT0}, 2, v{vT0}
    v_and_b32 v{vT1}, 48, v{vL}
    v_lshl_add_u32 v{vT0}, v{vT1}, 8, v{vT0}
    """)
    for j in range(8):
        a(f"buffer_load_dword v{16+j}, v{vT0}, {srd(sT1)}, s{s1} offen offset:{j*512}")
    a("s_branch L_b1\nL_touch:")
    if touch:
        base(sT1, pWL if park else pWV, 131072)
        base(sT2, pDIS, 20000)
        a(f"""
        s_lshr_b32 s{s0}, s2, 3
        s_mul_i32 s{s1}, s{s0}, 640
        s_mul_i32 s{s0}, s{s0}, {34*128}
        v_lshlrev_b32 v{vT0}, 7, v{vL}
        s_mov_b64 exec, 63
        buffer_load_dword v16, v{vT0}, {srd(sT2)}, s{s1} offen
        """)
        if otouch: a(f"s_lshl_b32 s{s1}, s2, 10\ns_mov_b64 exec, 255\nbuffer_load_dword v18, v{vT0}, {srd(sWS)}, s{s1} offen")
        if hyb or park: a(f"s_bfm_b64 exec, 34, 0\nbuffer_load_dword v17, v{vT0}, {srd(sT1)}, s{s0} offen")
        a("s_mov_b64 exec, -1\ns_barrier\ns_waitcnt vmcnt(0)")
        signal(SY_Y)
        a("s_branch L_preB")
    a("L_b1:\ns_barrier")
    base(sT2, pDIS, 20000)
    a(f"""
    s_cmp_eq_u32 s{sW}, 9
    s_cbranch_scc1 L_preB
    s_cmp_eq_u32 s{sW}, 10
    s_cbranch_scc1 L_disd
    s_cmp_eq_u32 s{sW}, 13
    s_cbranch_scc1 L_wtask
    s_cmp_lt_u32 s{sW}, 13
    s_cbranch_scc1 L_min
    """)
    if touch: wait(SY_Y, 1, sleep=1)
    a(f"""
    s_sub_u32 s{s0}, s{sW}, 14
    s_mul_i32 s{s0}, s{s0}, 10240
    v_lshlrev_b32 v{vT0}, 4, v{vL}
    """)
    for i in range(10):
        if i % 4 == 0: a(f"s_add_u32 m0, s{s0}, {L_R3 + i*1024}\ns_add_u32 s{s1}, s{s0}, {i*1024}")
        a(f"buffer_load_dwordx4 v{vT0}, {srd(sT2)}, s{s1} offen offset:{(i%4)*1024} lds")
    a("s_branch L_preB\nL_min:\ns_waitcnt vmcnt(0)")
    signal(SY_M)
    a(f"""
    s_branch L_preB
    L_disd:
    s_cmp_ge_u32 s2, 128
    s_cbranch_scc1 L_taskd
    s_setprio 3
    """)
    fragaddr()
    a(f"""
    v_add_u32 v{vT1}, {L_R2}, v{vFrag}
    s_lshr_b32 s{s0}, s2, 4
    s_lshl_b32 s{s0}, s{s0}, 3
    s_and_b32 s{s1}, s2, 7
    s_add_u32 s{s0}, s{s0}, s{s1}
    s_lshl_b32 s{s0}, s{s0}, 1
    s_bfe_u32 s{s1}, s2, 0x10003
    s_add_u32 s{s0}, s{s0}, s{s1}
    s_lshl_b32 s{s0}, s{s0}, 10
    s_add_u32 s{s0}, s{s0}, {W_FR}
    v_lshlrev_b32 v{vT2}, 4, v{vL}
    s_waitcnt vmcnt(0)
    """)
    wait(SY_M, 2)
    stamp(1)
    MB = 32
    for ks in range(4):
        for t in range(3):
            a(f"ds_read_b128 {vr(MB+12*ks+4*t,4)}, v{vT1} offset:{t*TILE + ks*64}")
    for ks in range(8):
        a(f"s_waitcnt lgkmcnt({min(9, 3*(7-ks))})")
        if ks < 4:
            for t in range(3):
                a(f"ds_read_b128 {vr(MB+12*(ks+4)+4*t,4)}, v{vT1} offset:{t*TILE + (ks+4)*64}")
        for t in range(2):
            c = "0" if ks == 0 else vr(8 + 4 * t, 4)
            a(f"v_mfma_f32_16x16x32_bf16 {vr(8+4*t,4)}, {vr(MB+12*ks+4*t,4)}, {vr(MB+12*ks+8,4)}, {c}")
    a(f"""
    s_nop 6
    v_cvt_pk_bf16_f32 v16, v8, v9
    v_cvt_pk_bf16_f32 v17, v10, v11
    v_cvt_pk_bf16_f32 v18, v12, v13
    v_cvt_pk_bf16_f32 v19, v14, v15
    buffer_store_dwordx4 v[16:19], v{vT2}, {srd(sWS)}, s{s0} offen sc1
    """)
    stamp(3)
    a(f"""
    s_branch L_taskw
    L_wtask:
    s_cmp_lt_u32 s2, {NWG - (64 if hyb or park else 128)}
    s_cbranch_scc1 L_taskd
    s_sub_u32 s{s0}, s2, {NWG - (64 if park else 128)}
    s_lshl_b32 s{s0}, s{s0}, 11
    s_add_u32 s{s0}, s{s0}, {W_FR + 131072}
    v_lshlrev_b32 v{vT2}, 4, v{vL}
    s_waitcnt vmcnt(0)
    """)
    for q in range(4):
        a(f"v_perm_b32 v{60+q}, v{17+2*q}, v{16+2*q}, s{sSelLo}")
        a(f"v_perm_b32 v{64+q}, v{17+2*q}, v{16+2*q}, s{sSelHi}")
    a(f"""
    buffer_store_dwordx4 v[60:63], v{vT2}, {srd(sWS)}, s{s0} offen sc1
    buffer_store_dwordx4 v[64:67], v{vT2}, {srd(sWS)}, s{s0} offen offset:1024 sc1
    """)

    a("L_taskw:\ns_waitcnt vmcnt(0)\nL_taskd:")
    signal(SY_M2)
    stamp(2)
    a("s_branch L_preB")

    FR, XB, ACC = 16, 80, 104
    vSL0, vSL1, vSH0, vSH1 = 8, 9, 10, 11
    def selregs(lo):
        a(f"""
        v_and_b32 v{vT0}, 3, v{vL}
        v_mov_b32 v{vT1}, 0x0c0c0c0c
        v_mov_b32 v{vT2}, 0x0c0c0302
        v_mov_b32 v{vT3}, 0x03020c0c
        v_cmp_eq_u32 s[58:59], 0, v{vT0}
        v_cmp_eq_u32 s[60:61], 2, v{vT0}
        v_cmp_eq_u32 vcc, 1, v{vT0}
        v_cndmask_b32 v{vSH0}, v{vT1}, v{vT2}, s[58:59]
        v_cndmask_b32 v{vSH1}, v{vT1}, v{vT2}, s[60:61]
        v_cndmask_b32 v{vSH0}, v{vSH0}, v{vT3}, vcc
        v_cmp_eq_u32 vcc, 3, v{vT0}
        s_nop 1
        v_cndmask_b32 v{vSH1}, v{vSH1}, v{vT3}, vcc
        """)
        if lo:
            a(f"v_and_b32 v{vSL0}, 0xfdfdfdfd, v{vSH0}\nv_and_b32 v{vSL1}, 0xfdfdfdfd, v{vSH1}")
    vXa, vQw, vMo = 12, 13, 14
    IDX = 104
    a(f"""
    L_preA:
    s_mul_i32 s{s0}, s{sBeta}, 640
    s_add_u32 s62, s{pESRC}, s{s0}
    s_addc_u32 s63, s{pESRC+1}, 0
    s_lshl_b32 s{s1}, s{sW}, 6
    s_lshr_b32 s{s2_}, s{sW}, 2
    s_lshl_b32 s{s2_}, s{s2_}, 6
    s_and_b32 s{s3_}, s{sW}, 3
    s_lshl_b32 s{s3_}, s{s3_}, 3
    s_add_u32 s{s2_}, s{s2_}, s{s3_}
    s_add_u32 s{s2_}, s{s2_}, 512
    s_add_u32 s{s3_}, s{s2_}, 32
    s_load_dwordx16 s[32:47], s[62:63], s{s1}
    s_load_dwordx2 s[64:65], s[62:63], s{s2_}
    s_load_dwordx2 s[66:67], s[62:63], s{s3_}
    s_barrier
    s_setprio {prioE}
    """)
    def xaload():
        a(f"""
        v_and_b32 v{vT2}, 32, v{vL}
        v_lshl_add_u32 v{vT1}, v{vT2}, 7, v{vM16}
        v_lshl_add_u32 v{vT2}, v{vT2}, 6, v{vM16}
        s_add_u32 s{s0}, s{sW}, s{sNB}
        s_mul_i32 s{s1}, s{sW}, {PITCH}
        s_add_u32 m0, s{s1}, {L_R1}
        s_lshl_b32 s{s0}, s{s0}, 9
        buffer_load_dwordx4 v{vT1}, {srd(sX)}, s{s0} offen lds
        s_add_u32 m0, s{s1}, {L_R1 + 8*PITCH}
        s_add_u32 s{s0}, s{s0}, 8192
        buffer_load_dwordx4 v{vT1}, {srd(sX)}, s{s0} offen lds
        s_cmp_ge_u32 s{sW}, 4
        s_cbranch_scc1 L_xa2
        s_add_u32 m0, s{s1}, {L_R1 + 16*PITCH}
        s_add_u32 s{s0}, s{s0}, 8192
        buffer_load_dwordx4 v{vT2}, {srd(sX)}, s{s0} offen lds
        L_xa2:
        """)
    if xa_at == 0: xaload()
    fragaddr()
    mksrd(sOUT, pOUT, 10000 * 512)
    a(f"""
    v_lshlrev_b32 v{vMo}, 4, v{vL}
    v_add_u32 v{vXa}, {L_R1}, v{vFrag}
    s_lshl_b32 s{s3_}, s{sW}, 6
    s_add_u32 s{s3_}, s{s3_}, {L_R2}
    v_add_u32 v{vQw}, s{s3_}, v{vFrag}
    s_mul_i32 s{s2_}, s{sW}, {2*PITCH}
    s_mul_i32 s{s3_}, s{sW}, {TILE}
    s_waitcnt lgkmcnt(0)
    """)
    for h in range(2):
        for u in range(10):
            src = 32 + 8 * h + u if u < 8 else 64 + 2 * h + u - 8
            a(f"v_lshl_add_u32 v{IDX+u}, s{src}, 9, v{vM16}")
        a("s_mov_b32 exec_lo, 0" if h == 0 else "s_mov_b64 exec, -1")
    stamp(1)
    def eload(u, lim=None):
        if dbg & 8: return
        a(f"s_add_u32 m0, s{s3_}, {L_E + u*PITCH}" if u < 8 else f"s_add_u32 m0, s{s2_}, {L_E + 8*TILE + (u-8)*PITCH}")
        a(f"s_waitcnt vmcnt({min(thr, 63) if lim is None else lim})\nbuffer_load_dwordx4 v{IDX+u}, {srd(sX)}, 0 offen lds")
    HALF = 8 * 4160
    def stage(ptr, dst, raw, sy_l, sy_r, pre=None, mid=None):
        base(sT1, ptr, 131072)
        a(f"""
        v_and_b32 v{vT1}, 15, v{vL}
        v_lshlrev_b32 v{vT1}, 2, v{vT1}
        v_lshrrev_b32 v{vT3}, 4, v{vL}
        v_mul_u32_u24 v{vT3}, 4160, v{vT3}
        s_lshl_b32 s{s0}, s{sJ}, 6
        v_add3_u32 v{vT3}, v{vT3}, v{vT1}, s{s0}
        v_lshlrev_b32 v{vT2}, 4, v{vL}
        s_lshl_b32 s{sFo}, s{sJ}, 12
        s_mul_i32 s{sTc}, s{sJ}, 4160
        """)
        def issue(n):
            a(f"s_add_u32 m0, s{sTc}, {L_E + (n&1)*HALF}")
            a(f"s_add_u32 s{sFo}, s{sFo}, 32768" if n else "s_nop 0")
            for q in range(4):
                a(f"buffer_load_dwordx4 v{vT2}, {srd(sT1)}, s{sFo} offen offset:{q*1024} lds")
        for n in range(2):
            if pre: pre(n)
            issue(n)
        extra = mid() if mid else 0
        for n in range(4):
            a(f"s_waitcnt vmcnt({(4 if n < 3 else 0) + (extra if n < 2 else 0)})")
            signal(sy_l)
            wait(sy_l, 8 * (n + 1))
            for b in range(2):
                for q in range(4):
                    o = ((n & 1) * 2 + b) * 65 + 4 * q
                    a(f"ds_read2st64_b32 {vr(raw+8*b+2*q,2)}, v{vT3} offset0:{o} offset1:{o+2}")
            signal(sy_r)
            if n < 2:
                wait(sy_r, 8 * (n + 1))
                issue(n + 2)
            else:
                a("s_waitcnt lgkmcnt(0)")
            for b in range(2):
                r, o = raw + 8 * b, dst + 16 * n + 8 * b
                for q in range(4):
                    a(f"v_perm_b32 v{o+q}, v{r+2*q+1}, v{r+2*q}, s{sSelLo}")
                    a(f"v_perm_b32 v{o+4+q}, v{r+2*q+1}, v{r+2*q}, s{sSelHi}")
    eorder = list(range(10))
    if hyb:
        if touch: wait(SY_Y, 1, sleep=1)
        stage(pWV, FR, 80, SY_LA, SY_RA)
        stamp(13)
        eorder = [8, 9] + list(range(8))
        if xa_at == 1: xaload()
    if e_at == 1: wait(SY_GO, 1, sleep=1)
    for k in range(epre):
        if hyb and k == 2: wait(SY_RA, 32)
        eload(eorder[k])
    if hyb and epre <= 2: wait(SY_RA, 32)
    a(f"""
    s_lshl_b32 s{sFo}, s{sW}, 14
    s_add_u32 s{sFo}, s{sFo}, {W_FR}
    s_waitcnt vmcnt({min(epre, thr + 1)})
    """)
    signal(SY_X)
    stamp(4)
    wait(SY_V, 8, sleep=1)
    nf = [0]
    def fload(i, reg=None):
        if i % 4 == 0 and nf[0]: a(f"s_add_u32 s{sFo}, s{sFo}, {((i//16)*131072 + (i%16)*1024) - nf[1]}")
        if i % 4 == 0: nf[:] = [1, (i // 16) * 131072 + (i % 16) * 1024]
        reg = FR + 4 * (i % 16) if reg is None else reg
        a(f"buffer_load_dwordx4 {vr(reg,4)}, v{vMo}, {srd(sWS)}, s{sFo} offen offset:{(i%4)*1024} sc1")
    def xread(s):
        for rt in range(3):
            a(f"ds_read_b128 {vr(XB+12*(s&1)+4*rt,4)}, v{vXa} offset:{rt*TILE+s*64}")
    def gemm(vm, w_is_a):
        for s in range(8):
            if s < 7: xread(s + 1)
            a(f"s_waitcnt vmcnt({vm[s]}) lgkmcnt({3 if s < 7 else 0})")
            for rt in range(3):
                for t in range(2):
                    d, f, x = vr(ACC + 8 * rt + 4 * t, 4), vr(FR + 8 * s + 4 * t, 4), vr(XB + 12 * (s & 1) + 4 * rt, 4)
                    a(f"v_mfma_f32_16x16x32_bf16 {d}, {f if w_is_a else x}, {x if w_is_a else f}, {'0' if s == 0 else d}")
    def burst(mat):
        a(f"s_setprio {prioL}")
        for i in range(16): fload(16 * mat + i)
        a(f"s_setprio {prioA}")
        stamp(mat + 1)
    stamp(5)
    if dbg & 1: a("s_branch L_end")
    if ftouch:
        a(f"""
        s_and_b32 s{s0}, s2, 0xf8
        s_add_u32 s{s0}, s{s0}, s{sW}
        v_mul_u32_u24 v{vT1}, 248, v{vL}
        v_add_u32 v{vT1}, s{s0}, v{vT1}
        v_cmpx_gt_u32 vcc, {2048 if hyb else 3072}, v{vT1}
        s_mov_b32 s{s0}, {W_FR}
        """)
        if hyb: a(f"v_and_b32 v{vT2}, 1024, v{vT1}\nv_add_u32 v{vT1}, v{vT1}, v{vT2}")
        a(f"""
        v_lshlrev_b32 v{vT1}, 7, v{vT1}
        buffer_load_dword v15, v{vT1}, {srd(sWS)}, s{s0} offen sc1
        s_mov_b64 exec, -1
        """)
        if ftouch == 2: a("s_waitcnt vmcnt(0)")
    ne = 0 if dbg & 8 else 10 - epre
    a(f"s_setprio {prioL}")
    if not hyb:
        seq = []
        for s in range(8):
            seq += [("e", epre + k) for k in range(s * ne // 8, (s + 1) * ne // 8)] + [("f", 2 * s), ("f", 2 * s + 1)]
        for kind, i in seq: (eload if kind == "e" else fload)(i)
        a(f"s_setprio {prioA}")
        wait(SY_X, 8)
        xread(0)
        gemm([len(seq) - 1 - seq.index(("f", 2 * s + 1)) for s in range(8)], True)
        a("s_nop 3")
    else:
        MR, XQ = 80, [96, 100, 4, 8]
        for k in range(epre, epre + ne): eload(eorder[k], 63)
        for i in range(4): fload(i, MR + 4 * i)
        wait(SY_X, 8)
        def xq(n): a(f"ds_read_b128 {vr(XQ[n%4],4)}, v{vXa} offset:{(n%3)*TILE+(n//3)*64}")
        for n in range(3): xq(n)
        for n in range(24):
            s, rt = n // 3, n % 3
            if n + 3 < 24: xq(n + 3)
            vm = f"vmcnt({2 if s < 7 else 0}) " if rt == 0 else ""
            a(f"s_waitcnt {vm}lgkmcnt({min(3, 23-n)})")
            for t in range(2):
                d = vr(ACC + 8 * rt + 4 * t, 4)
                a(f"v_mfma_f32_16x16x32_bf16 {d}, {vr(MR+8*(s&1)+4*t,4)}, {vr(XQ[n%4],4)}, {'0' if s == 0 else d}")
            if rt == 2 and s < 6:
                for t in range(2): fload(2 * s + 4 + t, MR + 8 * (s & 1) + 4 * t)
        a(f"s_setprio {prioA}\ns_nop 1")
    for rt in range(3):
        d0, d1, o = ACC + 8 * rt, ACC + 8 * rt + 4, XB + 4 * rt
        a(f"""
        v_cvt_pk_bf16_f32 v{o}, v{d0}, v{d0+1}
        v_cvt_pk_bf16_f32 v{o+1}, v{d0+2}, v{d0+3}
        v_cvt_pk_bf16_f32 v{o+2}, v{d1}, v{d1+1}
        v_cvt_pk_bf16_f32 v{o+3}, v{d1+2}, v{d1+3}
        ds_write_b128 v{vQw}, {vr(o,4)} offset:{rt*TILE}
        """)
    signal(SY_A)
    stamp(6)
    if not hyb: burst(1)
    selregs(True)

    vEa, vQa, vEr, vAw = 12, 13, 14, 2
    sG = sK
    P, RB, AJ = 80, 80, 112
    DK = [120, 124, 4, 12]
    a(f"s_mov_b32 s{sG}, s{sW}")
    def gsetup():
        a(f"""
        s_mul_i32 s{s0}, s{sG}, {TILE}
        s_lshr_b32 s{s1}, s{sG}, 2
        s_mul_i32 s{s1}, s{s1}, {TILE}
        s_and_b32 s{s2_}, s{sG}, 1
        s_bfe_u32 s{s3_}, s{sG}, 0x10001
        s_cmp_ge_u32 s{sG}, 8
        s_cselect_b32 s{s3_}, s{s2_}, s{s3_}
        s_cselect_b32 s{s2_}, 0, s{s2_}
        s_mul_i32 s{s2_}, s{s2_}, {TILE//2}
        s_lshl_b32 s{s3_}, s{s3_}, 9
        s_add_u32 s{s1}, s{s1}, s{s2_}
        s_add_u32 s{s1}, s{s1}, s{s3_}
        s_add_u32 s{s1}, s{s1}, {L_R2}
        v_add_u32 v{vEa}, s{s0}, v{vFrag}
        v_bfe_u32 v{vT0}, v{vL}, 2, 2
        v_mul_u32_u24 v{vT0}, {PITCH}, v{vT0}
        v_and_b32 v{vT1}, 48, v{vL}
        v_add3_u32 v{vQa}, v{vT0}, v{vT1}, s{s1}
        v_lshl_add_u32 v{vEr}, v{vL}, 3, s{s0}
        v_lshl_add_u32 v{vAw}, v{vL}, 3, s{s1}
        """)
    a("L_grp:")
    gsetup()
    a(f"s_cmp_ge_u32 s{sG}, 8\ns_cbranch_scc1 L_grp2")
    wait(SY_A, 8)
    a("L_grp2:\ns_waitcnt lgkmcnt(0)")
    def pread(s):
        a(f"ds_read_b128 {vr(P+8*(s%6),4)}, v{vEa} offset:{s*64}")
        a(f"ds_read_b128 {vr(P+8*(s%6)+4,4)}, v{vQa} offset:{s*64}")
    for s in range(6): pread(s)
    for s in range(8):
        a(f"s_waitcnt lgkmcnt({10 if s < 3 else 14-2*s})")
        a(f"v_mfma_f32_16x16x32_bf16 v[4:7], {vr(P+8*(s%6),4)}, {vr(P+8*(s%6)+4,4)}, {'0' if s == 0 else 'v[4:7]'}")
        if s < 2: pread(s + 6)
    order = [(j, k) for j in (2, 3, 0, 1) for k in range(4)]
    for n, (j, k) in enumerate(order):
        i = 4 * k + j
        if n == 15: a("s_waitcnt lgkmcnt(14)")
        a(f"ds_read_b64 {vr(RB+8*j+2*k,2)}, v{vEr} offset:{(i&7)*PITCH+(i>>3)*512}")
    a(f"""
    v_mul_f32 v4, 0x3db8aa3b, v4
    v_mul_f32 v5, 0x3db8aa3b, v5
    v_mul_f32 v6, 0x3db8aa3b, v6
    v_mul_f32 v7, 0x3db8aa3b, v7
    v_exp_f32 v4, v4
    v_exp_f32 v5, v5
    v_exp_f32 v6, v6
    v_exp_f32 v7, v7
    v_add_f32 v12, v4, v5
    v_add_f32 v13, v6, v7
    v_add_f32 v12, v12, v13
    v_add_f32 v12, 0x3089705f, v12
    v_rcp_f32 v12, v12
    s_add_u32 s{sG}, s{sG}, 8
    v_mul_f32 v4, v4, v12
    v_mul_f32 v5, v5, v12
    v_mul_f32 v6, v6, v12
    v_mul_f32 v7, v7, v12
    v_cvt_pk_bf16_f32 v4, v4, v5
    v_cvt_pk_bf16_f32 v6, v6, v7
    """)
    for j in range(4):
        src = 4 + (j & 2)
        a(f"v_perm_b32 v{AJ+2*j}, v{src}, v{src}, v{vSH0 if j & 1 else vSL0}")
        a(f"v_perm_b32 v{AJ+2*j+1}, v{src}, v{src}, v{vSH1 if j & 1 else vSL1}")
    a("s_waitcnt lgkmcnt(0)")
    for j in range(4):
        for k in range(4):
            d = vr(DK[k], 4)
            a(f"v_mfma_f32_4x4x4_16b_bf16 {d}, {vr(AJ+2*j,2)}, {vr(RB+8*j+2*k,2)}, {'0' if j == 0 else d} cbsz:4 abid:{5*k}")
    a("s_nop 1")
    for k in range(4):
        d = DK[k]
        a(f"""
        v_cvt_pk_bf16_f32 v{AJ+2*k}, v{d}, v{d+1}
        v_cvt_pk_bf16_f32 v{AJ+2*k+1}, v{d+2}, v{d+3}
        ds_write_b64 v{vAw}, {vr(AJ+2*k,2)} offset:{k*PITCH}
        """)
    a(f"s_cmp_lt_u32 s{sG}, 10\ns_cbranch_scc1 L_grp")
    signal(SY_B)
    stamp(7)
    vOo, vOo2 = 8, 9
    a(f"""
    v_add_u32 v{vXa}, {L_R2}, v{vFrag}
    v_lshlrev_b32 v{vMo}, 4, v{vL}
    v_and_b32 v{vT2}, 15, v{vL}
    v_lshlrev_b32 v{vT2}, 2, v{vT2}
    v_and_b32 v{vT1}, 48, v{vL}
    v_lshl_add_u32 v{vOo}, v{vT1}, 7, v{vT2}
    v_and_b32 v{vT1}, 32, v{vL}
    v_lshl_add_u32 v{vOo2}, v{vT1}, 6, v{vT2}
    v_and_b32 v{vT1}, 16, v{vL}
    v_lshl_add_u32 v{vOo2}, v{vT1}, 22, v{vOo2}
    s_lshl_b32 s{s2_}, s{sNB}, 9
    s_lshl_b32 s{s3_}, s{sW}, 6
    s_add_u32 s{s2_}, s{s2_}, s{s3_}
    """)
    wait(SY_B, 8)
    xread(0)
    gemm([14 - 2 * s for s in range(8)], False)
    stamp(8)
    if not park: burst(2)
    else:
        signal(SY_H)
        a(f"""
        v_and_b32 v{vT1}, 15, v{vL}
        v_lshlrev_b32 v{vT1}, 2, v{vT1}
        v_and_b32 v{vT2}, 16, v{vL}
        v_lshl_add_u32 v{vT1}, v{vT2}, 2, v{vT1}
        s_lshl_b32 s{s0}, s{sW}, 6
        v_add_u32 v{vT1}, s{s0}, v{vT1}
        v_and_b32 v{vT1}, 0x1ff, v{vT1}
        v_and_b32 v{vT2}, 48, v{vL}
        v_lshl_add_u32 v{vT1}, v{vT2}, 8, v{vT1}
        v_add_u32 v{vT2}, 0x10000, v{vT1}
        """)
        wait(SY_D, 8, sleep=1, cap=0x1000000)
        stamp(3)
        def wread(n):
            for q in range(4):
                o = (n & 3) * 64 + 4 * q
                a(f"ds_read2st64_b32 {vr(FR+8*(n+1)+2*q,2)}, v{vT1 if n < 4 else vT2} offset0:{o} offset1:{o+2}")
        for n in range(3): wread(n)
        for n in range(8):
            a(f"s_waitcnt lgkmcnt({4*min(2, 7-n)})")
            if n + 3 < 8: wread(n + 3)
            r, o = FR + 8 * (n + 1), FR + 8 * n
            for q in range(4):
                a(f"v_perm_b32 v{o+q}, v{r+2*q+1}, v{r+2*q}, s{sSelLo}")
                a(f"v_perm_b32 v{o+4+q}, v{r+2*q+1}, v{r+2*q}, s{sSelHi}")
        stamp(13)
    a(f"v_add_u32 v{vXa}, {L_R3}, v{vFrag}")
    for rt in range(3):
        wait(SY_T + 4 * rt, 16 if rt < 2 else 8, sleep=1 if rt < 2 else 0, cap=0x1000000)
        if rt == 2: stamp(10)
        for s in range(6):
            a(f"ds_read_b128 {vr(XB+4*s,4)}, v{vXa} offset:{rt*TILE+s*64}")
        for s in range(8):
            vm = f"vmcnt({14-2*s}) " if rt == 0 else ""
            a(f"s_waitcnt {vm}lgkmcnt({5 if s < 3 else 7-s})")
            for t in range(2):
                d = vr(ACC + 8 * rt + 4 * t, 4)
                a(f"v_mfma_f32_16x16x32_bf16 {d}, {vr(XB+4*(s%6),4)}, {vr(FR+8*s+4*t,4)}, {d}")
            if s < 2: a(f"ds_read_b128 {vr(XB+4*s,4)}, v{vXa} offset:{rt*TILE+(s+6)*64}")
        a("s_nop 7")
        for r in range(4):
            d = ACC + 8 * rt
            a(f"""
            v_cvt_pk_bf16_f32 v{d+r}, v{d+r}, v{d+4+r}
            buffer_store_dword v{d+r}, v{vOo if rt < 2 else vOo2}, {srd(sOUT)}, s{s2_} offen offset:{r*512}{['', ' sc1', ' nt', ' sc0 sc1', ' sc1 nt'][ost]}
            """)
        if rt < 2: a(f"s_add_u32 s{s2_}, s{s2_}, 8192")
        if rt == 0: stamp(9)
    stamp(11)
    if stamps: a("s_waitcnt vmcnt(0)")
    stamp(12)
    a("s_branch L_end")

    EV, LA, RK, WV = 16, 24, 32, 40
    vDis, vRow, vSl, vEnt, vAad, vFo = 8, 9, 12, 13, 14, 15
    vCnt, vEa2, vKey, vSuf, vC4, vR3, vCb, vOfa, vLb, vSub, vOf = 48, 49, 50, 51, 52, 53, 54, 55, 56, 57, 58
    def bsetup():
        selregs(False)
        a(f"""
        s_lshl_b32 s{s0}, s{sJ}, 5
        v_lshrrev_b32 v{vT1}, 1, v{vL}
        v_add_u32 v{vT1}, s{s0}, v{vT1}
        v_cmp_gt_u32 vcc, {NWG}, v{vT1}
        v_and_b32 v{vSub}, 1, v{vL}
        s_mov_b64 s[64:65], vcc
        v_lshlrev_b32 v{vOfa}, 10, v{vT1}
        v_mul_u32_u24 v{vEa2}, {EPW*4}, v{vT1}
        v_lshl_add_u32 v{vEa2}, v{vSub}, 4, v{vEa2}
        v_lshlrev_b32 v{vSub}, 2, v{vSub}
        v_lshrrev_b32 v{vT1}, 3, v{vL}
        v_and_b32 v{vT2}, 7, v{vL}
        v_cmp_gt_u32 s[62:63], 5, v{vT2}
        v_lshl_add_u32 v{vKey}, v{vT2}, 3, v{vT1}
        v_mul_u32_u24 v{vLb}, {CAP*8}, v{vT1}
        v_add_u32 v{vLb}, {L_LIST + CAP*8}, v{vLb}
        v_lshrrev_b32 v{vT1}, 4, v{vKey}
        v_mul_u32_u24 v{vRow}, {TILE}, v{vT1}
        v_lshl_add_u32 v{vRow}, v{vT1}, 26, v{vRow}
        v_cmp_le_u32 vcc, 32, v{vKey}
        v_and_b32 v{vT1}, 7, v{vKey}
        v_and_b32 v{vT2}, 3, v{vKey}
        v_cndmask_b32 v{vT1}, v{vT1}, v{vT2}, vcc
        v_mul_u32_u24 v{vT1}, {PITCH}, v{vT1}
        v_bfe_u32 v{vT2}, v{vKey}, 3, 1
        v_bfe_u32 v{vT3}, v{vKey}, 2, 1
        v_cndmask_b32 v{vT2}, v{vT2}, v{vT3}, vcc
        v_lshl_add_u32 v{vT1}, v{vT2}, 9, v{vT1}
        v_mov_b32 v{vR3}, {L_R3}
        v_add3_u32 v{vRow}, v{vRow}, v{vT1}, v{vR3}
        v_lshrrev_b32 v{vT1}, 5, v{vL}
        v_lshl_add_u32 v{vFo}, v{vT1}, 3, v{vM16}
        v_mov_b32 v{vC4}, 4
        s_lshl_b32 s{s0}, s{sNB}, 2
        s_sub_u32 s{s0}, {L_CNT}, s{s0}
        v_mov_b32 v{vCb}, s{s0}
        v_add_u32 v{vT1}, s{sNB}, v{vKey}
        v_lshl_add_u32 v{vDis}, v{vT1}, 1, v{vR3}
        v_lshlrev_b32 v{vKey}, 2, v{vKey}
        v_add_u32 v{vKey}, {L_CNT}, v{vKey}
        s_lshl_b32 s{s2_}, s{sBeta}, 2
        s_mov_b32 s{s3_}, {W_ENT}
        v_mov_b64 {vr(vOf,2)}, 0
        """)
        for j in range(0, 8, 2): a(f"v_mov_b64 {vr(EV+j,2)}, 0")
    PARK, sThr, vFlag = 64, 41, 1
    a(f"L_preB:\ns_setprio {prioP}")
    if park:
        base(sT1, pWL, 131072)
        if touch: wait(SY_Y, 1, sleep=1)
        a(f"v_lshlrev_b32 v{vT1}, 4, v{vL}\ns_lshl_b32 s{s0}, s{sJ}, 14\ns_mov_b32 s{sThr}, 8")
        for i in range(16):
            if i % 4 == 0 and i: a(f"s_add_u32 s{s0}, s{s0}, 4096")
            if i >= pd: a(f"s_waitcnt vmcnt({pd-1})")
            a(f"buffer_load_dwordx4 {vr(PARK+4*i,4)}, v{vT1}, {srd(sT1)}, s{s0} offen offset:{(i%4)*1024}")
    a("s_setprio 3")
    bsetup()
    wait(SY_GO, 1, sleep=1)
    a(f"v_readfirstlane_b32 s{sTag}, v{vT0}")
    stamp(4)
    if sleep0: a(f"s_sleep {sleep0}")
    a(f"""
    s_mov_b32 s{s1}, 0
    s_mov_b64 exec, s[64:65]
    s_bitset0_b32 s{sTag}, 0
    L_spoll:
    buffer_load_dwordx2 {vr(vOf,2)}, v{vOfa}, {srd(sWS)}, s{s2_} offen sc1
    s_add_u32 s{s1}, s{s1}, 1
    s_cmp_gt_u32 s{s1}, 0x40000
    s_cbranch_scc1 L_end
    s_waitcnt vmcnt(0)
    v_xor_b32 v{vOf}, s{sTag}, v{vOf}
    v_xor_b32 v{vOf+1}, s{sTag}, v{vOf+1}
    v_or_b32 v{vT1}, v{vOf}, v{vOf+1}
    v_cmpx_lt_u32 vcc, 0x3ff, v{vT1}
    s_cbranch_execz L_sok
    s_sleep {psleep}
    s_branch L_spoll
    L_sok:
    s_mov_b64 exec, -1
    v_lshl_add_u32 v{vEa2}, v{vOf}, 2, v{vEa2}
    v_sub_u32 v{vCnt}, v{vOf+1}, v{vOf}
    v_sub_u32 v{vCnt}, v{vCnt}, v{vSub}
    """)
    if stamps: a(f"s_mov_b32 s{ST0+11}, s{ST0+1}\ns_add_u32 s{ST0+10}, s{ST0}, s{s1}")
    stamp(6)
    for q in range(2):
        a(f"""
        v_cmpx_lt_i32 vcc, {8*q}, v{vCnt}
        s_cbranch_execz L_entld
        buffer_load_dwordx4 {vr(EV+4*q,4)}, v{vEa2}, {srd(sWS)}, s{s3_} offen offset:{32*q} sc1
        """)
    a(f"""
    v_cmpx_lt_i32 vcc, 16, v{vCnt}
    s_cbranch_execz L_entld
    ds_write_b32 v{vSy}, v{vC4} offset:{SY_OV}
    L_entld:
    """)
    signal(SY_V)
    a("s_waitcnt vmcnt(0)")
    stamp(7)
    TH = (0, 1, 2, 3, 8, 9, 10, 11)
    def ladder(lab, body, key):
        for j in range(8):
            a(key(j))
            if j >= 4: a(f"s_cbranch_execz {lab}")
            if j == 4: a("s_waitcnt lgkmcnt(2)")
            body(j)
        a(f"{lab}:\ns_mov_b64 exec, -1")
    live = lambda j: f"v_cmpx_lt_i32 vcc, {TH[j]}, v{vCnt}"
    ladder("L_l1", lambda j: a(f"""
        v_mad_u32_u16 v{LA+j}, v{EV+j}, 4, v{vCb} op_sel:[1,0,0,0]
        ds_add_rtn_u32 v{RK+j}, v{LA+j}, v{vC4}
        """), live)
    signal(SY_C1)
    for j in range(8): a(f"v_mad_u32_u16 v{WV+j}, v{EV+j}, 2, v{vR3}")
    wait(SY_C1, 8)
    a(f"""
    ds_read_b32 v{vSl}, v{vKey}
    ds_read_b32 v{vT1}, v{vSy} offset:{SY_OV}
    ds_read_u16 v{vDis}, v{vDis}
    """)
    for j in range(8): a(f"ds_read_u16 v{WV+j}, v{WV+j}")
    a(f"""
    s_lshl_b32 s{s0}, s2, 4
    s_add_u32 s{s0}, s{s0}, s{sW}
    s_cmp_eq_u32 s{s0}, 15
    s_cbranch_scc0 L_noep
    v_mov_b32 v{vT2}, s{sTag}
    v_mov_b32 v{vT3}, {W_EP}
    s_mov_b64 exec, 1
    buffer_store_dword v{vT2}, v{vT3}, {srd(sWS)}, 0 offen sc1
    s_mov_b64 exec, -1
    L_noep:
    s_waitcnt lgkmcnt(10)
    v_add_u32 v{vSl}, 4, v{vSl}
    v_lshrrev_b32 v{vSl}, 3, v{vSl}
    v_max_u32 v{vSl}, 1, v{vSl}
    v_cndmask_b32 v{vSl}, 0, v{vSl}, s[62:63]
    s_lshl_b32 s{sPad}, s{sJ}, 3
    s_nop 0
    v_add_u32_dpp v{vSuf}, v{vSl}, v{vSl} row_shl:1 row_mask:0xf bank_mask:0xf bound_ctrl:1
    s_nop 1
    v_add_u32_dpp v{vSuf}, v{vSuf}, v{vSuf} row_shl:2 row_mask:0xf bank_mask:0xf bound_ctrl:1
    s_nop 1
    v_add_u32_dpp v{vSuf}, v{vSl}, v{vSuf} row_shl:4 row_mask:0xf bank_mask:0x5 bound_ctrl:1
    s_waitcnt lgkmcnt(0)
    v_lshlrev_b32 v{vDis}, 16, v{vDis}
    v_lshl_add_u32 v{vT1}, v{vT1}, 10, v{vSuf}
    v_lshlrev_b32 v{vT3}, 3, v{vSuf}
    v_cmp_le_u32 vcc, {CAP}, v{vT1}
    v_sub_u32 v{vT2}, v{vLb}, v{vT3}
    v_subrev_u32 v{vSl}, 1, v{vSl}
    s_cbranch_vccnz L_slow
    s_mov_b64 exec, s[62:63]
    ds_write_b32 v{vKey}, v{vT2} offset:{L_BASE-L_CNT}
    s_mov_b64 exec, -1
    s_sub_u32 s{sK}, s{sPad}, 1
    v_readlane_b32 s{sPad}, v{vSuf}, s{sPad}
    """)
    ladder("L_l2", lambda j: a(f"ds_read_b32 v{LA+j}, v{LA+j} offset:{L_BASE-L_CNT}"), live)
    a(f"s_lshr_b32 s{sRnd}, s{sPad}, {R.bit_length()-1}" if R != 24 else f"s_mul_i32 s{sRnd}, s{sPad}, 2731\ns_lshr_b32 s{sRnd}, s{sRnd}, 16")
    a(f"""
    s_add_u32 s{s2_}, s{sRnd}, 1
    s_mul_i32 s{s2_}, s{s2_}, {R}
    s_sub_u32 s{sPad}, s{s2_}, s{sPad}
    s_sub_u32 s{sRem}, s{sPad}, 1
    s_add_u32 s{s3_}, s{sJ}, 1
    s_mul_i32 s{s3_}, s{s3_}, {CAP}
    s_sub_u32 s{s2_}, s{s3_}, s{s2_}
    s_lshl_b32 s{s2_}, s{s2_}, 3
    s_add_u32 s{s2_}, s{s2_}, {L_LIST}
    s_waitcnt lgkmcnt(0)
    """)
    def l3(j):
        if dbg & 16: a(f"v_and_b32 v{EV+j}, {gmask}, v{EV+j}")
        a(f"v_perm_b32 v{WV+j}, v{WV+j}, v{EV+j}, s{sSelLo}")
        a(f"v_add_u32 v{LA+j}, v{LA+j}, v{RK+j}\nds_write_b32 v{LA+j}, v{WV+j}")
    ladder("L_l3", l3, live)
    signal(SY_C2)
    a(f"""
    v_lshrrev_b32 v{vT1}, 5, v{vL}
    v_lshl_add_u32 v{vEnt}, v{vT1}, 2, s{s2_}
    v_bfe_u32 v{vT1}, v{vL}, 2, 3
    v_lshl_add_u32 v{vAad}, v{vT1}, 3, v{vEnt}
    s_mov_b32 s{sRow}, {L_DUMMY + (((SY_DUM - SY_T) // 4) << 26)}
    s_mov_b32 s{sDis}, 0
    """)
    wait(SY_C2, 8)
    stamp(8)
    if dbg & 4: a(f"v_mov_b32 v{vT0}, 64\nds_write_b32 v{vSy}, v{vT0} offset:{SY_T}\nds_write_b32 v{vSy}, v{vT0} offset:{SY_T+4}\nds_write_b32 v{vSy}, v{vT0} offset:{SY_T+8}\ns_branch L_end")
    a(f"s_setprio {prioB}")
    if byoung: a(f"s_cmp_lt_u32 s{sJ}, 4\ns_cbranch_scc1 L_old\ns_setprio {prioB+1}\nL_old:")

    RING, ENT, GACC = (16, 48, 56) if park else (16, 112, 120)
    assert not park or R == 8
    vA0, vAraw, vAd = vT2, vT1, vT0
    def entread(slot):
        a(f"ds_read2_b32 {vr(ENT+(slot&7),2)}, v{vEnt} offset0:{2*slot} offset1:{2*slot+2}")
    def gload(t, pro=False):
        a(f"""
        v_mad_u32_u16 v{vAd}, v{ENT+(t&7)}, s{sC512}, v{vM16}
        {f's_waitcnt vmcnt({D-1})' if pro and D < R and t >= D else ''}
        buffer_load_dwordx4 {vr(RING+4*t,4)}, v{vAd}, {srd(sX)}, 0 offen{' nt' if gnt else ''}
        """)
    for g in range(R // 8):
        nx = a.label("Lpg")
        a(f"s_cmp_ge_u32 s{sPad}, {8*g+8}\ns_cbranch_scc1 {nx}")
        for i in range(0, 8, 2): entread(8 * g + i)
        a("s_waitcnt lgkmcnt(0)")
        for t in range(8 * g, 8 * g + 8):
            if t % 8 < 7:
                sk = a.label("Lps")
                a(f"s_cmp_gt_u32 s{sPad}, {t}\ns_cbranch_scc1 {sk}")
                gload(t, True)
                a(f"{sk}:")
            else:
                gload(t, True)
        a(f"{nx}:")
    a(f"ds_read_b32 v{vAraw}, v{vAad}")
    for i in range(0, 8, 2): entread(R + i)
    stubs = []
    def consume(t, tag, vm, steady):
        if t % 8 == 0:
            a(f"""
            s_waitcnt lgkmcnt({3 if steady else 0})
            v_perm_b32 v{vA0}, v{vAraw}, v{vAraw}, v{vSH0}
            v_perm_b32 v{vA0+1}, v{vAraw}, v{vAraw}, v{vSH1}
            ds_read_b32 v{vAraw}, v{vAad} offset:{8*(t+8)}
            s_waitcnt vmcnt({vm})
            """)
        elif steady and t % 2 == 0:
            a(f"s_waitcnt vmcnt({vm}) lgkmcnt(3)")
        else:
            a(f"s_waitcnt vmcnt({vm})")
        for h in range(2):
            d = vr(GACC + 4 * h, 4)
            if not dbg & 2: a(f"v_mfma_f32_4x4x4_16b_bf16 {d}, {vr(vA0,2)}, {vr(RING+4*t+2*h,2)}, {d} cbsz:3 abid:{t&7}")
        a(f"s_sub_u32 s{sRem}, s{sRem}, 1\ns_cbranch_scc1 Lf{tag}_{t}\nLb{tag}_{t}:")
        stubs.append((f"Lf{tag}_{t}", f"Lb{tag}_{t}"))
    a(f"s_cmp_eq_u32 s{sRnd}, 0\ns_cbranch_scc1 L_drain\nL_gl:")
    for t in range(R):
        consume(t, "s", D - 1, True)
        gload(t)
        if park and t == 0: a(f"ds_read_b32 v{vFlag}, v{vSy} offset:{SY_H}")
        if park and t == 6: a(f"v_cmp_le_u32 vcc, s{sThr}, v{vFlag}\ns_cbranch_vccnz L_dump1\nL_dumpb:")
        if t % 2 == 1: entread(R + 8 + t - 1)
    a(f"""
    v_add_u32 v{vEnt}, {8*R}, v{vEnt}
    v_add_u32 v{vAad}, {8*R}, v{vAad}
    s_sub_u32 s{sRnd}, s{sRnd}, 1
    s_cmp_lg_u32 s{sRnd}, 0
    s_cbranch_scc1 L_gl
    L_drain:
    """)
    for t in range(R):
        consume(t, "d", R - 1 - t, False)
    a("L_gdone:")
    if park:
        a(f"s_cmp_eq_u32 s{sThr}, 8\ns_cbranch_scc0 L_dumped")
        wait(SY_H, 8, sleep=2)
        a(f"s_call_b64 {pr(sRet)}, L_dump\nL_dumped:")
    if stamps and not fst: stamp(9)
    if stamps and fst:
        a("s_nop 1")
        for k in range(5): a(f"v_readlane_b32 s{ST0+18+2*k}, v100, {k+1}\ns_mov_b32 s{ST0+19+2*k}, s45")
    a("L_end:")
    if probe >= 0:
        a(f"""
        s_cmp_eq_u32 s{sW}, {pw}
        s_cbranch_scc0 L_noprobe
        s_sub_u32 s{s0}, s{ST0+2*probe}, s{ST0}
        s_min_u32 s{s0}, s{s0}, 20000
        s_mul_i32 s{s0}, s{s0}, {pk}
        s_memrealtime s[60:61]
        L_probe:
        s_memrealtime s[62:63]
        s_waitcnt lgkmcnt(0)
        s_sub_u32 s62, s62, s60
        s_cmp_lt_u32 s62, s{s0}
        s_cbranch_scc1 L_probe
        L_noprobe:
        """)
    if stamps:
        a(f"""
        s_mov_b64 exec, -1
        s_add_u32 s{sT1}, s{sWS}, {STAMP_OFF}
        s_addc_u32 s{sT1+1}, s{sWS+1}, 0
        s_mov_b32 s{sT1+2}, 0x1000000
        s_mov_b32 s{sT1+3}, 0x20000
        s_lshl_b32 s{s0}, s2, 4
        s_add_u32 s{s0}, s{s0}, s{sW}
        s_mul_i32 s{s0}, s{s0}, {NSTAMP*8}
        v_lshlrev_b32 v4, 2, v0
        v_mov_b32 v6, 0
        """)
        for i in range(2 * NSTAMP): a(f"v_writelane_b32 v6, s{ST0+i}, {i}")
        if not nostore: a(f"s_bfm_b64 exec, {2*NSTAMP}, 0\nbuffer_store_dword v6, v4, {srd(sT1)}, s{s0} offen")
    a("L_exit:\ns_endpgm")

    for f, b in stubs:
        a(f"{f}:\ns_call_b64 {pr(sRet)}, L_flush\ns_branch {b}")
    if park:
        a(f"""
        L_dump1:
        s_call_b64 {pr(sRet)}, L_dump
        s_branch L_dumpb
        L_dump:
        s_lshl_b32 s{s0}, s{sJ}, 14
        v_lshl_add_u32 v{vT0}, v{vL}, 4, s{s0}
        v_add_u32 v{vFlag}, 64, v{vT0}
        s_movk_i32 s{s0}, 0x1f0
        v_bfi_b32 v{vFlag}, s{s0}, v{vFlag}, v{vT0}
        s_mov_b32 s{sThr}, -1
        """)
        for i in range(16):
            if i % 8 == 0: a("s_waitcnt lgkmcnt(6)")
            a(f"ds_write_b128 v{vFlag if (i >> 2) & 1 else vT0}, {vr(PARK+4*i,4)} offset:{i*1024}")
        a("s_waitcnt lgkmcnt(6)")
        signal(SY_D)
        a(f"s_setpc_b64 {pr(sRet)}")
    G = GACC
    a(f"""
    L_flush:
    s_add_u32 s{sK}, s{sK}, 1
    s_lshr_b32 s{sTc}, s{sRow}, 24
    s_and_b32 s{sRow}, s{sRow}, 0xffffff
    v_permlane32_swap_b32 v{G}, v{G+4}
    v_permlane32_swap_b32 v{G+1}, v{G+5}
    v_permlane32_swap_b32 v{G+2}, v{G+6}
    v_permlane32_swap_b32 v{G+3}, v{G+7}
    v_add_u32 v{vAd}, s{sRow}, v{vFo}
    v_pk_add_f32 {vr(G,2)}, {vr(G,2)}, {vr(G+4,2)}
    v_pk_add_f32 {vr(G+2,2)}, {vr(G+2,2)}, {vr(G+6,2)}
    v_readlane_b32 s{sRow}, v{vRow}, s{sK}
    v_mul_f32 v{G}, s{sDis}, v{G}
    v_mul_f32 v{G+1}, s{sDis}, v{G+1}
    v_mul_f32 v{G+2}, s{sDis}, v{G+2}
    v_mul_f32 v{G+3}, s{sDis}, v{G+3}
    v_add_u32 v{G+6}, s{sTc}, v{vSy}
    v_mov_b32 v{G+7}, 1
    v_cvt_pk_bf16_f32 v{G+4}, v{G}, v{G+1}
    v_cvt_pk_bf16_f32 v{G+5}, v{G+2}, v{G+3}
    ds_write_b64 v{vAd}, {vr(G+4,2)}
    s_mov_b64 exec, 1
    ds_add_u32 v{G+6}, v{G+7} offset:{SY_T}
    s_mov_b64 exec, -1
    v_readlane_b32 s{sRem}, v{vSl}, s{sK}
    v_readlane_b32 s{sDis}, v{vDis}, s{sK}
    v_mov_b64 {vr(G,2)}, 0
    v_mov_b64 {vr(G+2,2)}, 0
    v_mov_b64 {vr(G+4,2)}, 0
    v_mov_b64 {vr(G+6,2)}, 0
    """)
    if stamps and fst: a(f"{TM} s[44:45]\ns_and_b32 m0, s{sK}, 7\ns_waitcnt lgkmcnt(0)\nv_writelane_b32 v{63 if 0 else 100}, s44, m0")
    a(f"""
    s_setpc_b64 {pr(sRet)}
    """)

    a("L_slow:\ns_setprio 0")
    signal(SY_C2)
    wait(SY_C2, 8)
    mksrd(sT1, pSRC, 640000)
    mksrd(sT2, pDST, 640000)
    mksrd(sT3, pDIS, 20000)
    a(f"""
    s_sub_u32 s{sK}, s{sPad}, 1
    s_mov_b32 s{sRow}, {L_DUMMY + (((SY_DUM - SY_T) // 4) << 26)}
    s_mov_b32 s{sDis}, 0
    s_call_b64 {pr(sRet)}, L_flush
    s_add_u32 s{sRnd}, s{sJ}, s{sNB}
    s_add_u32 s{sPad}, s{sRnd}, 40
    v_lshlrev_b32 v16, 2, v{vL}
    v_and_b32 v17, 32, v{vL}
    v_lshl_add_u32 v17, v17, 22, v{vM16}
    v_mov_b32 v24, 0
    L_sn:
    s_mov_b32 s{s2_}, 0
    L_sc:
    buffer_load_dword v18, v16, {srd(sT2)}, s{s2_} offen
    buffer_load_dword v19, v16, {srd(sT1)}, s{s2_} offen
    s_waitcnt vmcnt(0)
    v_cmp_eq_u32 vcc, s{sRnd}, v18
    s_cbranch_vccz L_sx
    L_se:
    s_ff1_i32_b64 s{s0}, vcc
    s_bitset0_b64 vcc, s{s0}
    v_readlane_b32 s{s1}, v19, s{s0}
    s_nop 0
    s_lshl_b32 s{s3_}, s{s1}, 9
    s_lshl_b32 s{s1}, s{s1}, 1
    buffer_load_dwordx4 v[20:23], v17, {srd(sX)}, s{s3_} offen
    buffer_load_short_d16_hi v{vAraw}, v24, {srd(sT3)}, s{s1} offen
    s_waitcnt vmcnt(0)
    v_perm_b32 v{vA0}, v{vAraw}, v{vAraw}, v{vSH0}
    v_perm_b32 v{vA0+1}, v{vAraw}, v{vAraw}, v{vSH1}
    s_nop 1
    v_mfma_f32_4x4x4_16b_bf16 {vr(G,4)}, {vr(vA0,2)}, v[20:21], {vr(G,4)}
    v_mfma_f32_4x4x4_16b_bf16 {vr(G+4,4)}, {vr(vA0,2)}, v[22:23], {vr(G+4,4)}
    s_cmp_lg_u64 vcc, 0
    s_cbranch_scc1 L_se
    L_sx:
    s_add_u32 s{s2_}, s{s2_}, 256
    s_cmp_lt_u32 s{s2_}, 640000
    s_cbranch_scc1 L_sc
    s_call_b64 {pr(sRet)}, L_flush
    s_add_u32 s{sRnd}, s{sRnd}, 8
    s_cmp_lt_u32 s{sRnd}, s{sPad}
    s_cbranch_scc1 L_sn
    s_branch L_gdone
    """)
    hdr = open("standalone__hybrid_graph_tf_exphormer__graph.s.ref").read().split("; Override")[0]
    text = wrap(a.text(), NWG, 1024, LDS, 128, header=hdr)
    lines = (text_size(text.replace("CODE_LINES", "100")) - 256) // 128
    assert 64 < lines < 200
    return text.replace("CODE_LINES", str(lines))


if __name__ == "__main__":
    kw = dict(x.split("=") for x in sys.argv[2:])
    kw = {k: int(v) for k, v in kw.items()}
    open(sys.argv[1], "w").write(gen(**kw))
```

```python
import sys
from asmlib import Asm, wrap, text_size

NWG, NPW, EPW = 250, 40, 640
TILE, PITCH = 8448, 1056
CAP = 80
L_E = 0
L_R1 = 10 * TILE
L_R2 = L_R1 + 2 * TILE + TILE // 2
L_R3 = L_R2 + 3 * TILE
L_OFF = L_R3 + 2 * TILE + TILE // 2
L_WGT = L_OFF + 2 * 8 * CAP * 4
L_CNT = L_WGT + 2 * 8 * CAP * 2
L_BASE = L_CNT + 160
L_SYNC = L_BASE + 160
L_HIST = L_SYNC + 64
L_SORT = L_HIST + 1024
L_DUMMY = L_SORT
LDS = L_SORT + 2560
assert LDS <= 163840, LDS
W_ENT, W_FR, W_EP, W_OFFS, WS_SIZE = 0, 0xa0000, 0x100000, 0x200000, 0x400000
REP = 0x40000
TMASK, NULLOFF = 0xfffffc00, 0x2000000
STAMP_OFF = 128 << 20
SY_X, SY_Y, SY_M, SY_C1, SY_C2, SY_A, SY_B, SY_OV, SY_GO, SY_T, SY_DUM, SY_V, SY_M2, SY_P = 0, 4, 8, 12, 16, 20, 24, 28, 32, 36, 48, 52, 56, 60


def gen(stamps=0, probe=-1, pw=0, pk=4, dbg=0, gmask=0xff, fst=0,
        thr=1, u0=4, ptrig=4, K=4, wsoff=0, fnt=0, nlow1=0, nlow2=0, psleep=8, prioA=0, prioB=1, prioL=3, prioE=2, R=8, D=0, flip=3, ost=1, wsl=1):
    D = D or R
    TM = 's_memtime' if stamps == 2 else 's_memrealtime'
    n_null, n_init = (L_WGT - L_OFF) // 16, (L_SORT - L_OFF) // 16
    a = Asm()
    sX, sT3, sWS, sOUT, sT1, sT2 = 8, 12, 16, 20, 24, 28
    pX, pSRC, pDST, pESRC, pDIS, pWL, pWQ, pWK, pWV, pOUT, pDBG, pWS = 32, 34, 36, 38, 42, 44, 46, 48, 50, 52, 54, 56
    sW, sJ, sNB, sBeta, sC512 = 3, 4, 5, 6, 7
    s0, s1, s2_, s3_ = 58, 59, 60, 61
    sRem, sK, sDis, sRow, sRnd, sPad = 62, 63, 64, 65, 66, 67
    sRet, sSelLo, sSelHi = 68, 70, 71
    sFo, sTc, sTag = 100, 101, 40
    ST0, NSTAMP = 72, 14
    vL, vFrag, vM16, vSy, vT0, vT1, vT2, vT3 = 0, 1, 2, 3, 4, 5, 6, 7

    def srd(s): return f"s[{s}:{s+3}]"
    def pr(s): return f"s[{s}:{s+1}]"
    def vr(b, n): return f"v[{b}:{b+n-1}]"
    def stamp(i):
        if stamps: a(f"{TM} {pr(ST0+2*i)}\ns_waitcnt lgkmcnt(0)")
    def base(s, p, size=None):
        a(f"s_mov_b64 {pr(s)}, {pr(p)}")
        if size: a(f"s_mov_b32 s{s+2}, {size}")
    def signal(off):
        a(f"""
        s_mov_b64 exec, 1
        v_mov_b32 v{vT0}, 1
        ds_add_u32 v{vSy}, v{vT0} offset:{off}
        s_mov_b64 exec, -1
        """)
    def wait(off, n, sleep=0, cap=0x400000):
        lp, ok = a.label("Lw"), a.label("Lk")
        a(f"""
        s_mov_b32 s{s1}, 0
        {lp}:
        ds_read_b32 v{vT0}, v{vSy} offset:{off}
        s_waitcnt lgkmcnt(0)
        v_cmp_gt_u32 vcc, {n}, v{vT0}
        s_cbranch_vccz {ok}
        """)
        if sleep: a(f"s_sleep {sleep}")
        a(f"""
        s_add_u32 s{s1}, s{s1}, 1
        s_cmp_lt_u32 s{s1}, {cap}
        s_cbranch_scc1 {lp}
        s_branch L_end
        {ok}:
        """)
    def fragaddr():
        a(f"""
        v_and_b32 v{vT0}, 7, v{vL}
        v_mul_u32_u24 v{vFrag}, {PITCH}, v{vT0}
        v_and_b32 v{vT0}, 8, v{vL}
        v_lshl_add_u32 v{vFrag}, v{vT0}, 6, v{vFrag}
        v_and_b32 v{vT0}, 48, v{vL}
        v_add_u32 v{vFrag}, v{vT0}, v{vFrag}
        """)
    def selregs(lo0, lo1, hi0=None, hi1=None):
        a(f"""
        v_and_b32 v{vT0}, 3, v{vL}
        v_mov_b32 v{vT1}, 0x0c0c0c0c
        v_mov_b32 v{vT2}, 0x0c0c0302
        v_mov_b32 v{vT3}, 0x03020c0c
        v_cmp_eq_u32 s[58:59], 0, v{vT0}
        v_cmp_eq_u32 s[60:61], 2, v{vT0}
        v_cmp_eq_u32 vcc, 1, v{vT0}
        v_cndmask_b32 v{lo0}, v{vT1}, v{vT2}, s[58:59]
        v_cndmask_b32 v{lo1}, v{vT1}, v{vT2}, s[60:61]
        v_cndmask_b32 v{lo0}, v{lo0}, v{vT3}, vcc
        v_cmp_eq_u32 vcc, 3, v{vT0}
        s_nop 1
        v_cndmask_b32 v{lo1}, v{lo1}, v{vT3}, vcc
        """)
        if hi0 is not None: a(f"v_mov_b32 v{hi0}, v{lo0}\nv_mov_b32 v{hi1}, v{lo1}")
        a(f"v_and_b32 v{lo0}, 0xfdfdfdfd, v{lo0}\nv_and_b32 v{lo1}, 0xfdfdfdfd, v{lo1}")

    a(f"s_cmp_ge_u32 s2, {NWG}\ns_cbranch_scc1 L_exit")
    if stamps:
        for i in range(NSTAMP): a(f"s_mov_b64 {pr(ST0+2*i)}, 0")
        a(f"{TM} {pr(ST0)}")
    a(f"""
    s_load_dwordx16 s[32:47], s[0:1], 0
    s_load_dwordx8 s[48:55], s[0:1], 64
    s_load_dwordx2 s[56:57], s[0:1], 96
    s_getpc_b64 s[60:61]
    s_lshr_b32 s{sBeta}, s2, 3
    v_lshl_add_u32 v1, v0, 5, s{sBeta}
    v_cmp_gt_u32 vcc, CODE_LINES, v1
    v_lshlrev_b32 v1, 7, v1
    s_and_saveexec_b64 s[58:59], vcc
    s_cbranch_execz L_nopf
    global_load_dword v123, v1, s[60:61]
    L_nopf:
    s_mov_b64 exec, -1
    v_lshrrev_b32 v1, 6, v0
    v_mov_b32 v8, {NULLOFF}
    v_readfirstlane_b32 s{sW}, v1
    v_cmp_gt_u32 vcc, {n_null}, v0
    v_lshlrev_b32 v4, 4, v0
    v_add_u32 v4, {L_OFF}, v4
    v_cndmask_b32 v8, 0, v8, vcc
    v_mov_b32 v9, v8
    v_mov_b64 v[10:11], v[8:9]
    v_cmp_gt_u32 vcc, {n_init}, v0
    s_and_saveexec_b64 s[58:59], vcc
    ds_write_b128 v4, v[8:11]
    s_mov_b64 exec, -1
    v_and_b32 v{vL}, 63, v0
    v_and_b32 v{vM16}, 31, v{vL}
    v_lshlrev_b32 v{vM16}, 4, v{vM16}
    s_and_b32 s{s1}, s2, 7
    s_mul_i32 s{s2_}, s{s1}, 31
    s_min_u32 s{s1}, s{s1}, 2
    s_add_u32 s{sBeta}, s{sBeta}, s{s2_}
    s_add_u32 s{sBeta}, s{sBeta}, s{s1}
    s_mov_b32 s{sT1+3}, 0x20000
    s_mov_b32 s{sT2+3}, 0x20000
    s_xor_b32 s{sW}, s{sW}, 8
    s_cmp_eq_u32 s{sW}, 8
    s_cbranch_scc0 L_e1
    """)
    common = f"""
    s_mul_i32 s{sNB}, s{sBeta}, {NPW}
    v_mov_b32 v{vSy}, {L_SYNC}
    s_mov_b32 s{sX+2}, {10000*512}
    s_mov_b32 s{sX+3}, 0x20000
    s_add_u32 s{sWS}, s{pWS}, {wsoff << 20}
    s_addc_u32 s{sWS+1}, s{pWS+1}, 0
    s_mov_b32 s{sWS+2}, {WS_SIZE}
    s_mov_b32 s{sWS+3}, 0x20000
    """
    SRCV, DSTV, AV, PV = 16, 26, 36, 46
    a(f"""
    s_setprio 3
    v_lshlrev_b32 v{vT1}, 4, v{vL}
    v_lshlrev_b32 v{vT2}, 3, v{vL}
    s_mul_i32 s{s0}, s2, {EPW*4}
    s_mov_b32 s{sT1+2}, 640000
    s_mov_b32 s{sT2+2}, 640000
    s_mov_b32 s{s1}, {W_EP + (wsoff << 20)}
    s_waitcnt lgkmcnt(0)
    s_mov_b64 {pr(sT2)}, {pr(pDST)}
    s_mov_b64 {pr(sT1)}, {pr(pSRC)}
    buffer_load_dwordx4 {vr(DSTV,4)}, v{vT1}, {srd(sT2)}, s{s0} offen
    buffer_load_dwordx4 {vr(DSTV+4,4)}, v{vT1}, {srd(sT2)}, s{s0} offen offset:1024
    buffer_load_dwordx2 {vr(DSTV+8,2)}, v{vT2}, {srd(sT2)}, s{s0} offen offset:2048
    buffer_load_dwordx4 {vr(SRCV,4)}, v{vT1}, {srd(sT1)}, s{s0} offen
    buffer_load_dwordx4 {vr(SRCV+4,4)}, v{vT1}, {srd(sT1)}, s{s0} offen offset:1024
    buffer_load_dwordx2 {vr(SRCV+8,2)}, v{vT2}, {srd(sT1)}, s{s0} offen offset:2048
    s_load_dword s{sTag}, {pr(pWS)}, s{s1}
    s_branch L_bar
    L_e1:
    s_mov_b32 s{sT1+2}, 131072
    s_sub_u32 s{s2_}, s{sW}, 9
    s_cmp_lt_u32 s{s2_}, 3
    s_cbranch_scc0 L_e2
    s_cmp_ge_u32 s2, 128
    s_cbranch_scc1 L_barw
    s_setprio 3
    s_and_b32 s{s0}, s2, 7
    s_lshr_b32 s{s1}, s2, 4
    s_bfe_u32 s{s3_}, s2, 0x10003
    s_cmp_eq_u32 s{s2_}, 2
    s_cselect_b32 s{s0}, s{s1}, s{s0}
    s_cselect_b32 s{s3_}, s{s3_}, s{s2_}
    s_lshl_b32 s{s0}, s{s0}, 14
    s_lshl_b32 s{s3_}, s{s3_}, 11
    s_add_u32 s{s0}, s{s0}, s{s3_}
    s_add_u32 s{s1}, s{s0}, 4096
    v_and_b32 v{vT0}, 32, v{vL}
    v_lshl_add_u32 v{vT0}, v{vT0}, 8, v{vM16}
    s_mul_i32 s{s3_}, s{s2_}, {TILE}
    s_add_u32 m0, s{s3_}, {L_R2}
    s_cmp_eq_u32 s{s2_}, 2
    s_waitcnt lgkmcnt(0)
    s_cselect_b64 {pr(sT1)}, {pr(pWK)}, {pr(pWQ)}
    """)
    for u in range(8):
        k = u & 3
        if u: a(f"s_add_u32 m0, m0, {PITCH - 512 if k else PITCH + 1536}\ns_nop 0")
        a(f"buffer_load_dwordx4 v{vT0}, {srd(sT1)}, s{s0 if u < 4 else s1} offen offset:{k*512} lds")
    a(f"""
    s_branch L_bar
    L_e2:
    s_cmp_eq_u32 s{sW}, 12
    s_cbranch_scc0 L_e3
    s_cmp_lt_u32 s2, {NWG-128}
    s_cbranch_scc1 L_barw
    s_setprio 3
    s_sub_u32 s{s0}, s2, {NWG-128}
    s_and_b32 s{s1}, s{s0}, 7
    s_lshl_b32 s{s1}, s{s1}, 14
    s_bfe_u32 s{s2_}, s{s0}, 0x30003
    s_lshl_b32 s{s2_}, s{s2_}, 6
    s_add_u32 s{s1}, s{s1}, s{s2_}
    v_and_b32 v{vT0}, 15, v{vL}
    v_lshlrev_b32 v{vT0}, 2, v{vT0}
    v_and_b32 v{vT1}, 48, v{vL}
    v_lshl_add_u32 v{vT0}, v{vT1}, 8, v{vT0}
    s_cmp_lt_u32 s{s0}, 64
    s_waitcnt lgkmcnt(0)
    s_cselect_b64 {pr(sT1)}, {pr(pWV)}, {pr(pWL)}
    """)
    for j in range(8):
        a(f"buffer_load_dword v{16+j}, v{vT0}, {srd(sT1)}, s{s1} offen offset:{j*512}")
    a(f"""
    s_branch L_bar
    L_e3:
    s_cmp_lt_u32 s{sW}, 8
    s_cbranch_scc0 L_barw
    s_mul_i32 s{s0}, s{sBeta}, 640
    s_lshl_b32 s{s1}, s{sW}, 6
    s_add_u32 s{s1}, s{s1}, s{s0}
    s_lshr_b32 s{s2_}, s{sW}, 2
    s_lshl_b32 s{s2_}, s{s2_}, 6
    s_and_b32 s{s3_}, s{sW}, 3
    s_lshl_b32 s{s3_}, s{s3_}, 3
    s_add_u32 s{s2_}, s{s2_}, s{s3_}
    s_add_u32 s{s2_}, s{s2_}, s{s0}
    s_add_u32 s{s2_}, s{s2_}, 512
    s_add_u32 s{s3_}, s{s2_}, 32
    s_waitcnt lgkmcnt(0)
    s_mov_b64 s[62:63], {pr(pESRC)}
    s_mov_b64 {pr(sX)}, {pr(pX)}
    s_load_dwordx16 s[32:47], s[62:63], s{s1}
    s_load_dwordx2 s[64:65], s[62:63], s{s2_}
    s_load_dwordx2 s[66:67], s[62:63], s{s3_}
    s_barrier
    s_branch L_preA
    L_barw:
    s_waitcnt lgkmcnt(0)
    L_bar:
    s_barrier
    s_mov_b64 {pr(sX)}, {pr(pX)}
    s_and_b32 s{sJ}, s{sW}, 7
    {common}
    s_cmp_eq_u32 s{sW}, 9
    s_cbranch_scc1 L_mtask
    s_cmp_gt_u32 s{sW}, 9
    s_cbranch_scc1 L_other
    """)

    a(f"""
    v_lshlrev_b32 v{vT1}, 4, v{vL}
    v_lshlrev_b32 v{vT2}, 3, v{vL}
    v_mov_b32 v8, 1
    v_mov_b32 v9, 4
    v_mov_b32 v10, {L_HIST}
    v_add_u32 v11, {L_HIST}, v{vT1}
    v_mov_b32 v59, {L_SORT}
    v_add_u32 v74, {L_SORT}, v{vT1}
    v_add_u32 v75, {L_SORT}, v{vT2}
    s_lshl_b32 s{s3_}, s2, 10
    s_add_u32 s{s3_}, s{s3_}, {W_OFFS}
    s_waitcnt vmcnt(5)
    """)
    stamp(1)
    for j in range(10):
        if j == 4: a("s_waitcnt vmcnt(4)")
        if j == 8: a("s_waitcnt vmcnt(3)")
        a(f"""
        v_mul_u32_u24 v{AV+j}, 52429, v{DSTV+j}
        v_lshrrev_b32 v{AV+j}, 21, v{AV+j}
        v_lshl_add_u32 v{AV+j}, v{AV+j}, 2, v10
        ds_add_u32 v{AV+j}, v8
        """)
    a("ds_read_b128 v[12:15], v11\ns_waitcnt vmcnt(0)")
    for j in range(10):
        a(f"v_lshl_or_b32 v{SRCV+j}, v{DSTV+j}, 16, v{SRCV+j}")
    a(f"""
    s_waitcnt lgkmcnt(0)
    v_add_u32 v56, v12, v13
    v_add3_u32 v57, v56, v14, v15
    s_add_u32 s{sTag}, s{sTag}, 0x400
    s_and_b32 s{sTag}, s{sTag}, {TMASK}
    v_add_u32_dpp v58, v57, v57 row_shr:1 row_mask:0xf bank_mask:0xf bound_ctrl:1
    s_nop 1
    v_add_u32_dpp v58, v58, v58 row_shr:2 row_mask:0xf bank_mask:0xf bound_ctrl:1
    s_nop 1
    v_add_u32_dpp v58, v58, v58 row_shr:4 row_mask:0xf bank_mask:0xf bound_ctrl:1
    s_nop 1
    v_add_u32_dpp v58, v58, v58 row_shr:8 row_mask:0xf bank_mask:0xf bound_ctrl:1
    s_nop 1
    v_add_u32_dpp v58, v58, v58 row_bcast:15 row_mask:0xa bank_mask:0xf
    s_nop 1
    v_add_u32_dpp v58, v58, v58 row_bcast:31 row_mask:0xc bank_mask:0xf
    v_sub_u32 v60, v58, v57
    v_add_u32 v61, v60, v12
    v_add_u32 v62, v60, v56
    v_add_u32 v63, v62, v14
    v_lshl_add_u32 v64, v60, 2, v59
    v_lshl_add_u32 v65, v61, 2, v59
    v_lshl_add_u32 v66, v62, 2, v59
    v_lshl_add_u32 v67, v63, 2, v59
    ds_write_b128 v11, v[64:67]
    """)
    for j in range(10):
        a(f"ds_add_rtn_u32 v{PV+j}, v{AV+j}, v9")
    a(f"""
    v_or_b32 v60, s{sTag}, v60
    v_or_b32 v61, s{sTag}, v61
    v_or_b32 v62, s{sTag}, v62
    v_or_b32 v63, s{sTag}, v63
    s_or_b32 s{s2_}, s{sTag}, 1
    v_mov_b32 v12, s{s2_}
    """)
    for j in range(0, 10, 2):
        a(f"s_waitcnt lgkmcnt(8)\nds_write_b32 v{PV+j}, v{SRCV+j}\nds_write_b32 v{PV+j+1}, v{SRCV+j+1}")
    a(f"""
    ds_read_b128 v[64:67], v74
    ds_read_b128 v[68:71], v74 offset:1024
    ds_read_b64 v[72:73], v75 offset:2048
    s_waitcnt lgkmcnt(2)
    buffer_store_dwordx4 v[64:67], v{vT1}, {srd(sWS)}, s{s0} offen sc1
    s_waitcnt lgkmcnt(1)
    buffer_store_dwordx4 v[68:71], v{vT1}, {srd(sWS)}, s{s0} offen offset:1024 sc1
    s_waitcnt lgkmcnt(0)
    buffer_store_dwordx2 v[72:73], v{vT2}, {srd(sWS)}, s{s0} offen offset:2048 sc1
    """)
    stamp(2)
    wait(SY_M2, 2)
    a(f"""
    s_waitcnt vmcnt(0)
    """)
    for k in range(K):
        if k: a(f"s_add_u32 s{s3_}, s{s3_}, {REP}")
        a(f"buffer_store_dwordx4 v[60:63], v{vT1}, {srd(sWS)}, s{s3_} offen sc1")
    a(f"ds_write_b32 v{vSy}, v12 offset:{SY_GO}")
    stamp(3)
    a("s_branch L_preB")

    a(f"""
    L_mtask:
    s_cmp_ge_u32 s2, 128
    s_cbranch_scc1 L_taskd
    """)
    fragaddr()
    a(f"""
    v_add_u32 v{vT1}, {L_R2}, v{vFrag}
    s_lshr_b32 s{s0}, s2, 4
    s_lshl_b32 s{s0}, s{s0}, 3
    s_and_b32 s{s1}, s2, 7
    s_add_u32 s{s0}, s{s0}, s{s1}
    s_lshl_b32 s{s0}, s{s0}, 1
    s_bfe_u32 s{s1}, s2, 0x10003
    s_add_u32 s{s0}, s{s0}, s{s1}
    s_lshl_b32 s{s0}, s{s0}, 10
    s_add_u32 s{s0}, s{s0}, {W_FR}
    v_lshlrev_b32 v{vT2}, 4, v{vL}
    s_waitcnt vmcnt(0)
    """)
    wait(SY_M, 2)
    stamp(1)
    MB = 32
    for ks in range(4):
        for t in range(3):
            a(f"ds_read_b128 {vr(MB+12*ks+4*t,4)}, v{vT1} offset:{t*TILE + ks*64}")
    for ks in range(8):
        a(f"s_waitcnt lgkmcnt({min(9, 3*(7-ks))})")
        if ks < 4:
            for t in range(3):
                a(f"ds_read_b128 {vr(MB+12*(ks+4)+4*t,4)}, v{vT1} offset:{t*TILE + (ks+4)*64}")
        for t in range(2):
            c = "0" if ks == 0 else vr(8 + 4 * t, 4)
            a(f"v_mfma_f32_16x16x32_bf16 {vr(8+4*t,4)}, {vr(MB+12*ks+4*t,4)}, {vr(MB+12*ks+8,4)}, {c}")
    a(f"""
    s_nop 6
    v_cvt_pk_bf16_f32 v16, v8, v9
    v_cvt_pk_bf16_f32 v17, v10, v11
    v_cvt_pk_bf16_f32 v18, v12, v13
    v_cvt_pk_bf16_f32 v19, v14, v15
    buffer_store_dwordx4 v[16:19], v{vT2}, {srd(sWS)}, s{s0} offen sc1
    """)
    stamp(3)
    a(f"""
    s_branch L_taskw
    L_other:
    s_cmp_gt_u32 s{sW}, 12
    s_cbranch_scc1 L_dis
    s_cmp_eq_u32 s{sW}, 12
    s_cbranch_scc1 L_wtask
    s_waitcnt vmcnt(0)
    """)
    signal(SY_M)
    a(f"""
    s_branch L_preB
    L_wtask:
    s_cmp_lt_u32 s2, {NWG-128}
    s_cbranch_scc1 L_taskd
    s_sub_u32 s{s0}, s2, {NWG-128}
    s_lshl_b32 s{s0}, s{s0}, 11
    s_add_u32 s{s0}, s{s0}, {W_FR + 131072}
    v_lshlrev_b32 v{vT2}, 4, v{vL}
    s_mov_b32 s{sSelLo}, 0x05040100
    s_mov_b32 s{sSelHi}, 0x07060302
    s_waitcnt vmcnt(0)
    """)
    for q in range(4):
        a(f"v_perm_b32 v{60+q}, v{17+2*q}, v{16+2*q}, s{sSelLo}")
        a(f"v_perm_b32 v{64+q}, v{17+2*q}, v{16+2*q}, s{sSelHi}")
    a(f"""
    buffer_store_dwordx4 v[60:63], v{vT2}, {srd(sWS)}, s{s0} offen sc1
    buffer_store_dwordx4 v[64:67], v{vT2}, {srd(sWS)}, s{s0} offen offset:1024 sc1
    L_taskw:
    s_waitcnt vmcnt(0)
    L_taskd:
    """)
    signal(SY_M2)
    stamp(2)
    a("s_branch L_preB\nL_dis:")
    base(sT2, pDIS, 20000)
    a(f"""
    s_sub_u32 s{s0}, s{sW}, 13
    s_mul_i32 s{s0}, s{s0}, 7168
    v_lshlrev_b32 v{vT0}, 4, v{vL}
    """)
    for i in range(7):
        if i == 6: a(f"s_cmp_eq_u32 s{sW}, 15\ns_cbranch_scc1 L_preB")
        if i % 4 == 0: a(f"s_add_u32 m0, s{s0}, {L_R3 + i*1024}\ns_add_u32 s{s1}, s{s0}, {i*1024}")
        a(f"s_waitcnt vmcnt(1)\nbuffer_load_dwordx4 v{vT0}, {srd(sT2)}, s{s1} offen offset:{(i%4)*1024} lds")

    EV, LA, RK, WV = 16, 24, 32, 40
    vDis, vRow, vSL0, vSL1, vSl, vEnt, vAad, vFo = 8, 9, 10, 11, 12, 13, 14, 15
    vCnt, vEa2, vKey, vSuf, vR3, vCb, vOfa, vLb, vSub, vWb, vOf, vOb = 48, 49, 50, 51, 52, 53, 54, 55, 56, 57, 58, 76
    vMM, vSig, vOne = 124, 126, 127
    a("L_preB:\ns_setprio 3")
    selregs(vSL0, vSL1)
    a(f"""
    s_movk_i32 s{sC512}, 512
    s_lshl_b32 s{s0}, s{sJ}, 5
    v_lshrrev_b32 v{vT1}, 1, v{vL}
    v_add_u32 v{vT1}, s{s0}, v{vT1}
    v_cmp_gt_u32 vcc, {NWG}, v{vT1}
    v_and_b32 v{vSub}, 1, v{vL}
    s_mov_b64 s[64:65], vcc
    v_lshlrev_b32 v{vOfa}, 10, v{vT1}
    v_mul_u32_u24 v{vEa2}, {EPW*4}, v{vT1}
    v_lshl_add_u32 v{vEa2}, v{vSub}, 4, v{vEa2}
    v_lshlrev_b32 v{vSub}, 2, v{vSub}
    v_lshrrev_b32 v{vT1}, 3, v{vL}
    v_and_b32 v{vT2}, 7, v{vL}
    v_cmp_gt_u32 s[62:63], 5, v{vT2}
    v_lshl_add_u32 v{vKey}, v{vT2}, 3, v{vT1}
    v_mul_u32_u24 v{vLb}, {CAP}, v{vT1}
    v_add_u32 v{vLb}, {CAP}, v{vLb}
    v_lshrrev_b32 v{vT1}, 4, v{vKey}
    v_mul_u32_u24 v{vRow}, {TILE}, v{vT1}
    v_lshl_add_u32 v{vRow}, v{vT1}, 26, v{vRow}
    v_cmp_le_u32 vcc, 32, v{vKey}
    v_and_b32 v{vT1}, 7, v{vKey}
    v_and_b32 v{vT2}, 3, v{vKey}
    v_cndmask_b32 v{vT1}, v{vT1}, v{vT2}, vcc
    v_mul_u32_u24 v{vT1}, {PITCH}, v{vT1}
    v_bfe_u32 v{vT2}, v{vKey}, 3, 1
    v_bfe_u32 v{vT3}, v{vKey}, 2, 1
    v_cndmask_b32 v{vT2}, v{vT2}, v{vT3}, vcc
    v_lshl_add_u32 v{vT1}, v{vT2}, 9, v{vT1}
    v_mov_b32 v{vR3}, {L_R3}
    v_add3_u32 v{vRow}, v{vRow}, v{vT1}, v{vR3}
    v_lshrrev_b32 v{vT1}, 5, v{vL}
    v_lshl_add_u32 v{vFo}, v{vT1}, 3, v{vM16}
    v_mov_b32 v{vOne}, 1
    s_lshl_b32 s{s0}, s{sNB}, 2
    s_sub_u32 s{s0}, {L_CNT}, s{s0}
    v_mov_b32 v{vCb}, s{s0}
    v_add_u32 v{vT1}, s{sNB}, v{vKey}
    v_lshl_add_u32 v{vDis}, v{vT1}, 1, v{vR3}
    v_lshlrev_b32 v{vKey}, 2, v{vKey}
    v_add_u32 v{vKey}, {L_CNT}, v{vKey}
    v_mov_b32 v{vMM}, v{vM16}
    v_mov_b32 v{vMM+1}, v{vM16}
    v_min_u32 v{vT1}, 1, v{vL}
    v_lshl_add_u32 v{vSig}, v{vL}, 2, v{vSy}
    v_lshl_add_u32 v{vSig}, v{vT1}, 16, v{vSig}
    v_mov_b32 v{vWb}, {L_WGT}
    v_mov_b32 v{vOb}, {L_OFF}
    s_lshl_b32 s{s2_}, s{sBeta}, 2
    s_add_u32 s{s2_}, s{s2_}, {W_OFFS}
    s_add_u32 s{s3_}, s{s2_}, {(K-1)*REP}
    v_mov_b64 {vr(vOf,2)}, 0
    """)
    for j in range(0, 8, 2): a(f"v_mov_b64 {vr(EV+j,2)}, 0")
    assert ptrig <= u0 and thr + 1 < u0
    if ptrig: wait(SY_P, 8, sleep=2)
    wait(SY_GO, 1, sleep=1)
    a(f"v_readfirstlane_b32 s{sTag}, v{vT0}")
    stamp(4)
    a(f"""
    s_mov_b32 s{s1}, 0
    s_mov_b64 exec, s[64:65]
    s_bitset0_b32 s{sTag}, 0
    L_spoll:
    buffer_load_dwordx2 {vr(vOf,2)}, v{vOfa}, {srd(sWS)}, s{s2_} offen sc1
    s_add_u32 s{s1}, s{s1}, 1
    s_cmp_gt_u32 s{s1}, 0x40000
    s_cbranch_scc1 L_end
    s_add_u32 s{s2_}, s{s2_}, {REP}
    s_min_u32 s{s2_}, s{s2_}, s{s3_}
    s_waitcnt vmcnt(0)
    v_xor_b32 v{vOf}, s{sTag}, v{vOf}
    v_xor_b32 v{vOf+1}, s{sTag}, v{vOf+1}
    v_or_b32 v{vT1}, v{vOf}, v{vOf+1}
    v_cmpx_lt_u32 vcc, 0x3ff, v{vT1}
    s_cbranch_execz L_sok
    {f's_sleep {psleep}' if psleep else ''}
    s_branch L_spoll
    L_sok:
    s_mov_b64 exec, -1
    ds_add_u32 v{vSig}, v{vOne} offset:{SY_V}
    v_lshl_add_u32 v{vEa2}, v{vOf}, 2, v{vEa2}
    v_sub_u32 v{vCnt}, v{vOf+1}, v{vOf}
    v_sub_u32 v{vCnt}, v{vCnt}, v{vSub}
    """)
    if stamps: a(f"s_mov_b32 s{ST0+11}, s{ST0+1}\ns_add_u32 s{ST0+10}, s{ST0}, s{s1}")
    stamp(6)
    for q in range(2):
        a(f"""
        v_cmpx_lt_i32 vcc, {8*q}, v{vCnt}
        s_cbranch_execz L_entld
        buffer_load_dwordx4 {vr(EV+4*q,4)}, v{vEa2}, {srd(sWS)}, 0 offen offset:{32*q} sc1
        """)
    a(f"""
    v_cmpx_lt_i32 vcc, 16, v{vCnt}
    s_cbranch_execz L_entld
    ds_write_b32 v{vSy}, v{vOne} offset:{SY_OV}
    L_entld:
    s_mov_b64 exec, -1
    s_waitcnt vmcnt(0)
    """)
    stamp(7)
    TH = (0, 1, 2, 3, 8, 9, 10, 11)
    def ladder(lab, body):
        for j in range(8):
            a(f"v_cmpx_lt_i32 vcc, {TH[j]}, v{vCnt}")
            if j >= 4: a(f"s_cbranch_execz {lab}")
            if j == 4: a("s_waitcnt lgkmcnt(2)")
            body(j)
        a(f"{lab}:\ns_mov_b64 exec, -1")
    ladder("L_l1", lambda j: a(f"""
        v_mad_u32_u16 v{LA+j}, v{EV+j}, 4, v{vCb} op_sel:[1,0,0,0]
        ds_add_rtn_u32 v{RK+j}, v{LA+j}, v{vOne}
        """))
    a(f"ds_add_u32 v{vSig}, v{vOne} offset:{SY_C1}")
    for j in range(8):
        a(f"v_mad_u32_u16 v{WV+j}, v{EV+j}, 2, v{vR3}")
        if dbg & 16: a(f"v_and_b32 v{EV+j}, {gmask}, v{EV+j}")
        a(f"v_mad_u32_u16 v{EV+j}, v{EV+j}, s{sC512}, 0")
    wait(SY_C1, 8)
    a(f"""
    ds_read_b32 v{vSl}, v{vKey}
    ds_read_b32 v{vT1}, v{vSy} offset:{SY_OV}
    ds_read_u16 v{vDis}, v{vDis}
    """)
    for j in range(8): a(f"ds_read_u16 v{WV+j}, v{WV+j}")
    a(f"""
    s_lshl_b32 s{s0}, s2, 4
    s_add_u32 s{s0}, s{s0}, s{sW}
    s_cmp_eq_u32 s{s0}, 15
    s_cbranch_scc0 L_noep
    v_mov_b32 v{vT2}, s{sTag}
    v_mov_b32 v{vT3}, {W_EP}
    s_mov_b64 exec, 1
    buffer_store_dword v{vT2}, v{vT3}, {srd(sWS)}, 0 offen sc1
    s_mov_b64 exec, -1
    L_noep:
    s_waitcnt lgkmcnt(10)
    v_add_u32 v{vSl}, 1, v{vSl}
    v_lshrrev_b32 v{vSl}, 1, v{vSl}
    v_max_u32 v{vSl}, 1, v{vSl}
    v_cndmask_b32 v{vSl}, 0, v{vSl}, s[62:63]
    s_lshl_b32 s{sPad}, s{sJ}, 3
    s_movk_i32 s{s0}, {8*CAP*4}
    v_add_u32_dpp v{vSuf}, v{vSl}, v{vSl} row_shl:1 row_mask:0xf bank_mask:0xf bound_ctrl:1
    s_nop 1
    v_add_u32_dpp v{vSuf}, v{vSuf}, v{vSuf} row_shl:2 row_mask:0xf bank_mask:0xf bound_ctrl:1
    s_nop 1
    v_add_u32_dpp v{vSuf}, v{vSl}, v{vSuf} row_shl:4 row_mask:0xf bank_mask:0x5 bound_ctrl:1
    s_waitcnt lgkmcnt(0)
    v_lshlrev_b32 v{vDis}, 16, v{vDis}
    v_lshl_add_u32 v{vT1}, v{vT1}, 10, v{vSuf}
    v_sub_u32 v{vT2}, v{vLb}, v{vSuf}
    v_cmp_le_u32 vcc, {CAP}, v{vT1}
    v_lshlrev_b32 v{vT2}, 1, v{vT2}
    v_subrev_u32 v{vSl}, 1, v{vSl}
    s_cbranch_vccnz L_slow
    s_mov_b64 exec, s[62:63]
    ds_write_b32 v{vKey}, v{vT2} offset:{L_BASE-L_CNT}
    s_mov_b64 exec, -1
    s_sub_u32 s{sK}, s{sPad}, 1
    v_readlane_b32 s{sPad}, v{vSuf}, s{sPad}
    """)
    ladder("L_l2", lambda j: a(f"ds_read_b32 v{LA+j}, v{LA+j} offset:{L_BASE-L_CNT}"))
    a(f"""
    s_lshr_b32 s{sRnd}, s{sPad}, {R.bit_length()-1}
    s_add_u32 s{s2_}, s{sRnd}, 1
    s_lshl_b32 s{s2_}, s{s2_}, {R.bit_length()-1}
    s_sub_u32 s{sPad}, s{s2_}, s{sPad}
    s_sub_u32 s{sRem}, s{sPad}, 1
    s_add_u32 s{s3_}, s{sJ}, 1
    s_mul_i32 s{s3_}, s{s3_}, {CAP}
    s_sub_u32 s{s2_}, s{s3_}, s{s2_}
    s_lshl_b32 s{s2_}, s{s2_}, 2
    s_waitcnt lgkmcnt(0)
    """)
    ladder("L_l3", lambda j: a(f"""
        v_add_u32 v{LA+j}, v{LA+j}, v{RK+j}
        v_lshl_add_u32 v{vT1}, v{LA+j}, 1, v{vWb}
        ds_write_b16 v{vT1}, v{WV+j}
        v_lshrrev_b32 v{vT2}, 1, v{LA+j}
        v_lshl_add_u32 v{vT2}, v{vT2}, 2, v{vOb}
        v_and_b32 v{vT3}, 1, v{LA+j}
        v_mad_u32_u24 v{vT2}, v{vT3}, s{s0}, v{vT2}
        ds_write_b32 v{vT2}, v{EV+j}
        """))
    a(f"""
    ds_add_u32 v{vSig}, v{vOne} offset:{SY_C2}
    v_lshrrev_b32 v{vT1}, 5, v{vL}
    v_mad_u32_u24 v{vEnt}, v{vT1}, s{s0}, v{vOb}
    v_add_u32 v{vEnt}, s{s2_}, v{vEnt}
    v_lshl_add_u32 v{vAad}, v{vT1}, 1, v{vWb}
    v_and_b32 v{vT1}, 28, v{vL}
    v_add3_u32 v{vAad}, v{vAad}, v{vT1}, s{s2_}
    s_mov_b32 s{sRow}, {L_DUMMY + (((SY_DUM - SY_T) // 4) << 26)}
    s_mov_b32 s{sDis}, 0
    """)
    wait(SY_C2, 8)
    stamp(8)
    if dbg & 4: a(f"v_mov_b32 v{vT0}, 64\nds_write_b32 v{vSy}, v{vT0} offset:{SY_T}\nds_write_b32 v{vSy}, v{vT0} offset:{SY_T+4}\nds_write_b32 v{vSy}, v{vT0} offset:{SY_T+8}\ns_branch L_end")
    a(f"s_setprio {prioB}")
    if flip: a(f"s_cmp_lt_u32 s{sJ}, 4\ns_cbranch_scc1 L_old\ns_setprio {prioB+1}\nL_old:")

    RING, ENT, G, PRE = 16, 80, 88, 96
    vA0, vAraw, vAd = vT2, 1, vT0
    def mfma2(t):
        for h in range(2):
            d = vr(G + 4 * h, 4)
            if not dbg & 2: a(f"v_mfma_f32_4x4x4_16b_bf16 {d}, {vr(vA0,2)}, {vr(RING+4*t+2*h,2)}, {d} cbsz:3 abid:{t&7}")
    def load(t, ad): a(f"buffer_load_dwordx4 {vr(RING+4*t,4)}, v{ad}, {srd(sX)}, 0 offen")
    def aprep(nxt):
        a(f"""
        v_perm_b32 v{vA0}, v{vAraw}, v{vAraw}, v{vSL0}
        v_perm_b32 v{vA0+1}, v{vAraw}, v{vAraw}, v{vSL1}
        """)
        if nxt: a(f"ds_read_u16 v{vAraw}, v{vAad} offset:{nxt}")
    for q in range(R // 4): a(f"ds_read_b128 {vr(PRE+4*q,4)}, v{vEnt} offset:{16*q}")
    a(f"""
    ds_read_u16 v{vAraw}, v{vAad}
    ds_read_b128 {vr(ENT,4)}, v{vEnt} offset:{4*R}
    ds_read_b128 {vr(ENT+4,4)}, v{vEnt} offset:{4*R+16}
    s_waitcnt lgkmcnt(3)
    """)
    for t in range(R):
        if t % 4 == 0:
            a(f"L_p{t}:")
            if t + 4 < R: a(f"s_cmp_ge_u32 s{sPad}, {t+4}\ns_cbranch_scc1 L_p{t+4}")
        if t == 0: continue
        sk = a.label("Lps")
        a(f"s_cmp_gt_u32 s{sPad}, {t}\ns_cbranch_scc1 {sk}\nv_add_u32 v{PRE+t}, v{PRE+t}, v{vM16}")
        if t >= D: a(f"s_waitcnt vmcnt({D-1})")
        load(t, PRE + t)
        a(f"{sk}:")
    a(f"s_cmp_eq_u32 s{sRnd}, 0\ns_cbranch_scc1 L_drain\nL_gl:")
    for t in range(0, R, 2):
        if t % 8 == 0:
            a("s_waitcnt lgkmcnt(1)")
            aprep(4 * (t + 8))
        a(f"""
        s_waitcnt vmcnt({D-2}){' lgkmcnt(2)' if t % 8 == 4 else ''}
        v_lshl_add_u64 {vr(vAd,2)}, {vr(ENT+(t&7),2)}, 0, {vr(vMM,2)}
        s_sub_u32 s{sRem}, s{sRem}, 2
        s_cbranch_scc1 Lfs_{t}
        """)
        mfma2(t); load(t, vAd); mfma2(t + 1); load(t + 1, vAd + 1)
        a(f"Lbs_{t}:")
        if t % 4 == 2: a(f"ds_read_b128 {vr(ENT+((t-2)&7),4)}, v{vEnt} offset:{4*(R+8+t-2)}")
    a(f"""
    v_add_u32 v{vEnt}, {4*R}, v{vEnt}
    v_add_u32 v{vAad}, {4*R}, v{vAad}
    s_sub_u32 s{sRnd}, s{sRnd}, 1
    """)
    if flip: a(f"s_cmp_eq_u32 s{sRnd}, {flip}\ns_cbranch_scc0 L_nf\ns_setprio {prioB}\nL_nf:")
    a(f"""
    s_cmp_lg_u32 s{sRnd}, 0
    s_cbranch_scc1 L_gl
    L_drain:
    """)
    for t in range(R):
        if t % 8 == 0:
            a("s_waitcnt lgkmcnt(0)")
            aprep(4 * (t + 8))
        a(f"s_waitcnt vmcnt({R-1-t})")
        mfma2(t)
        if t < R - 1: a(f"s_sub_u32 s{sRem}, s{sRem}, 1\ns_cbranch_scc1 Lfd_{t}\nLbd_{t}:")
        else: a(f"s_nop 1\ns_call_b64 {pr(sRet)}, L_flush")
    a("L_gdone:")
    if stamps and not fst: stamp(9)
    if stamps and fst:
        a("s_nop 1")
        for k in range(5): a(f"v_readlane_b32 s{ST0+18+2*k}, v120, {k+1}\ns_mov_b32 s{ST0+19+2*k}, s45")
    a("s_branch L_end" if stamps else "s_endpgm")
    for t in range(0, R, 2):
        a(f"Lfs_{t}:\ns_add_u32 s{sRem}, s{sRem}, 2")
        for i in range(2):
            sk = a.label("Lsk")
            mfma2(t + i); load(t + i, vAd + i)
            a(f"s_sub_u32 s{sRem}, s{sRem}, 1\ns_cbranch_scc0 {sk if i == 0 else f'Lbs_{t}'}\ns_call_b64 {pr(sRet)}, L_flush")
            if i == 0: a(f"{sk}:")
        a(f"s_branch Lbs_{t}")
    for t in range(R - 1):
        a(f"Lfd_{t}:\ns_call_b64 {pr(sRet)}, L_flush\ns_branch Lbd_{t}")
    FA = PRE
    a(f"""
    L_flush:
    s_and_b32 s{sTc}, s{sRow}, 0xffffff
    v_add_u32 v{FA}, s{sTc}, v{vFo}
    v_permlane32_swap_b32 v{G}, v{G+4}
    v_permlane32_swap_b32 v{G+1}, v{G+5}
    v_permlane32_swap_b32 v{G+2}, v{G+6}
    v_permlane32_swap_b32 v{G+3}, v{G+7}
    s_lshr_b32 s{sTc}, s{sRow}, 24
    v_pk_add_f32 {vr(FA+2,2)}, {vr(G,2)}, {vr(G+4,2)}
    v_pk_add_f32 {vr(FA+4,2)}, {vr(G+2,2)}, {vr(G+6,2)}
    s_add_u32 s{sK}, s{sK}, 1
    v_pk_mul_f32 {vr(FA+2,2)}, {vr(FA+2,2)}, {pr(sDis)} op_sel_hi:[1,0]
    v_pk_mul_f32 {vr(FA+4,2)}, {vr(FA+4,2)}, {pr(sDis)} op_sel_hi:[1,0]
    v_add_u32 v{FA+1}, s{sTc}, v{vSig}
    v_cvt_pk_bf16_f32 v{FA+2}, v{FA+2}, v{FA+3}
    v_cvt_pk_bf16_f32 v{FA+3}, v{FA+4}, v{FA+5}
    ds_write_b64 v{FA}, {vr(FA+2,2)}
    ds_add_u32 v{FA+1}, v{vOne} offset:{SY_T}
    v_mov_b64 {vr(G,2)}, 0
    v_mov_b64 {vr(G+2,2)}, 0
    v_mov_b64 {vr(G+4,2)}, 0
    v_mov_b64 {vr(G+6,2)}, 0
    v_readlane_b32 s{sRem}, v{vSl}, s{sK}
    v_readlane_b32 s{sRow}, v{vRow}, s{sK}
    v_readlane_b32 s{sDis}, v{vDis}, s{sK}
    """)
    if stamps and fst: a(f"{TM} s[44:45]\ns_and_b32 m0, s{sK}, 7\ns_waitcnt lgkmcnt(0)\nv_writelane_b32 v120, s44, m0")
    a(f"s_setpc_b64 {pr(sRet)}")

    FR, XB, ACC, IDX = 16, 80, 104, 104
    vXa, vQw, vMo, vXz = 12, 13, 14, 15
    def xaddr(region):
        a(f"v_add_u32 v{vXa}, {region}, v{vFrag}")
    def xreg(rt): return vXa
    a(f"""
    L_preA:
    s_setprio {prioE}
    {common}
    v_and_b32 v{vT2}, 32, v{vL}
    v_lshl_add_u32 v{vT1}, v{vT2}, 7, v{vM16}
    v_lshl_add_u32 v{vT2}, v{vT2}, 6, v{vM16}
    s_add_u32 s{s0}, s{sW}, s{sNB}
    s_mul_i32 s{s1}, s{sW}, {PITCH}
    s_add_u32 m0, s{s1}, {L_R1}
    s_lshl_b32 s{s0}, s{s0}, 9
    buffer_load_dwordx4 v{vT1}, {srd(sX)}, s{s0} offen lds
    s_add_u32 m0, s{s1}, {L_R1 + 8*PITCH}
    s_add_u32 s{s0}, s{s0}, 8192
    buffer_load_dwordx4 v{vT1}, {srd(sX)}, s{s0} offen lds
    s_cmp_ge_u32 s{sW}, 4
    s_cbranch_scc1 L_xa2
    s_add_u32 m0, s{s1}, {L_R1 + 16*PITCH}
    s_add_u32 s{s0}, s{s0}, 8192
    buffer_load_dwordx4 v{vT2}, {srd(sX)}, s{s0} offen lds
    L_xa2:
    """)
    fragaddr()
    xaddr(L_R1)
    base(sOUT, pOUT, 10000 * 512)
    a(f"""
    s_mov_b32 s{sOUT+3}, 0x20000
    v_lshlrev_b32 v{vMo}, 4, v{vL}
    s_lshl_b32 s{s3_}, s{sW}, 6
    s_add_u32 s{s3_}, s{s3_}, {L_R2}
    v_add_u32 v{vQw}, s{s3_}, v{vFrag}
    s_lshl_b32 s{sFo}, s{sW}, 14
    s_add_u32 s{sFo}, s{sFo}, {W_FR}
    s_waitcnt lgkmcnt(0)
    """)
    for h in range(2):
        for u in range(10):
            src = 32 + 8 * h + u if u < 8 else 64 + 2 * h + u - 8
            a(f"v_lshl_add_u32 v{IDX+u}, s{src}, 9, v{vM16}")
        a("s_mov_b32 exec_lo, 0" if h == 0 else "s_mov_b64 exec, -1")
    stamp(1)
    def eload(u, lim):
        a(f"s_add_u32 m0, s{sRnd}, {L_E + u*PITCH}" if u < 8 else f"s_add_u32 m0, s{sPad}, {L_E + 8*TILE + (u-8)*PITCH}")
        a(f"s_waitcnt vmcnt({lim})\nbuffer_load_dwordx4 v{IDX+u}, {srd(sX)}, 0 offen lds")
    a(f"s_mul_i32 s{sPad}, s{sW}, {2*PITCH}\ns_mul_i32 s{sRnd}, s{sW}, {TILE}")
    vSL0, vSL1, vSH0, vSH1 = 8, 9, 10, 11
    for u in range(10):
        if u == 2: selregs(vSL0, vSL1, vSH0, vSH1)
        if u >= u0:
            a(f"s_waitcnt vmcnt({thr})\nds_read_b32 v{vT0}, v{vSy} offset:{SY_V}")
        eload(u, thr)
        if u + 1 == ptrig: signal(SY_P)
        if u == thr + 1: signal(SY_X)
        if u0 <= u < 9:
            a(f"s_waitcnt lgkmcnt(0)\nv_cmp_gt_u32 vcc, 8, v{vT0}\ns_cbranch_vccz L_eu{u+1}")
    stamp(4)
    wait(SY_V, 8, sleep=1)
    a("s_branch L_eu10")
    for u in range(u0 + 1, 10):
        a(f"L_eu{u}:")
        eload(u, 63)
    a("L_eu10:")
    nf = [0]
    def fload(i):
        if i % 4 == 0 and i: a(f"s_add_u32 s{sFo}, s{sFo}, {4096 if i % 16 else 131072 - 12288}")
        a(f"buffer_load_dwordx4 {vr(FR+4*(i%16),4)}, v{vMo}, {srd(sWS)}, s{sFo} offen offset:{(i%4)*1024} sc1{' nt' if fnt else ''}")
    def xread(s):
        for rt in range(3):
            a(f"ds_read_b128 {vr(XB+12*(s&1)+4*rt,4)}, v{xreg(rt)} offset:{rt*TILE+s*64}")
    def gemm(w_is_a, vm=[14 - 2 * s for s in range(8)]):
        for s in range(8):
            if s < 7: xread(s + 1)
            a(f"s_waitcnt vmcnt({vm[s]}) lgkmcnt({3 if s < 7 else 0})")
            for rt in range(3):
                for t in range(2):
                    d, f, x = vr(ACC + 8 * rt + 4 * t, 4), vr(FR + 8 * s + 4 * t, 4), vr(XB + 12 * (s & 1) + 4 * rt, 4)
                    a(f"v_mfma_f32_16x16x32_bf16 {d}, {f if w_is_a else x}, {x if w_is_a else f}, {'0' if s == 0 else d}")
    def burst(mat):
        lo = (0, nlow1, nlow2)[mat]
        for i in range(16):
            if i == lo: a(f"s_setprio {prioL}")
            fload(16 * mat + i)
        a(f"s_setprio {prioA}")
        if mat: stamp(mat + 1)
    stamp(5)
    if dbg & 1: a("s_branch L_end")

    burst(0)
    wait(SY_X, 8)
    xread(0)
    gemm(True)
    a("s_nop 3")
    for rt in range(3):
        d0, d1, o = ACC + 8 * rt, ACC + 8 * rt + 4, XB + 4 * rt
        a(f"""
        v_cvt_pk_bf16_f32 v{o}, v{d0}, v{d0+1}
        v_cvt_pk_bf16_f32 v{o+1}, v{d0+2}, v{d0+3}
        v_cvt_pk_bf16_f32 v{o+2}, v{d1}, v{d1+1}
        v_cvt_pk_bf16_f32 v{o+3}, v{d1+2}, v{d1+3}
        ds_write_b128 v{vQw}, {vr(o,4)} offset:{rt*TILE}
        """)
    signal(SY_A)
    stamp(6)
    burst(1)

    vEa, vQa, vEr, vAw = 12, 13, 14, 2
    sG = sK
    P, RB, AJ = 80, 80, 112
    DK = [120, 124, 4, 12]
    a(f"""
    s_mov_b32 s{sG}, s{sW}
    L_grp:
    s_mul_i32 s{s0}, s{sG}, {TILE}
    s_lshr_b32 s{s1}, s{sG}, 2
    s_mul_i32 s{s1}, s{s1}, {TILE}
    s_and_b32 s{s2_}, s{sG}, 1
    s_bfe_u32 s{s3_}, s{sG}, 0x10001
    s_cmp_ge_u32 s{sG}, 8
    s_cselect_b32 s{s3_}, s{s2_}, s{s3_}
    s_cselect_b32 s{s2_}, 0, s{s2_}
    s_mul_i32 s{s2_}, s{s2_}, {TILE//2}
    s_lshl_b32 s{s3_}, s{s3_}, 9
    s_add_u32 s{s1}, s{s1}, s{s2_}
    s_add_u32 s{s1}, s{s1}, s{s3_}
    s_add_u32 s{s1}, s{s1}, {L_R2}
    v_add_u32 v{vEa}, s{s0}, v{vFrag}
    v_bfe_u32 v{vT0}, v{vL}, 2, 2
    v_mul_u32_u24 v{vT0}, {PITCH}, v{vT0}
    v_and_b32 v{vT1}, 48, v{vL}
    v_add3_u32 v{vQa}, v{vT0}, v{vT1}, s{s1}
    v_lshl_add_u32 v{vEr}, v{vL}, 3, s{s0}
    v_lshl_add_u32 v{vAw}, v{vL}, 3, s{s1}
    s_cmp_ge_u32 s{sG}, 8
    s_cbranch_scc1 L_grp2
    """)
    wait(SY_A, 8, sleep=wsl)
    a("L_grp2:\ns_waitcnt lgkmcnt(0)")
    def pread(s):
        a(f"ds_read_b128 {vr(P+8*(s%6),4)}, v{vEa} offset:{s*64}")
        a(f"ds_read_b128 {vr(P+8*(s%6)+4,4)}, v{vQa} offset:{s*64}")
    for s in range(6): pread(s)
    for s in range(8):
        a(f"s_waitcnt lgkmcnt({10 if s < 3 else 14-2*s})")
        a(f"v_mfma_f32_16x16x32_bf16 v[4:7], {vr(P+8*(s%6),4)}, {vr(P+8*(s%6)+4,4)}, {'0' if s == 0 else 'v[4:7]'}")
        if s < 2: pread(s + 6)
    order = [(j, k) for j in (2, 3, 0, 1) for k in range(4)]
    for n, (j, k) in enumerate(order):
        i = 4 * k + j
        if n == 15: a("s_waitcnt lgkmcnt(14)")
        a(f"ds_read_b64 {vr(RB+8*j+2*k,2)}, v{vEr} offset:{(i&7)*PITCH+(i>>3)*512}")
    a(f"""
    v_mul_f32 v4, 0x3db8aa3b, v4
    v_mul_f32 v5, 0x3db8aa3b, v5
    v_mul_f32 v6, 0x3db8aa3b, v6
    v_mul_f32 v7, 0x3db8aa3b, v7
    v_exp_f32 v4, v4
    v_exp_f32 v5, v5
    v_exp_f32 v6, v6
    v_exp_f32 v7, v7
    v_add_f32 v12, v4, v5
    v_add_f32 v13, v6, v7
    v_add_f32 v12, v12, v13
    v_add_f32 v12, 0x3089705f, v12
    v_rcp_f32 v12, v12
    s_add_u32 s{sG}, s{sG}, 8
    v_mul_f32 v4, v4, v12
    v_mul_f32 v5, v5, v12
    v_mul_f32 v6, v6, v12
    v_mul_f32 v7, v7, v12
    v_cvt_pk_bf16_f32 v4, v4, v5
    v_cvt_pk_bf16_f32 v6, v6, v7
    """)
    for j in range(4):
        src = 4 + (j & 2)
        a(f"v_perm_b32 v{AJ+2*j}, v{src}, v{src}, v{vSH0 if j & 1 else vSL0}")
        a(f"v_perm_b32 v{AJ+2*j+1}, v{src}, v{src}, v{vSH1 if j & 1 else vSL1}")
    a("s_waitcnt lgkmcnt(0)")
    for j in range(4):
        for k in range(4):
            d = vr(DK[k], 4)
            a(f"v_mfma_f32_4x4x4_16b_bf16 {d}, {vr(AJ+2*j,2)}, {vr(RB+8*j+2*k,2)}, {'0' if j == 0 else d} cbsz:4 abid:{5*k}")
    a("s_nop 1")
    for k in range(4):
        d = DK[k]
        a(f"""
        v_cvt_pk_bf16_f32 v{AJ+2*k}, v{d}, v{d+1}
        v_cvt_pk_bf16_f32 v{AJ+2*k+1}, v{d+2}, v{d+3}
        ds_write_b64 v{vAw}, {vr(AJ+2*k,2)} offset:{k*PITCH}
        """)
    a(f"s_cmp_lt_u32 s{sG}, 10\ns_cbranch_scc1 L_grp")
    signal(SY_B)
    stamp(7)

    vOo, vOo2 = 8, 9
    xaddr(L_R2)
    a(f"""
    v_lshlrev_b32 v{vMo}, 4, v{vL}
    v_and_b32 v{vT2}, 15, v{vL}
    v_lshlrev_b32 v{vT2}, 2, v{vT2}
    v_and_b32 v{vT1}, 48, v{vL}
    v_lshl_add_u32 v{vOo}, v{vT1}, 7, v{vT2}
    v_and_b32 v{vT1}, 32, v{vL}
    v_lshl_add_u32 v{vOo2}, v{vT1}, 6, v{vT2}
    v_and_b32 v{vT1}, 16, v{vL}
    v_lshl_add_u32 v{vOo2}, v{vT1}, 22, v{vOo2}
    s_lshl_b32 s{s2_}, s{sNB}, 9
    s_lshl_b32 s{s3_}, s{sW}, 6
    s_add_u32 s{s2_}, s{s2_}, s{s3_}
    """)
    wait(SY_B, 8, sleep=wsl)
    xread(0)
    gemm(False)
    stamp(8)
    burst(2)
    xaddr(L_R3)
    for rt in range(3):
        wait(SY_T + 4 * rt, 16 if rt < 2 else 8, sleep=2 if rt < 2 else 0, cap=0x1000000)
        if rt == 2: stamp(10)
        for s in range(6):
            a(f"ds_read_b128 {vr(XB+4*s,4)}, v{xreg(rt)} offset:{rt*TILE+s*64}")
        for s in range(8):
            vm = f"vmcnt({14-2*s}) " if rt == 0 else ""
            a(f"s_waitcnt {vm}lgkmcnt({5 if s < 3 else 7-s})")
            for t in range(2):
                d = vr(ACC + 8 * rt + 4 * t, 4)
                a(f"v_mfma_f32_16x16x32_bf16 {d}, {vr(XB+4*(s%6),4)}, {vr(FR+8*s+4*t,4)}, {d}")
            if s < 2: a(f"ds_read_b128 {vr(XB+4*s,4)}, v{xreg(rt)} offset:{rt*TILE+(s+6)*64}")
        a("s_nop 7")
        for r in range(4):
            d = ACC + 8 * rt
            a(f"""
            v_cvt_pk_bf16_f32 v{d+r}, v{d+r}, v{d+4+r}
            buffer_store_dword v{d+r}, v{vOo if rt < 2 else vOo2}, {srd(sOUT)}, s{s2_} offen offset:{r*512}{['', ' sc1', ' nt', ' sc0 sc1', ' sc1 nt'][ost]}
            """)
        if rt < 2: a(f"s_add_u32 s{s2_}, s{s2_}, 8192")
        if rt == 0: stamp(9)
    stamp(11)
    if stamps: a("s_waitcnt vmcnt(0)")
    stamp(12)
    a("L_end:")
    if probe >= 0:
        a(f"""
        s_cmp_eq_u32 s{sW}, {pw}
        s_cbranch_scc0 L_noprobe
        s_sub_u32 s{s0}, s{ST0+2*probe}, s{ST0}
        s_min_u32 s{s0}, s{s0}, 20000
        s_mul_i32 s{s0}, s{s0}, {pk}
        s_memrealtime s[60:61]
        L_probe:
        s_memrealtime s[62:63]
        s_waitcnt lgkmcnt(0)
        s_sub_u32 s62, s62, s60
        s_cmp_lt_u32 s62, s{s0}
        s_cbranch_scc1 L_probe
        L_noprobe:
        """)
    if stamps:
        a(f"""
        s_mov_b64 exec, -1
        s_add_u32 s{sT1}, s{pWS}, {STAMP_OFF}
        s_addc_u32 s{sT1+1}, s{pWS+1}, 0
        s_mov_b32 s{sT1+2}, 0x1000000
        s_lshl_b32 s{s0}, s2, 4
        s_add_u32 s{s0}, s{s0}, s{sW}
        s_mul_i32 s{s0}, s{s0}, {NSTAMP*8}
        v_lshlrev_b32 v4, 2, v0
        v_mov_b32 v6, 0
        """)
        for i in range(2 * NSTAMP): a(f"v_writelane_b32 v6, s{ST0+i}, {i}")
        a(f"s_bfm_b64 exec, {2*NSTAMP}, 0\nbuffer_store_dword v6, v4, {srd(sT1)}, s{s0} offen")
    a("L_exit:\ns_endpgm")

    vSL0, vSL1 = 10, 11
    a(f"L_slow:\ns_setprio 0\nds_add_u32 v{vSig}, v{vOne} offset:{SY_C2}")
    wait(SY_C2, 8)
    base(sT1, pSRC, 640000)
    base(sT2, pDST, 640000)
    base(sT3, pDIS, 20000)
    a(f"""
    s_mov_b32 s{sT3+3}, 0x20000
    s_sub_u32 s{sK}, s{sPad}, 1
    s_mov_b32 s{sRow}, {L_DUMMY + (((SY_DUM - SY_T) // 4) << 26)}
    s_mov_b32 s{sDis}, 0
    s_call_b64 {pr(sRet)}, L_flush
    s_add_u32 s{sRnd}, s{sJ}, s{sNB}
    s_add_u32 s{sPad}, s{sRnd}, 40
    v_lshlrev_b32 v16, 2, v{vL}
    v_and_b32 v17, 32, v{vL}
    v_lshl_add_u32 v17, v17, 22, v{vM16}
    v_mov_b32 v24, 0
    L_sn:
    s_mov_b32 s{s2_}, 0
    L_sc:
    buffer_load_dword v18, v16, {srd(sT2)}, s{s2_} offen
    buffer_load_dword v19, v16, {srd(sT1)}, s{s2_} offen
    s_waitcnt vmcnt(0)
    v_cmp_eq_u32 vcc, s{sRnd}, v18
    s_cbranch_vccz L_sx
    L_se:
    s_ff1_i32_b64 s{s0}, vcc
    s_bitset0_b64 vcc, s{s0}
    v_readlane_b32 s{s1}, v19, s{s0}
    s_nop 0
    s_lshl_b32 s{s3_}, s{s1}, 9
    s_lshl_b32 s{s1}, s{s1}, 1
    buffer_load_dwordx4 v[20:23], v17, {srd(sX)}, s{s3_} offen
    buffer_load_ushort v{vAraw}, v24, {srd(sT3)}, s{s1} offen
    s_waitcnt vmcnt(0)
    v_perm_b32 v{vA0}, v{vAraw}, v{vAraw}, v{vSL0}
    v_perm_b32 v{vA0+1}, v{vAraw}, v{vAraw}, v{vSL1}
    s_nop 1
    v_mfma_f32_4x4x4_16b_bf16 {vr(G,4)}, {vr(vA0,2)}, v[20:21], {vr(G,4)}
    v_mfma_f32_4x4x4_16b_bf16 {vr(G+4,4)}, {vr(vA0,2)}, v[22:23], {vr(G+4,4)}
    s_cmp_lg_u64 vcc, 0
    s_cbranch_scc1 L_se
    L_sx:
    s_add_u32 s{s2_}, s{s2_}, 256
    s_cmp_lt_u32 s{s2_}, 640000
    s_cbranch_scc1 L_sc
    s_call_b64 {pr(sRet)}, L_flush
    s_add_u32 s{sRnd}, s{sRnd}, 8
    s_cmp_lt_u32 s{sRnd}, s{sPad}
    s_cbranch_scc1 L_sn
    s_branch L_gdone
    """)
    hdr = open("standalone__hybrid_graph_tf_exphormer__graph.s.ref").read().split("; Override")[0]
    text = wrap(a.text(), NWG, 1024, LDS, 128, header=hdr)
    lines = (text_size(text.replace("CODE_LINES", "100")) - 256) // 128
    assert 64 < lines < 200
    return text.replace("CODE_LINES", str(lines))


if __name__ == "__main__":
    kw = dict(x.split("=") for x in sys.argv[2:])
    kw = {k: int(v) for k, v in kw.items()}
    open(sys.argv[1], "w").write(gen(**kw))
```

```python
import sys
from asmlib import Asm, wrap, text_size

NWG, NPW, NPROD, EPW, EROW = 250, 40, 64, 2500, 10240
TILE, PITCH = 8448, 1056
CAP = 80
L_E = 0
L_R1 = 10 * TILE
L_R2 = L_R1 + 2 * TILE + TILE // 2
L_R3 = L_R2 + 3 * TILE
L_OFF = L_R3 + 2 * TILE + TILE // 2
L_WGT = L_OFF + 2 * 8 * CAP * 4
L_CNT = L_WGT + 2 * 8 * CAP * 2
L_BASE = L_CNT + 160
L_SYNC = L_BASE + 160
L_HIST = L_SYNC + 128
L_TAB = L_HIST + 1024
L_SORT, L_DUMMY = L_R2, L_HIST
LDS = L_TAB + 1024
assert LDS <= 163840, LDS
W_ENT, W_FR, W_EP, W_OFFS, W_FLAG, WS_SIZE = 0, 0xa0000, 0x100000, 0x110000, 0x120000, 0x160000
TMASK, NULLOFF = 0xfffff000, 0x2000000
STAMP_OFF = 128 << 20
SY_X, SY_Y, SY_M, SY_C1, SY_C2, SY_A, SY_B, SY_OV, SY_GO, SY_T, SY_DUM, SY_V, SY_M2, SY_P = 0, 4, 8, 12, 16, 20, 24, 28, 32, 36, 48, 52, 56, 60
SY_D = 64


def gen(stamps=0, probe=-1, pw=0, pk=4, dbg=0, gmask=0xff, fst=0, nact=0, skew=0, adelay=0,
        thr=1, u0=6, ptrig=6, psleep=8, fstr=16, frep=8, park=4, dr=4, at1=8, at2=4, rate=4, D=8, flip=3,
        prioA=0, prioB=1, prioP=1, prioE=2, prioL=3, wsl=1, tsl=3):
    R = 8
    TM = 's_memtime' if stamps == 2 else 's_memrealtime'
    n_null, n_init = (L_WGT - L_OFF) // 16, (L_TAB - L_OFF) // 16
    a = Asm()
    sX, sT3, sWS, sOUT, sT1, sT2 = 8, 12, 16, 20, 24, 28
    pX, pSRC, pDST, pESRC, pDIS, pWL, pWQ, pWK, pWV, pOUT, pDBG, pWS = 32, 34, 36, 38, 42, 44, 46, 48, 50, 52, 54, 56
    sW, sJ, sNB, sBeta, sC512 = 3, 4, 5, 6, 7
    s0, s1, s2_, s3_ = 58, 59, 60, 61
    sRem, sK, sDis, sRow, sRnd, sPad = 62, 63, 64, 65, 66, 67
    sRet, sSelLo, sSelHi = 68, 70, 71
    sFo, sTc, sTag = 100, 101, 40
    ST0, NSTAMP = 72, 14
    vL, vFrag, vM16, vSy, vT0, vT1, vT2, vT3 = 0, 1, 2, 3, 4, 5, 6, 7
    vOne = 62

    def srd(s): return f"s[{s}:{s+3}]"
    def pr(s): return f"s[{s}:{s+1}]"
    def vr(b, n): return f"v[{b}:{b+n-1}]"
    def stamp(i):
        if stamps and (stamps != 3 or i == probe): a(f"{TM} {pr(ST0+2*i)}\ns_waitcnt lgkmcnt(0)")
    def base(s, p, size=None):
        a(f"s_mov_b64 {pr(s)}, {pr(p)}")
        if size: a(f"s_mov_b32 s{s+2}, {size}")
    def signal(off):
        a(f"""
        s_mov_b64 exec, 1
        v_mov_b32 v{vT0}, 1
        ds_add_u32 v{vSy}, v{vT0} offset:{off}
        s_mov_b64 exec, -1
        """)
    def wait(off, n, sleep=0, cap=0x400000, vSy=vSy):
        lp, ok = a.label("Lw"), a.label("Lk")
        a(f"""
        s_mov_b32 s{s1}, 0
        {lp}:
        ds_read_b32 v{vT0}, v{vSy} offset:{off}
        s_waitcnt lgkmcnt(0)
        v_cmp_gt_u32 vcc, {n}, v{vT0}
        s_cbranch_vccz {ok}
        """)
        if sleep: a(f"s_sleep {sleep}")
        a(f"""
        s_add_u32 s{s1}, s{s1}, 1
        s_cmp_lt_u32 s{s1}, {cap}
        s_cbranch_scc1 {lp}
        s_branch L_end
        {ok}:
        """)
    def fragaddr():
        a(f"""
        v_and_b32 v{vT0}, 7, v{vL}
        v_mul_u32_u24 v{vFrag}, {PITCH}, v{vT0}
        v_and_b32 v{vT0}, 8, v{vL}
        v_lshl_add_u32 v{vFrag}, v{vT0}, 6, v{vFrag}
        v_and_b32 v{vT0}, 48, v{vL}
        v_add_u32 v{vFrag}, v{vT0}, v{vFrag}
        """)
    def selregs(lo0, lo1, hi0=None, hi1=None):
        a(f"""
        v_and_b32 v{vT0}, 3, v{vL}
        v_mov_b32 v{vT1}, 0x0c0c0c0c
        v_mov_b32 v{vT2}, 0x0c0c0302
        v_mov_b32 v{vT3}, 0x03020c0c
        v_cmp_eq_u32 s[58:59], 0, v{vT0}
        v_cmp_eq_u32 s[60:61], 2, v{vT0}
        v_cmp_eq_u32 vcc, 1, v{vT0}
        v_cndmask_b32 v{lo0}, v{vT1}, v{vT2}, s[58:59]
        v_cndmask_b32 v{lo1}, v{vT1}, v{vT2}, s[60:61]
        v_cndmask_b32 v{lo0}, v{lo0}, v{vT3}, vcc
        v_cmp_eq_u32 vcc, 3, v{vT0}
        s_nop 1
        v_cndmask_b32 v{lo1}, v{lo1}, v{vT3}, vcc
        """)
        if hi0 is not None: a(f"v_mov_b32 v{hi0}, v{lo0}\nv_mov_b32 v{hi1}, v{lo1}")
        a(f"v_and_b32 v{lo0}, 0xfdfdfdfd, v{lo0}\nv_and_b32 v{lo1}, 0xfdfdfdfd, v{lo1}")

    a(f"s_cmp_ge_u32 s2, {NWG}\ns_cbranch_scc1 L_exit")
    if skew: a(f"s_and_b32 s58, s2, 7\nL_skw:\ns_sub_u32 s58, s58, 1\ns_cbranch_scc1 L_skd\ns_sleep {skew}\ns_branch L_skw\nL_skd:")
    if stamps:
        for i in range(NSTAMP if stamps != 3 else 0): a(f"s_mov_b64 {pr(ST0+2*i)}, 0")
        a(f"{TM} {pr(ST0)}")
    a(f"""
    s_load_dwordx16 s[32:47], s[0:1], 0
    s_load_dwordx8 s[48:55], s[0:1], 64
    s_load_dwordx2 s[56:57], s[0:1], 96
    s_getpc_b64 s[60:61]
    s_lshr_b32 s{sBeta}, s2, 3
    v_lshl_add_u32 v1, v0, 5, s{sBeta}
    v_cmp_gt_u32 vcc, CODE_LINES, v1
    v_lshlrev_b32 v1, 7, v1
    s_and_saveexec_b64 s[58:59], vcc
    s_cbranch_execz L_nopf
    global_load_dword v15, v1, s[60:61]
    L_nopf:
    s_mov_b64 exec, -1
    v_lshrrev_b32 v1, 6, v0
    v_mov_b32 v8, {NULLOFF}
    v_readfirstlane_b32 s{sW}, v1
    v_cmp_gt_u32 vcc, {n_null}, v0
    v_lshlrev_b32 v{vT1}, 4, v0
    v_add_u32 v4, {L_OFF}, v{vT1}
    v_cndmask_b32 v8, 0, v8, vcc
    v_mov_b32 v9, v8
    v_mov_b64 v[10:11], v[8:9]
    v_cmp_gt_u32 vcc, {n_init}, v0
    s_and_saveexec_b64 s[58:59], vcc
    ds_write_b128 v4, v[8:11]
    s_mov_b64 exec, -1
    v_and_b32 v{vL}, 63, v0
    v_and_b32 v{vM16}, 31, v{vL}
    v_lshlrev_b32 v{vM16}, 4, v{vM16}
    s_and_b32 s{s1}, s2, 7
    s_mul_i32 s{s2_}, s{s1}, 31
    s_min_u32 s{s1}, s{s1}, 2
    s_add_u32 s{sBeta}, s{sBeta}, s{s2_}
    s_add_u32 s{sBeta}, s{sBeta}, s{s1}
    s_mov_b32 s{sT1+3}, 0x20000
    s_mov_b32 s{sT2+3}, 0x20000
    s_xor_b32 s{sW}, s{sW}, 8
    s_and_b32 s{sJ}, s{sW}, 7
    s_cmp_lt_u32 s{sW}, 8
    s_cbranch_scc1 L_e3
    s_setprio 3
    s_cmp_ge_u32 s2, {NPROD}
    s_cbranch_scc1 L_e1
    """)
    common = f"""
    s_mul_i32 s{sNB}, s{sBeta}, {NPW}
    v_mov_b32 v{vSy}, {L_SYNC}
    s_mov_b32 s{sX+2}, {10000*512}
    s_mov_b32 s{sX+3}, 0x20000
    s_mov_b64 {pr(sWS)}, {pr(pWS)}
    s_mov_b32 s{sWS+2}, {WS_SIZE}
    s_mov_b32 s{sWS+3}, 0x20000
    """
    SRCV, DSTV, AV, PV, TB = 16, 22, 28, 34, 40
    sTid, sMode = 62, 63
    NWW = NWG - NPROD - 128
    a(f"""
    v_lshrrev_b32 v{vT2}, 2, v{vT1}
    s_mul_i32 s{s0}, s2, {EPW*4}
    s_add_u32 s{s2_}, s{s0}, 8192
    s_mov_b32 s{sT1+2}, 640000
    s_mov_b32 s{sT2+2}, 640000
    s_mov_b32 s{s1}, {W_EP}
    s_mov_b32 s{sMode}, 1
    s_waitcnt lgkmcnt(0)
    s_mov_b64 {pr(sT2)}, {pr(pDST)}
    s_mov_b64 {pr(sT1)}, {pr(pSRC)}
    buffer_load_dwordx4 {vr(DSTV,4)}, v{vT1}, {srd(sT2)}, s{s0} offen
    buffer_load_dword v{DSTV+4}, v{vT2}, {srd(sT2)}, s{s2_} offen
    s_setprio 2
    buffer_load_dwordx4 {vr(SRCV,4)}, v{vT1}, {srd(sT1)}, s{s0} offen
    buffer_load_dword v{SRCV+4}, v{vT2}, {srd(sT1)}, s{s2_} offen
    s_setprio 3
    L_ep:
    s_load_dword s{sTag}, {pr(pWS)}, s{s1}
    s_branch L_bar
    L_e1:
    s_mov_b32 s{sT1+2}, 131072
    s_sub_u32 s{s2_}, s{sW}, 9
    s_cmp_lt_u32 s{s2_}, 3
    s_cbranch_scc1 L_e1b
    s_mov_b32 s{sMode}, 0
    s_cmp_eq_u32 s{sW}, 8
    s_cbranch_scc0 L_barw
    s_mov_b32 s{sMode}, 5
    s_mov_b32 s{s1}, {W_EP}
    s_waitcnt lgkmcnt(0)
    s_branch L_ep
    L_e1b:
    s_sub_u32 s{sTid}, s2, {NPROD}
    s_cmp_ge_u32 s{sTid}, 128
    s_cbranch_scc1 L_e2
    s_and_b32 s{s0}, s{sTid}, 7
    s_lshr_b32 s{s1}, s{sTid}, 4
    s_bfe_u32 s{s3_}, s{sTid}, 0x10003
    s_cmp_eq_u32 s{s2_}, 2
    s_cselect_b32 s{s0}, s{s1}, s{s0}
    s_cselect_b32 s{s3_}, s{s3_}, s{s2_}
    s_lshl_b32 s{s0}, s{s0}, 14
    s_lshl_b32 s{s3_}, s{s3_}, 11
    s_add_u32 s{s0}, s{s0}, s{s3_}
    s_add_u32 s{s1}, s{s0}, 4096
    v_and_b32 v{vT0}, 32, v{vL}
    v_lshl_add_u32 v{vT0}, v{vT0}, 8, v{vM16}
    s_mul_i32 s{s3_}, s{s2_}, {TILE}
    s_add_u32 m0, s{s3_}, {L_R2}
    s_cmp_eq_u32 s{s2_}, 0
    s_cselect_b32 s{sMode}, 2, 3
    s_cmp_eq_u32 s{s2_}, 2
    s_waitcnt lgkmcnt(0)
    s_cselect_b64 {pr(sT1)}, {pr(pWK)}, {pr(pWQ)}
    """)
    for u in range(8):
        k = u & 3
        if u: a(f"s_add_u32 m0, m0, {PITCH - 512 if k else PITCH + 1536}\ns_nop 0")
        a(f"buffer_load_dwordx4 v{vT0}, {srd(sT1)}, s{s0 if u < 4 else s1} offen offset:{k*512} lds")
    a(f"""
    s_branch L_bar
    L_e2:
    s_mul_i32 s{s2_}, s{s2_}, {NWW}
    s_add_u32 s{sTid}, s{sTid}, s{s2_}
    s_sub_u32 s{sTid}, s{sTid}, 128
    s_mov_b32 s{sMode}, 3
    s_cmp_ge_u32 s{sTid}, {96 if park >= 4 else 128}
    s_cbranch_scc1 L_barw
    """)
    if park >= 4: a(f"""
    s_and_b32 s{s1}, s{sTid}, 28
    s_add_u32 s{s1}, s{s1}, 4
    s_cmp_ge_u32 s{sTid}, 64
    s_cselect_b32 s{s1}, s{s1}, 0
    s_add_u32 s{sTid}, s{sTid}, s{s1}
    """)
    a(f"""
    s_mov_b32 s{sMode}, 4
    s_and_b32 s{s1}, s{sTid}, 7
    s_lshl_b32 s{s1}, s{s1}, 14
    s_bfe_u32 s{s2_}, s{sTid}, 0x30003
    s_lshl_b32 s{s2_}, s{s2_}, 6
    s_add_u32 s{s1}, s{s1}, s{s2_}
    v_and_b32 v{vT0}, 15, v{vL}
    v_lshlrev_b32 v{vT0}, 2, v{vT0}
    v_and_b32 v{vT1}, 48, v{vL}
    v_lshl_add_u32 v{vT0}, v{vT1}, 8, v{vT0}
    s_cmp_lt_u32 s{sTid}, 64
    s_waitcnt lgkmcnt(0)
    s_cselect_b64 {pr(sT1)}, {pr(pWV)}, {pr(pWL)}
    """)
    for j in range(8):
        a(f"buffer_load_dword v{16+j}, v{vT0}, {srd(sT1)}, s{s1} offen offset:{j*512}")
    a(f"""
    s_branch L_bar
    L_e3:
    s_mul_i32 s{s0}, s{sBeta}, 640
    s_lshl_b32 s{s1}, s{sW}, 6
    s_add_u32 s{s1}, s{s1}, s{s0}
    s_lshr_b32 s{s2_}, s{sW}, 2
    s_lshl_b32 s{s2_}, s{s2_}, 6
    s_and_b32 s{s3_}, s{sW}, 3
    s_lshl_b32 s{s3_}, s{s3_}, 3
    s_add_u32 s{s2_}, s{s2_}, s{s3_}
    s_add_u32 s{s2_}, s{s2_}, s{s0}
    s_add_u32 s{s2_}, s{s2_}, 512
    s_add_u32 s{s3_}, s{s2_}, 32
    s_waitcnt lgkmcnt(0)
    s_mov_b64 s[62:63], {pr(pESRC)}
    s_mov_b64 {pr(sX)}, {pr(pX)}
    s_load_dwordx16 s[32:47], s[62:63], s{s1}
    s_load_dwordx2 s[64:65], s[62:63], s{s2_}
    s_load_dwordx2 s[66:67], s[62:63], s{s3_}
    s_barrier
    s_branch L_preA
    L_barw:
    s_waitcnt lgkmcnt(0)
    L_bar:
    s_barrier
    s_mov_b64 {pr(sX)}, {pr(pX)}
    {common}
    v_mov_b32 v{vOne}, 1
    s_cmp_eq_u32 s{sMode}, 1
    s_cbranch_scc0 L_notprod
    """)
    def sig(off): a(f"s_mov_b64 exec, 1\nds_add_u32 v{vSy}, v{vOne} offset:{off}\ns_mov_b64 exec, -1")
    def mktag(): a(f"s_add_u32 s{sTag}, s{sTag}, 0x9e377000\ns_and_b32 s{sTag}, s{sTag}, {TMASK}")

    a(f"""
    v_mov_b32 v9, 4
    v_mov_b32 v10, {L_HIST}
    v_lshl_add_u32 v11, v{vL}, 4, v10
    v_cmp_gt_u32 vcc, {(EPW - 2048) * 16}, v{vT1}
    v_add_u32 v59, {L_SORT}, v{vT1}
    s_mul_i32 s{s0}, s2, {EROW}
    s_mov_b64 s[66:67], vcc
    s_waitcnt vmcnt(3)
    """)
    stamp(1)
    for j in range(5):
        if j == 4: a("s_waitcnt vmcnt(2)\ns_mov_b64 exec, s[66:67]")
        a(f"""
        v_mul_u32_u24 v{AV+j}, 52429, v{DSTV+j}
        v_lshrrev_b32 v{AV+j}, 21, v{AV+j}
        v_lshl_add_u32 v{AV+j}, v{AV+j}, 2, v10
        ds_add_rtn_u32 v{PV+j}, v{AV+j}, v9
        """)
    a("s_mov_b64 exec, -1")
    a('s_waitcnt lgkmcnt(0)\ns_barrier')
    a(f"ds_read_b128 v[12:15], v11")
    mktag()
    a(f"""
    s_waitcnt lgkmcnt(0)
    v_add_u32 v56, v12, v13
    v_add3_u32 v57, v56, v14, v15
    s_nop 1
    v_add_u32_dpp v58, v57, v57 row_shr:1 row_mask:0xf bank_mask:0xf bound_ctrl:1
    s_nop 1
    v_add_u32_dpp v58, v58, v58 row_shr:2 row_mask:0xf bank_mask:0xf bound_ctrl:1
    s_nop 1
    v_add_u32_dpp v58, v58, v58 row_shr:4 row_mask:0xf bank_mask:0xf bound_ctrl:1
    s_nop 1
    v_add_u32_dpp v58, v58, v58 row_shr:8 row_mask:0xf bank_mask:0xf bound_ctrl:1
    s_nop 1
    v_add_u32_dpp v58, v58, v58 row_bcast:15 row_mask:0xa bank_mask:0xf
    s_nop 1
    v_add_u32_dpp v58, v58, v58 row_bcast:31 row_mask:0xc bank_mask:0xf
    v_sub_u32 v64, v58, v57
    v_add_u32 v65, v64, v12
    v_add_u32 v66, v64, v56
    v_add_u32 v67, v66, v14
    ds_write_b128 v11, v[64:67] offset:{L_TAB-L_HIST}
    """)
    for j in range(5):
        if j == 4: a("s_mov_b64 exec, s[66:67]")
        a(f"ds_read_b32 v{TB+j}, v{AV+j} offset:{L_TAB-L_HIST}")
    a(f"s_mov_b64 exec, -1\ns_mov_b32 s{s2_}, {L_SORT}\ns_waitcnt vmcnt(0)")
    for j in range(5):
        a(f"v_lshl_or_b32 v{SRCV+j}, v{DSTV+j}, 16, v{SRCV+j}")
    for j in range(5):
        if j == 4: a("s_mov_b64 exec, s[66:67]")
        a(f"s_waitcnt lgkmcnt(4)\nv_add3_u32 v{TB+j}, v{TB+j}, v{PV+j}, s{s2_}\nds_write_b32 v{TB+j}, v{SRCV+j}")
    a("s_mov_b64 exec, -1")
    for i in range(4): a(f"v_lshrrev_b32 v{64+i}, 2, v{64+i}\nv_or_b32 v{64+i}, s{sTag}, v{64+i}")
    a('s_waitcnt lgkmcnt(0)\ns_barrier')
    a(f"""
    ds_read_b128 v[12:15], v59
    ds_read_b128 v[68:71], v59 offset:8192
    s_add_u32 s{s2_}, s{s0}, 8192
    s_cmp_ge_u32 s{sJ}, 2
    s_waitcnt lgkmcnt(1)
    buffer_store_dwordx4 v[12:15], v{vT1}, {srd(sWS)}, s{s0} offen sc1
    s_cbranch_scc1 L_cp1
    s_waitcnt lgkmcnt(0)
    buffer_store_dwordx4 v[68:71], v{vT1}, {srd(sWS)}, s{s2_} offen sc1
    L_cp1:
    """)
    stamp(2)
    a("s_waitcnt vmcnt(0)")
    sig(SY_M2)
    a(f"""
    s_cmp_eq_u32 s{sJ}, 0
    s_cbranch_scc0 L_preB
    s_lshl_b32 s{s3_}, s2, 10
    s_add_u32 s{s3_}, s{s3_}, {W_OFFS}
    s_or_b32 s{s2_}, s{sTag}, 1
    v_mov_b32 v8, s{s2_}
    """)
    wait(SY_M2, 8)
    a(f"""
    buffer_store_dwordx4 v[64:67], v{vT1}, {srd(sWS)}, s{s3_} offen sc1
    ds_write_b32 v{vSy}, v8 offset:{SY_GO}
    """)
    stamp(3)
    a(f"""
    s_branch L_preB
    L_notprod:
    s_cmp_eq_u32 s{sMode}, 0
    s_cbranch_scc1 L_preB
    s_cmp_eq_u32 s{sMode}, 3
    s_cbranch_scc1 L_taskw
    s_cmp_eq_u32 s{sMode}, 4
    s_cbranch_scc1 L_wtask
    s_cmp_eq_u32 s{sMode}, 5
    s_cbranch_scc1 L_flag
    """)

    fragaddr()
    a(f"""
    v_add_u32 v{vT1}, {L_R2}, v{vFrag}
    s_lshr_b32 s{s0}, s{sTid}, 4
    s_lshl_b32 s{s0}, s{s0}, 3
    s_and_b32 s{s1}, s{sTid}, 7
    s_add_u32 s{s0}, s{s0}, s{s1}
    s_lshl_b32 s{s0}, s{s0}, 1
    s_bfe_u32 s{s1}, s{sTid}, 0x10003
    s_add_u32 s{s0}, s{s0}, s{s1}
    s_lshl_b32 s{s0}, s{s0}, 10
    s_add_u32 s{s0}, s{s0}, {W_FR}
    v_lshlrev_b32 v{vT2}, 4, v{vL}
    s_waitcnt vmcnt(0)
    """)
    wait(SY_M2, 2)
    stamp(1)
    MB = [16, 28, 40, 64, 76, 88, 100, 112]
    for ks in range(4):
        for t in range(3):
            a(f"ds_read_b128 {vr(MB[ks]+4*t,4)}, v{vT1} offset:{t*TILE + ks*64}")
    for ks in range(8):
        a(f"s_waitcnt lgkmcnt({min(9, 3*(7-ks))})")
        if ks < 4:
            for t in range(3):
                a(f"ds_read_b128 {vr(MB[ks+4]+4*t,4)}, v{vT1} offset:{t*TILE + (ks+4)*64}")
        for t in range(2):
            c = "0" if ks == 0 else vr(8 + 4 * t, 4)
            a(f"v_mfma_f32_16x16x32_bf16 {vr(8+4*t,4)}, {vr(MB[ks]+4*t,4)}, {vr(MB[ks]+8,4)}, {c}")
    a(f"""
    s_nop 6
    v_cvt_pk_bf16_f32 v16, v8, v9
    v_cvt_pk_bf16_f32 v17, v10, v11
    v_cvt_pk_bf16_f32 v18, v12, v13
    v_cvt_pk_bf16_f32 v19, v14, v15
    buffer_store_dwordx4 v[16:19], v{vT2}, {srd(sWS)}, s{s0} offen sc1
    """)
    stamp(3)
    a(f"""
    s_branch L_taskw
    L_wtask:
    s_lshl_b32 s{s0}, s{sTid}, 11
    s_add_u32 s{s0}, s{s0}, {W_FR + 131072}
    v_lshlrev_b32 v{vT2}, 4, v{vL}
    s_mov_b32 s{sSelLo}, 0x05040100
    s_mov_b32 s{sSelHi}, 0x07060302
    s_waitcnt vmcnt(0)
    """)
    for q in range(4):
        a(f"v_perm_b32 v{64+q}, v{17+2*q}, v{16+2*q}, s{sSelLo}")
        a(f"v_perm_b32 v{68+q}, v{17+2*q}, v{16+2*q}, s{sSelHi}")
    a(f"""
    buffer_store_dwordx4 v[64:67], v{vT2}, {srd(sWS)}, s{s0} offen sc1
    buffer_store_dwordx4 v[68:71], v{vT2}, {srd(sWS)}, s{s0} offen offset:1024 sc1
    L_taskw:
    s_waitcnt vmcnt(0)
    """)
    sig(SY_M2)
    stamp(2)
    a(f"""
    s_branch L_preB
    L_flag:
    s_waitcnt vmcnt(0) lgkmcnt(0)
    """)
    mktag()
    a(f"""
    s_mul_i32 s{s3_}, s2, {fstr}
    s_add_u32 s{s3_}, s{s3_}, {W_FLAG - NPROD*fstr}
    s_or_b32 s{s2_}, s{sTag}, 1
    v_mov_b32 v8, s{s2_}
    v_mov_b32 v10, s{sTag}
    v_mov_b32 v11, s{sTag}
    v_lshlrev_b32 v9, 15, v{vL}
    """)
    wait(SY_M2, 3)
    a(f"""
    s_mov_b64 exec, {(1 << frep) - 1}
    buffer_store_dwordx2 v[10:11], v9, {srd(sWS)}, s{s3_} offen sc1
    ds_write_b32 v{vSy}, v8 offset:{SY_GO}
    s_mov_b64 exec, -1
    """)
    stamp(3)
    EV, LA, RK, WV = 16, 24, 32, 40
    vDis, vRow, vSL0, vSL1, vSl, vEnt, vAad, vFo = 8, 9, 10, 11, 12, 13, 14, 15
    vCnt, vEa2, vKey, vSuf, vR3, vCb, vOfa, vLb, vSub, vWb, vOf, vOb = 48, 49, 50, 51, 52, 53, 54, 55, 56, 57, 58, 60
    vMM, vSyB = 2, 12
    a("L_preB:\ns_setprio 3")
    if nact: a(f"s_cmp_ge_u32 s2, {nact}\ns_cbranch_scc1 L_end")
    base(sT2, pDIS, 20000)
    a(f"s_lshl_b32 s{s0}, s{sJ}, 10\nv_lshlrev_b32 v{vT1}, 4, v{vL}")
    for i in range(3):
        if i == 2: a(f"s_cmp_lt_u32 s{sJ}, 4\ns_cbranch_scc1 L_disd")
        o = (0, 8192, 12288)[i]
        a(f"s_add_u32 m0, s{s0}, {L_R3 + o}\ns_add_u32 s{s1}, s{s0}, {o}")
        if not dbg & 32: a(f"buffer_load_dwordx4 v{vT1}, {srd(sT2)}, s{s1} offen lds")
    a("L_disd:")
    PARK, sDm, NP = 128 - 8 * park, 41, 2 * park
    if park:
        assert park <= 6
        base(sT1, pWL, 131072)
        a(f"s_setprio {prioP}\ns_lshl_b32 s{s0}, s{sJ}, 10\ns_mov_b32 s{sDm}, 0")
        for i in range(NP):
            if i: a(f"s_add_u32 s{s0}, s{s0}, 8192")
            a(f"buffer_load_dwordx4 {vr(PARK+4*i,4)}, v{vT1}, {srd(sT1)}, s{s0} offen")
    a("s_setprio 3")
    selregs(vSL0, vSL1)
    a(f"""
    s_movk_i32 s{sC512}, 512
    s_lshl_b32 s{s0}, s{sJ}, 3
    v_lshrrev_b32 v{vT1}, 3, v{vL}
    v_and_b32 v{vT2}, 7, v{vL}
    v_add_u32 v{vT3}, s{s0}, v{vT1}
    v_mul_u32_u24 v{vEa2}, {EROW}, v{vT3}
    v_lshl_add_u32 v{vEa2}, v{vT2}, 4, v{vEa2}
    v_lshlrev_b32 v{vSub}, 2, v{vT2}
    s_lshl_b32 s{s2_}, s{sBeta}, 2
    s_add_u32 s{s2_}, s{s2_}, {W_OFFS}
    v_lshl_add_u32 v{vOfa}, v{vT3}, 10, s{s2_}
    v_mad_u32_u24 v{vT3}, v{vT3}, 3, v{vT2}
    v_cmp_ge_u32 vcc, {NWG - NPROD}, v{vT3}
    v_cmp_gt_u32 s[64:65], 4, v{vT2}
    v_mul_u32_u24 v{vT3}, {fstr}, v{vT3}
    s_and_b64 s[64:65], s[64:65], vcc
    v_cmp_eq_u32 vcc, 0, v{vT2}
    s_and_b32 s{s0}, s2, {frep - 1}
    s_lshl_b32 s{s0}, s{s0}, 15
    s_add_u32 s{s0}, s{s0}, {W_FLAG - fstr}
    v_add_u32 v{vT3}, s{s0}, v{vT3}
    s_or_b64 s[64:65], s[64:65], vcc
    v_cndmask_b32 v{vOfa}, v{vT3}, v{vOfa}, vcc
    v_cmp_gt_u32 s[62:63], 5, v{vT2}
    v_lshl_add_u32 v{vKey}, v{vT2}, 3, v{vT1}
    v_mul_u32_u24 v{vLb}, {CAP}, v{vT1}
    v_add_u32 v{vLb}, {CAP}, v{vLb}
    v_lshrrev_b32 v{vT1}, 4, v{vKey}
    v_mul_u32_u24 v{vRow}, {TILE}, v{vT1}
    v_lshl_add_u32 v{vRow}, v{vT1}, 26, v{vRow}
    v_cmp_le_u32 vcc, 32, v{vKey}
    v_and_b32 v{vT1}, 7, v{vKey}
    v_and_b32 v{vT2}, 3, v{vKey}
    v_cndmask_b32 v{vT1}, v{vT1}, v{vT2}, vcc
    v_mul_u32_u24 v{vT1}, {PITCH}, v{vT1}
    v_bfe_u32 v{vT2}, v{vKey}, 3, 1
    v_bfe_u32 v{vT3}, v{vKey}, 2, 1
    v_cndmask_b32 v{vT2}, v{vT2}, v{vT3}, vcc
    v_lshl_add_u32 v{vT1}, v{vT2}, 9, v{vT1}
    v_mov_b32 v{vR3}, {L_R3}
    v_add3_u32 v{vRow}, v{vRow}, v{vT1}, v{vR3}
    v_lshrrev_b32 v{vT1}, 5, v{vL}
    v_lshl_add_u32 v{vFo}, v{vT1}, 3, v{vM16}
    s_lshl_b32 s{s0}, s{sNB}, 2
    s_sub_u32 s{s0}, {L_CNT}, s{s0}
    v_mov_b32 v{vCb}, s{s0}
    v_add_u32 v{vT1}, s{sNB}, v{vKey}
    v_lshl_add_u32 v{vDis}, v{vT1}, 1, v{vR3}
    v_lshlrev_b32 v{vKey}, 2, v{vKey}
    v_add_u32 v{vKey}, {L_CNT}, v{vKey}
    v_mov_b32 v{vWb}, {L_WGT}
    v_mov_b32 v{vOb}, {L_OFF}
    """)
    for j in range(0, 4, 2): a(f"v_mov_b64 {vr(EV+j,2)}, 0")
    assert ptrig <= u0 and thr + 2 < u0
    if ptrig: wait(SY_P, 8, sleep=2)
    wait(SY_GO, 1, sleep=1)
    a(f"v_readfirstlane_b32 s{sTag}, v{vT0}")
    stamp(4)
    def poll(tag):
        a(f"""
        L_spoll{tag}:
        buffer_load_dwordx2 {vr(vOf,2)}, v{vOfa}, {srd(sWS)}, 0 offen sc1
        s_add_u32 s{s1}, s{s1}, 1
        s_cmp_gt_u32 s{s1}, 0x40000
        s_cbranch_scc1 L_end
        s_waitcnt vmcnt(0)
        v_xor_b32 v{vOf}, s{sTag}, v{vOf}
        v_xor_b32 v{vOf+1}, s{sTag}, v{vOf+1}
        v_or_b32 v{vT1}, v{vOf}, v{vOf+1}
        v_cmpx_lt_u32 vcc, {0xffffffff - TMASK}, v{vT1}
        s_cbranch_execz L_sok{tag}
        {f's_sleep {psleep}' if psleep else ''}
        s_branch L_spoll{tag}
        L_sok{tag}:
        s_mov_b64 exec, -1
        """)
    a(f"s_mov_b32 s{s1}, 0\ns_bitset0_b32 s{sTag}, 0")
    a("s_and_b32 exec_lo, s64, 0xfefefefe\ns_and_b32 exec_hi, s65, 0xfefefefe")
    poll("a")
    sig(SY_V)
    a("s_mov_b32 exec_lo, 0x01010101\ns_mov_b32 exec_hi, 0x01010101")
    poll("b")
    a(f"""
    v_sub_u32 v{vCnt}, v{vOf+1}, v{vOf}
    v_lshl_or_b32 v{vCnt}, v{vCnt}, 16, v{vOf}
    s_nop 1
    v_mov_b32_dpp v{vCnt}, v{vCnt} quad_perm:[0,0,0,0] row_mask:0xf bank_mask:0xf
    s_nop 1
    v_mov_b32_dpp v{vCnt}, v{vCnt} row_shr:4 row_mask:0xf bank_mask:0xa
    v_mad_u32_u16 v{vEa2}, v{vCnt}, 4, v{vEa2}
    v_lshrrev_b32 v{vCnt}, 16, v{vCnt}
    v_sub_u32 v{vCnt}, v{vCnt}, v{vSub}
    """)
    if stamps: a(f"s_mov_b32 s{ST0+11}, s{ST0+1}\ns_add_u32 s{ST0+10}, s{ST0}, s{s1}")
    stamp(6)
    a(f"""
    v_cmpx_lt_i32 vcc, 0, v{vCnt}
    s_cbranch_execz L_entld
    buffer_load_dwordx4 {vr(EV,4)}, v{vEa2}, {srd(sWS)}, 0 offen sc1
    v_cmpx_lt_i32 vcc, 32, v{vCnt}
    ds_write_b32 v{vSy}, v{vOne} offset:{SY_OV}
    L_entld:
    s_mov_b64 exec, -1
    s_waitcnt vmcnt(0)
    """)
    stamp(7)
    def ladder(lab, body):
        for j in range(4):
            a(f"v_cmpx_lt_i32 vcc, {j}, v{vCnt}")
            body(j)
        a("s_mov_b64 exec, -1")
    ladder("L_l1", lambda j: a(f"""
        v_mad_u32_u16 v{LA+j}, v{EV+j}, 4, v{vCb} op_sel:[1,0,0,0]
        ds_add_rtn_u32 v{RK+j}, v{LA+j}, v{vOne}
        """))
    sig(SY_C1)
    for j in range(4):
        a(f"v_mad_u32_u16 v{WV+j}, v{EV+j}, 2, v{vR3}")
        if dbg & 16: a(f"v_and_b32 v{EV+j}, {gmask}, v{EV+j}")
        a(f"v_mad_u32_u16 v{EV+j}, v{EV+j}, s{sC512}, 0")
    wait(SY_C1, 8)
    a(f"""
    ds_read_b32 v{vSl}, v{vKey}
    ds_read_b32 v{vT1}, v{vSy} offset:{SY_OV}
    ds_read_u16 v{vDis}, v{vDis}
    """)
    for j in range(4): a(f"ds_read_u16 v{WV+j}, v{WV+j}")
    a(f"""
    s_lshl_b32 s{s0}, s2, 4
    s_add_u32 s{s0}, s{s0}, s{sW}
    s_cmp_eq_u32 s{s0}, 15
    s_cbranch_scc0 L_noep
    v_mov_b32 v{vT2}, s{sTag}
    v_mov_b32 v{vT3}, {W_EP}
    s_mov_b64 exec, 1
    buffer_store_dword v{vT2}, v{vT3}, {srd(sWS)}, 0 offen sc1
    s_mov_b64 exec, -1
    L_noep:
    s_waitcnt lgkmcnt(6)
    v_add_u32 v{vSl}, 1, v{vSl}
    v_lshrrev_b32 v{vSl}, 1, v{vSl}
    v_max_u32 v{vSl}, 1, v{vSl}
    v_cndmask_b32 v{vSl}, 0, v{vSl}, s[62:63]
    s_lshl_b32 s{sPad}, s{sJ}, 3
    s_movk_i32 s{s0}, {8*CAP*4}
    v_add_u32_dpp v{vSuf}, v{vSl}, v{vSl} row_shl:1 row_mask:0xf bank_mask:0xf bound_ctrl:1
    s_nop 1
    v_add_u32_dpp v{vSuf}, v{vSuf}, v{vSuf} row_shl:2 row_mask:0xf bank_mask:0xf bound_ctrl:1
    s_nop 1
    v_add_u32_dpp v{vSuf}, v{vSl}, v{vSuf} row_shl:4 row_mask:0xf bank_mask:0x5 bound_ctrl:1
    s_waitcnt lgkmcnt(0)
    v_lshlrev_b32 v{vDis}, 16, v{vDis}
    v_lshl_add_u32 v{vT1}, v{vT1}, 10, v{vSuf}
    v_sub_u32 v{vT2}, v{vLb}, v{vSuf}
    v_cmp_le_u32 vcc, {CAP}, v{vT1}
    v_lshlrev_b32 v{vT2}, 1, v{vT2}
    v_subrev_u32 v{vSl}, 1, v{vSl}
    s_cbranch_vccnz L_slow
    v_and_b32 v{vSl}, 0xff, v{vSl}
    v_lshl_add_u32 v{vRow}, v{vSl}, 18, v{vRow}
    s_mov_b64 exec, s[62:63]
    ds_write_b32 v{vKey}, v{vT2} offset:{L_BASE-L_CNT}
    s_mov_b64 exec, -1
    s_sub_u32 s{sK}, s{sPad}, 1
    v_readlane_b32 s{sPad}, v{vSuf}, s{sPad}
    """)
    ladder("L_l2", lambda j: a(f"ds_read_b32 v{LA+j}, v{LA+j} offset:{L_BASE-L_CNT}"))
    a(f"""
    s_lshr_b32 s{sRnd}, s{sPad}, {R.bit_length()-1}
    s_add_u32 s{s2_}, s{sRnd}, 1
    s_lshl_b32 s{s2_}, s{s2_}, {R.bit_length()-1}
    s_sub_u32 s{sPad}, s{s2_}, s{sPad}
    s_sub_u32 s{sRem}, s{sPad}, 1
    s_add_u32 s{s3_}, s{sJ}, 1
    s_mul_i32 s{s3_}, s{s3_}, {CAP}
    s_sub_u32 s{s2_}, s{s3_}, s{s2_}
    s_lshl_b32 s{s2_}, s{s2_}, 2
    s_waitcnt lgkmcnt(0)
    """)
    ladder("L_l3", lambda j: a(f"""
        v_add_u32 v{LA+j}, v{LA+j}, v{RK+j}
        v_lshl_add_u32 v{vT1}, v{LA+j}, 1, v{vWb}
        ds_write_b16 v{vT1}, v{WV+j}
        v_lshrrev_b32 v{vT2}, 1, v{LA+j}
        v_lshl_add_u32 v{vT2}, v{vT2}, 2, v{vOb}
        v_and_b32 v{vT3}, 1, v{LA+j}
        v_mad_u32_u24 v{vT2}, v{vT3}, s{s0}, v{vT2}
        ds_write_b32 v{vT2}, v{EV+j}
        """))
    sig(SY_C2)
    a(f"""
    v_lshrrev_b32 v{vT1}, 5, v{vL}
    v_mad_u32_u24 v{vEnt}, v{vT1}, s{s0}, v{vOb}
    v_add_u32 v{vEnt}, s{s2_}, v{vEnt}
    v_lshl_add_u32 v{vAad}, v{vT1}, 1, v{vWb}
    v_and_b32 v{vT1}, 28, v{vL}
    v_add3_u32 v{vAad}, v{vAad}, v{vT1}, s{s2_}
    s_mov_b32 s{sRow}, {L_DUMMY + (((SY_DUM - SY_T) // 4) << 26)}
    s_mov_b32 s{sDis}, 0
    """)
    wait(SY_C2, 8)
    a(f"v_mov_b32 v{vSyB}, v{vSy}\nv_mov_b32 v{vMM+1}, v{vM16}")
    stamp(8)
    if dbg & 4: a(f"v_mov_b32 v{vT0}, 64\nds_write_b32 v{vSyB}, v{vT0} offset:{SY_T}\nds_write_b32 v{vSyB}, v{vT0} offset:{SY_T+4}\nds_write_b32 v{vSyB}, v{vT0} offset:{SY_T+8}\ns_branch L_end")
    a(f"s_setprio {prioB}")
    if flip: a(f"s_cmp_lt_u32 s{sJ}, 4\ns_cbranch_scc1 L_old\ns_setprio {prioB+1}\nL_old:")

    RING, ENT, G, PRE = 16, 48, 56, 64
    vDa = 72
    vA0, vAraw, vAd = vT2, 1, vT0
    def mfma2(t):
        for h in range(2):
            d = vr(G + 4 * h, 4)
            if not dbg & 2: a(f"v_mfma_f32_4x4x4_16b_bf16 {d}, {vr(vA0,2)}, {vr(RING+4*t+2*h,2)}, {d} cbsz:3 abid:{t&7}")
    def load(t, ad): a(f"buffer_load_dwordx4 {vr(RING+4*t,4)}, v{ad}, {srd(sX)}, 0 offen")
    def aprep(nxt):
        a(f"""
        v_perm_b32 v{vA0}, v{vAraw}, v{vAraw}, v{vSL0}
        v_perm_b32 v{vA0+1}, v{vAraw}, v{vAraw}, v{vSL1}
        """)
        if nxt: a(f"ds_read_u16 v{vAraw}, v{vAad} offset:{nxt}")
    if park: a("s_mov_b64 vcc, 0")
    for q in range(R // 4): a(f"ds_read_b128 {vr(PRE+4*q,4)}, v{vEnt} offset:{16*q}")
    a(f"""
    ds_read_u16 v{vAraw}, v{vAad}
    ds_read_b128 {vr(ENT,4)}, v{vEnt} offset:{4*R}
    ds_read_b128 {vr(ENT+4,4)}, v{vEnt} offset:{4*R+16}
    s_waitcnt lgkmcnt(3)
    """)
    for t in range(R):
        if t % 4 == 0:
            a(f"L_p{t}:")
            if t + 4 < R: a(f"s_cmp_ge_u32 s{sPad}, {t+4}\ns_cbranch_scc1 L_p{t+4}")
        if t == 0: continue
        sk = a.label("Lps")
        a(f"s_cmp_gt_u32 s{sPad}, {t}\ns_cbranch_scc1 {sk}\nv_add_u32 v{PRE+t}, v{PRE+t}, v{vM16}")
        if t >= D: a(f"s_waitcnt vmcnt({D-1})")
        load(t, PRE + t)
        a(f"{sk}:")
    a(f"s_cmp_eq_u32 s{sRnd}, 0\ns_cbranch_scc1 L_drain\nL_gl:")
    if park: a(f"s_cmp_le_u32 s{sRnd}, {dr}\ns_cbranch_scc1 L_dm0\nL_dm0b:")
    for t in range(0, R, 2):
        if t % 8 == 0:
            a("s_waitcnt lgkmcnt(1)")
            aprep(4 * (t + 8))
        a(f"""
        s_waitcnt vmcnt({D-2}){' lgkmcnt(2)' if t % 8 == 4 else ''}
        v_lshl_add_u64 {vr(vAd,2)}, {vr(ENT+(t&7),2)}, 0, {vr(vMM,2)}
        s_sub_u32 s{sRem}, s{sRem}, 2
        s_cbranch_scc1 Lfs_{t}
        """)
        mfma2(t); load(t, vAd); mfma2(t + 1); load(t + 1, vAd + 1)
        a(f"Lbs_{t}:")
        if park: a(f"s_cbranch_vccnz Ldm_{t}\nLdb_{t}:")
        if t % 4 == 2: a(f"ds_read_b128 {vr(ENT+((t-2)&7),4)}, v{vEnt} offset:{4*(R+8+t-2)}")
    a(f"""
    v_add_u32 v{vEnt}, {4*R}, v{vEnt}
    v_add_u32 v{vAad}, {4*R}, v{vAad}
    s_sub_u32 s{sRnd}, s{sRnd}, 1
    """)
    if flip: a(f"s_cmp_eq_u32 s{sRnd}, {flip}\ns_cbranch_scc0 L_nf\ns_setprio {prioB}\nL_nf:")
    a(f"""
    s_cmp_lg_u32 s{sRnd}, 0
    s_cbranch_scc1 L_gl
    L_drain:
    """)
    for t in range(R):
        if t % 8 == 0:
            a("s_waitcnt lgkmcnt(0)")
            aprep(4 * (t + 8))
        a(f"s_waitcnt vmcnt({R-1-t})")
        mfma2(t)
        if t < R - 1: a(f"s_sub_u32 s{sRem}, s{sRem}, 1\ns_cbranch_scc1 Lfd_{t}\nLbd_{t}:")
        else: a(f"s_nop 1\ns_call_b64 {pr(sRet)}, L_flush")
    a("L_gdone:")
    def dumpaddr():
        a(f"""
        s_lshl_b32 s{s0}, s{sJ}, 10
        v_lshl_add_u32 v{vDa}, v{vL}, 4, s{s0}
        s_and_b32 s{s0}, s{sJ}, 4
        v_lshl_add_u32 v{vDa+1}, s{s0}, 4, v{vDa}
        s_movk_i32 s{s0}, 0x1f0
        v_bfi_b32 v{vDa}, s{s0}, v{vDa+1}, v{vDa}
        """)
        if NP > 8: a(f"v_add_u32 v{vDa+1}, 0x10000, v{vDa}")
    def dwrite(i): a(f"ds_write_b128 v{vDa + (i >> 3)}, {vr(PARK+4*i,4)} offset:{(i&7)*8192}")
    def dsignal(): a(f"s_mov_b64 exec, 1\nds_inc_u32 v{vSyB}, v{vSyB} offset:{SY_D}\ns_mov_b64 exec, -1")
    if park:
        a(f"s_cmp_eq_u32 s{sDm}, 0\ns_cbranch_scc0 L_dd")
        wait(SY_B, 8, sleep=2, vSy=vSyB)
        dumpaddr()
        for i in range(NP): dwrite(i)
        dsignal()
        a("L_dd:")
    if stamps and not fst: stamp(9)
    if stamps and fst:
        a("s_nop 1")
        for k in range(5): a(f"v_readlane_b32 s{ST0+18+2*k}, v120, {k+1}\ns_mov_b32 s{ST0+19+2*k}, s45")
    a("s_branch L_end" if stamps else "s_endpgm")
    for t in range(0, R, 2):
        a(f"Lfs_{t}:\ns_add_u32 s{sRem}, s{sRem}, 2")
        for i in range(2):
            sk = a.label("Lsk")
            mfma2(t + i); load(t + i, vAd + i)
            a(f"s_sub_u32 s{sRem}, s{sRem}, 1\ns_cbranch_scc0 {sk if i == 0 else f'Lbs_{t}'}\ns_call_b64 {pr(sRet)}, L_flush")
            if i == 0: a(f"{sk}:")
        a(f"s_branch Lbs_{t}")
    for t in range(R - 1):
        a(f"Lfd_{t}:\ns_call_b64 {pr(sRet)}, L_flush\ns_branch Lbd_{t}")
    if park:
        a(f"L_dm0:\ns_mov_b64 vcc, 0\ns_cmp_eq_u32 s{sDm}, 0\ns_cbranch_scc0 L_dm0b")
        a(f"ds_read_b32 v{vT0}, v{vSyB} offset:{SY_B}\ns_waitcnt lgkmcnt(0)\nv_cmp_le_u32 vcc, 8, v{vT0}\ns_cbranch_vccz L_dm0b")
        dumpaddr()
        a(f"s_mov_b32 s{sDm}, 1\ns_mov_b64 vcc, -1\ns_branch L_dm0b")
        for t in range(0, R, 2):
            a(f"Ldm_{t}:")
            for i in range(NP * t // 8, NP * (t + 2) // 8): dwrite(i)
            if t == R - 2: dsignal()
            a(f"s_branch Ldb_{t}")
    a(f"""
    L_flush:
    s_and_b32 s{sTc}, s{sRow}, 0x3ffff
    s_add_u32 s{sK}, s{sK}, 1
    v_permlane32_swap_b32 v{G}, v{G+4}
    v_permlane32_swap_b32 v{G+1}, v{G+5}
    v_permlane32_swap_b32 v{G+2}, v{G+6}
    v_permlane32_swap_b32 v{G+3}, v{G+7}
    s_lshr_b32 s{sRem}, s{sRow}, 26
    v_pk_add_f32 {vr(G,2)}, {vr(G,2)}, {vr(G+4,2)}
    v_pk_add_f32 {vr(G+2,2)}, {vr(G+2,2)}, {vr(G+6,2)}
    v_add_u32 v{G+6}, s{sTc}, v{vFo}
    v_pk_mul_f32 {vr(G,2)}, {vr(G,2)}, {pr(sDis)} op_sel_hi:[1,0]
    v_pk_mul_f32 {vr(G+2,2)}, {vr(G+2,2)}, {pr(sDis)} op_sel_hi:[1,0]
    v_lshl_add_u32 v{G+7}, s{sRem}, 2, v{vSyB}
    v_cvt_pk_bf16_f32 v{G+4}, v{G}, v{G+1}
    v_cvt_pk_bf16_f32 v{G+5}, v{G+2}, v{G+3}
    ds_write_b64 v{G+6}, {vr(G+4,2)}
    s_mov_b64 exec, 1
    ds_inc_u32 v{G+7}, v{G+7} offset:{SY_T}
    s_mov_b64 exec, -1
    v_readlane_b32 s{sRow}, v{vRow}, s{sK}
    v_readlane_b32 s{sDis}, v{vDis}, s{sK}
    v_mov_b64 {vr(G,2)}, 0
    v_mov_b64 {vr(G+2,2)}, 0
    v_mov_b64 {vr(G+4,2)}, 0
    v_mov_b64 {vr(G+6,2)}, 0
    s_bfe_u32 s{sRem}, s{sRow}, 0x80012
    """)
    if stamps and fst: a(f"{TM} s[44:45]\ns_and_b32 m0, s{sK}, 7\ns_waitcnt lgkmcnt(0)\nv_writelane_b32 v120, s44, m0")
    a(f"s_setpc_b64 {pr(sRet)}")

    FR, XB, ACC, IDX = 16, 80, 104, 104
    vXa, vQw, vMo = 12, 13, 14
    def xaddr(region):
        a(f"v_add_u32 v{vXa}, {region}, v{vFrag}")
    a(f"""
    L_preA:
    s_setprio {prioE}
    {common}
    {f's_cmp_ge_u32 s2, {nact}' if nact else ''}
    {'s_cbranch_scc1 L_end' if nact else ''}
    """)
    a(f"""
    v_and_b32 v{vT2}, 32, v{vL}
    v_lshl_add_u32 v{vT1}, v{vT2}, 7, v{vM16}
    v_lshl_add_u32 v{vT2}, v{vT2}, 6, v{vM16}
    s_add_u32 s{s0}, s{sW}, s{sNB}
    s_mul_i32 s{s1}, s{sW}, {PITCH}
    s_add_u32 m0, s{s1}, {L_R1}
    s_lshl_b32 s{s0}, s{s0}, 9
    buffer_load_dwordx4 v{vT1}, {srd(sX)}, s{s0} offen lds
    s_add_u32 m0, s{s1}, {L_R1 + 8*PITCH}
    s_add_u32 s{s0}, s{s0}, 8192
    buffer_load_dwordx4 v{vT1}, {srd(sX)}, s{s0} offen lds
    s_cmp_ge_u32 s{sW}, 4
    s_cbranch_scc1 L_xa2
    s_add_u32 m0, s{s1}, {L_R1 + 16*PITCH}
    s_add_u32 s{s0}, s{s0}, 8192
    buffer_load_dwordx4 v{vT2}, {srd(sX)}, s{s0} offen lds
    L_xa2:
    """)
    fragaddr()
    xaddr(L_R1)
    base(sOUT, pOUT, 10000 * 512)
    a(f"""
    s_mov_b32 s{sOUT+3}, 0x20000
    v_lshlrev_b32 v{vMo}, 4, v{vL}
    s_lshl_b32 s{s3_}, s{sW}, 6
    s_add_u32 s{s3_}, s{s3_}, {L_R2}
    v_add_u32 v{vQw}, s{s3_}, v{vFrag}
    s_lshl_b32 s{sFo}, s{sW}, 14
    s_add_u32 s{sFo}, s{sFo}, {W_FR}
    s_waitcnt lgkmcnt(0)
    """)
    for h in range(2):
        for u in range(10):
            src = 32 + 8 * h + u if u < 8 else 64 + 2 * h + u - 8
            if dbg & 8: a(f"s_and_b32 s{src}, s{src}, 0xff")
            a(f"v_lshl_add_u32 v{IDX+u}, s{src}, 9, v{vM16}")
        a("s_mov_b32 exec_lo, 0" if h == 0 else "s_mov_b64 exec, -1")
    stamp(1)
    a(f"s_cmp_ge_u32 s2, {NPROD}\ns_cbranch_scc1 L_nopb\ns_barrier\ns_barrier\nL_nopb:")
    def eload(u, lim):
        a(f"s_add_u32 m0, s{sRnd}, {L_E + u*PITCH}" if u < 8 else f"s_add_u32 m0, s{sPad}, {L_E + 8*TILE + (u-8)*PITCH}")
        a(f"s_waitcnt vmcnt({lim})\nbuffer_load_dwordx4 v{IDX+u}, {srd(sX)}, 0 offen lds")
    a(f"s_mul_i32 s{sPad}, s{sW}, {2*PITCH}\ns_mul_i32 s{sRnd}, s{sW}, {TILE}")
    def xread(s):
        for rt in range(3):
            a(f"ds_read_b128 {vr(XB+12*(s&1)+4*rt,4)}, v{vXa} offset:{rt*TILE+s*64}")
    vSL0, vSL1, vSH0, vSH1 = 8, 9, 10, 11
    for u in range(10):
        if u == 2: selregs(vSL0, vSL1, vSH0, vSH1)
        if u == u0 - 1:
            wait(SY_X, 8)
            xread(0)
        if u >= u0:
            a(f"s_waitcnt vmcnt({thr})\nds_read_b32 v{vT0}, v{vSy} offset:{SY_V}")
        eload(u, thr)
        if u + 1 == ptrig: signal(SY_P)
        if u == thr + 1: signal(SY_X)
        if u0 <= u < 9:
            a(f"s_mov_b32 s{sRem}, {u+1}\ns_waitcnt lgkmcnt(0)\nv_cmp_gt_u32 vcc, 8, v{vT0}\ns_cbranch_vccz L_eu10")
    a(f"s_mov_b32 s{sRem}, 10")
    stamp(4)
    wait(SY_V, 8, sleep=1)
    a("L_eu10:")
    def fload(i):
        if i % 4 == 0 and i: a(f"s_add_u32 s{sFo}, s{sFo}, {4096 if i % 16 else 131072 - 12288}")
        if dbg & 64 and i // 16 == 1: return
        if dbg & 1024 and i // 16 == 2: return
        a(f"buffer_load_dwordx4 {vr(FR+4*(i%16),4)}, v{vMo}, {srd(sWS)}, s{sFo} offen offset:{(i%4)*1024} sc1")
    def gemm(w_is_a, nxt, at):
        done = 0
        for s in range(8):
            if s < 7: xread(s + 1)
            a(f"s_waitcnt vmcnt({14 - 2*s + done}) lgkmcnt({3 if s < 7 else 0})")
            for rt in range(3):
                for t in range(2):
                    d, f, x = vr(ACC + 8 * rt + 4 * t, 4), vr(FR + 8 * s + 4 * t, 4), vr(XB + 12 * (s & 1) + 4 * rt, 4)
                    if not dbg & 128: a(f"v_mfma_f32_16x16x32_bf16 {d}, {f if w_is_a else x}, {x if w_is_a else f}, {'0' if s == 0 else d}")
            if s >= at:
                n = min(2 * s + 2, done + rate)
                a(f"s_setprio {prioL}")
                for i in range(done, n): fload(16 * nxt + i)
                a(f"s_setprio {prioA}")
                done = n
        return done
    def burst(mat, first=0):
        a(f"s_setprio {prioL}")
        rest = list(range(u0 + 1, 10)) if mat == 0 else []
        pos = {(k + 1) * 16 // len(rest) - 1: u for k, u in enumerate(rest)}
        for i in range(first, 16):
            fload(16 * mat + i)
            if i in pos:
                sk = a.label("Lem")
                a(f"s_cmp_gt_u32 s{sRem}, {pos[i]}\ns_cbranch_scc1 {sk}")
                eload(pos[i], 63)
                a(f"{sk}:")
        a(f"s_setprio {prioA}")
        if mat: stamp(mat + 1)
    stamp(5)
    if adelay: a(f"s_sleep {adelay}")
    if dbg & 1: a("s_branch L_end")

    burst(0)
    done = gemm(True, 1, at1)
    a("s_nop 3")
    for rt in range(3):
        d0, d1, o = ACC + 8 * rt, ACC + 8 * rt + 4, XB + 4 * rt
        a(f"""
        v_cvt_pk_bf16_f32 v{o}, v{d0}, v{d0+1}
        v_cvt_pk_bf16_f32 v{o+1}, v{d0+2}, v{d0+3}
        v_cvt_pk_bf16_f32 v{o+2}, v{d1}, v{d1+1}
        v_cvt_pk_bf16_f32 v{o+3}, v{d1+2}, v{d1+3}
        ds_write_b128 v{vQw}, {vr(o,4)} offset:{rt*TILE}
        """)
    signal(SY_A)
    stamp(6)
    burst(1, done)

    vEa, vQa, vEr, vAw = 12, 13, 14, 2
    sG = sK
    P, RB, AJ = 80, 80, 112
    DK = [120, 124, 4, 12]
    a(f"""
    s_mov_b32 s{sG}, s{sW}
    L_grp:
    s_mul_i32 s{s0}, s{sG}, {TILE}
    s_lshr_b32 s{s1}, s{sG}, 2
    s_mul_i32 s{s1}, s{s1}, {TILE}
    s_and_b32 s{s2_}, s{sG}, 1
    s_bfe_u32 s{s3_}, s{sG}, 0x10001
    s_cmp_ge_u32 s{sG}, 8
    s_cselect_b32 s{s3_}, s{s2_}, s{s3_}
    s_cselect_b32 s{s2_}, 0, s{s2_}
    s_mul_i32 s{s2_}, s{s2_}, {TILE//2}
    s_lshl_b32 s{s3_}, s{s3_}, 9
    s_add_u32 s{s1}, s{s1}, s{s2_}
    s_add_u32 s{s1}, s{s1}, s{s3_}
    s_add_u32 s{s1}, s{s1}, {L_R2}
    v_add_u32 v{vEa}, s{s0}, v{vFrag}
    v_bfe_u32 v{vT0}, v{vL}, 2, 2
    v_mul_u32_u24 v{vT0}, {PITCH}, v{vT0}
    v_and_b32 v{vT1}, 48, v{vL}
    v_add3_u32 v{vQa}, v{vT0}, v{vT1}, s{s1}
    v_lshl_add_u32 v{vEr}, v{vL}, 3, s{s0}
    v_lshl_add_u32 v{vAw}, v{vL}, 3, s{s1}
    s_cmp_ge_u32 s{sG}, 8
    s_cbranch_scc1 L_grp2
    """)
    wait(SY_A, 8, sleep=wsl)
    a("L_grp2:\ns_waitcnt lgkmcnt(0)")
    if dbg & 512: a("s_branch L_grpx")
    def pread(s):
        a(f"ds_read_b128 {vr(P+8*(s%6),4)}, v{vEa} offset:{s*64}")
        a(f"ds_read_b128 {vr(P+8*(s%6)+4,4)}, v{vQa} offset:{s*64}")
    for s in range(6): pread(s)
    for s in range(8):
        a(f"s_waitcnt lgkmcnt({10 if s < 3 else 14-2*s})")
        a(f"v_mfma_f32_16x16x32_bf16 v[4:7], {vr(P+8*(s%6),4)}, {vr(P+8*(s%6)+4,4)}, {'0' if s == 0 else 'v[4:7]'}")
        if s < 2: pread(s + 6)
    order = [(j, k) for j in (2, 3, 0, 1) for k in range(4)]
    for n, (j, k) in enumerate(order):
        i = 4 * k + j
        if n == 15: a("s_waitcnt lgkmcnt(14)")
        a(f"ds_read_b64 {vr(RB+8*j+2*k,2)}, v{vEr} offset:{(i&7)*PITCH+(i>>3)*512}")
    a(f"""
    v_mul_f32 v4, 0x3db8aa3b, v4
    v_mul_f32 v5, 0x3db8aa3b, v5
    v_mul_f32 v6, 0x3db8aa3b, v6
    v_mul_f32 v7, 0x3db8aa3b, v7
    v_exp_f32 v4, v4
    v_exp_f32 v5, v5
    v_exp_f32 v6, v6
    v_exp_f32 v7, v7
    v_add_f32 v12, v4, v5
    v_add_f32 v13, v6, v7
    v_add_f32 v12, v12, v13
    v_add_f32 v12, 0x3089705f, v12
    v_rcp_f32 v12, v12
    s_add_u32 s{sG}, s{sG}, 8
    v_mul_f32 v4, v4, v12
    v_mul_f32 v5, v5, v12
    v_mul_f32 v6, v6, v12
    v_mul_f32 v7, v7, v12
    v_cvt_pk_bf16_f32 v4, v4, v5
    v_cvt_pk_bf16_f32 v6, v6, v7
    """)
    for j in range(4):
        src = 4 + (j & 2)
        a(f"v_perm_b32 v{AJ+2*j}, v{src}, v{src}, v{vSH0 if j & 1 else vSL0}")
        a(f"v_perm_b32 v{AJ+2*j+1}, v{src}, v{src}, v{vSH1 if j & 1 else vSL1}")
    a("s_waitcnt lgkmcnt(0)")
    for j in range(4):
        for k in range(4):
            d = vr(DK[k], 4)
            a(f"v_mfma_f32_4x4x4_16b_bf16 {d}, {vr(AJ+2*j,2)}, {vr(RB+8*j+2*k,2)}, {'0' if j == 0 else d} cbsz:4 abid:{5*k}")
    a("s_nop 1")
    for k in range(4):
        d = DK[k]
        a(f"""
        v_cvt_pk_bf16_f32 v{AJ+2*k}, v{d}, v{d+1}
        v_cvt_pk_bf16_f32 v{AJ+2*k+1}, v{d+2}, v{d+3}
        ds_write_b64 v{vAw}, {vr(AJ+2*k,2)} offset:{k*PITCH}
        """)
    a(f"s_cmp_lt_u32 s{sG}, 10\ns_cbranch_scc1 L_grp\nL_grpx:")
    signal(SY_B)
    stamp(7)

    vOo, vOo2 = 8, 9
    xaddr(L_R2)
    a(f"""
    v_lshlrev_b32 v{vMo}, 4, v{vL}
    v_and_b32 v{vT2}, 15, v{vL}
    v_lshlrev_b32 v{vT2}, 2, v{vT2}
    v_and_b32 v{vT1}, 48, v{vL}
    v_lshl_add_u32 v{vOo}, v{vT1}, 7, v{vT2}
    v_and_b32 v{vT1}, 32, v{vL}
    v_lshl_add_u32 v{vOo2}, v{vT1}, 6, v{vT2}
    v_and_b32 v{vT1}, 16, v{vL}
    v_lshl_add_u32 v{vOo2}, v{vT1}, 22, v{vOo2}
    s_lshl_b32 s{s2_}, s{sNB}, 9
    s_lshl_b32 s{s3_}, s{sW}, 6
    s_add_u32 s{s2_}, s{s2_}, s{s3_}
    """)
    wait(SY_B, 8, sleep=wsl)
    xread(0)
    done = gemm(False, 2, 8 if park else at2)
    stamp(8)
    if park:
        a(f"s_add_u32 s{sFo}, s{sFo}, {131072 - 12288 + 4096 * ((NP - 1) // 4)}")
        burst(2, NP)
        a(f"""
        v_and_b32 v{vT1}, 15, v{vL}
        v_lshlrev_b32 v{vT1}, 2, v{vT1}
        v_and_b32 v{vT2}, 16, v{vL}
        v_lshl_add_u32 v{vT1}, v{vT2}, 2, v{vT1}
        s_lshl_b32 s{s0}, s{sW}, 6
        v_add_u32 v{vT1}, s{s0}, v{vT1}
        v_and_b32 v{vT1}, 0x1ff, v{vT1}
        v_and_b32 v{vT2}, 48, v{vL}
        v_lshl_add_u32 v{vT1}, v{vT2}, 8, v{vT1}
        s_mov_b32 s{sSelLo}, 0x05040100
        s_mov_b32 s{sSelHi}, 0x07060302
        """)
        wait(SY_D, 8, sleep=2, cap=0x1000000)
        stamp(13)
        raw = [FR + 8 * (n + 1) for n in range(park - 1)] + [XB]
        if park > 4: a(f"v_add_u32 v{vT2}, 0x10000, v{vT1}")
        def wread(n):
            for q in range(4):
                o = (n & 3) * 64 + 4 * q
                a(f"ds_read2st64_b32 {vr(raw[n]+2*q,2)}, v{vT1 if n < 4 else vT2} offset0:{o} offset1:{o+2}")
        for n in range(min(3, park)): wread(n)
        for n in range(park):
            a(f"s_waitcnt lgkmcnt({4*min(2, park-1-n)})")
            if n + 3 < park: wread(n + 3)
            r, o = raw[n], FR + 8 * n
            for q in range(4):
                a(f"v_perm_b32 v{o+q}, v{r+2*q+1}, v{r+2*q}, s{sSelLo}")
                a(f"v_perm_b32 v{o+4+q}, v{r+2*q+1}, v{r+2*q}, s{sSelHi}")
    else:
        burst(2, done)
    xaddr(L_R3)
    for rt in range(3):
        if dbg & 4096 and rt == 2: break
        wait(SY_T + 4 * rt, 16 if rt < 2 else 8, sleep=tsl if rt < 2 else 0, cap=0x1000000)
        if rt == 2: stamp(10)
        for s in range(6):
            a(f"ds_read_b128 {vr(XB+4*s,4)}, v{vXa} offset:{rt*TILE+s*64}")
        for s in range(8):
            vm = f"vmcnt({14-2*s}) " if rt == 0 else ""
            a(f"s_waitcnt {vm}lgkmcnt({5 if s < 3 else 7-s})")
            for t in range(2):
                d = vr(ACC + 8 * rt + 4 * t, 4)
                if not (dbg & 128 and rt < 2) and not (dbg & 8192 and rt == 2): a(f"v_mfma_f32_16x16x32_bf16 {d}, {vr(XB+4*(s%6),4)}, {vr(FR+8*s+4*t,4)}, {d}")
            if s < 2: a(f"ds_read_b128 {vr(XB+4*s,4)}, v{vXa} offset:{rt*TILE+(s+6)*64}")
        a("s_nop 7")
        for r in range(4):
            if dbg & 256 and rt < 2: continue
            if dbg & 16384 and rt == 2: continue
            d = ACC + 8 * rt
            a(f"""
            v_cvt_pk_bf16_f32 v{d+r}, v{d+r}, v{d+4+r}
            buffer_store_dword v{d+r}, v{vOo if rt < 2 else vOo2}, {srd(sOUT)}, s{s2_} offen offset:{r*512} sc1
            """)
        if rt < 2: a(f"s_add_u32 s{s2_}, s{s2_}, 8192")
        if rt == 0: stamp(9)
    stamp(11)
    if stamps: a("s_waitcnt vmcnt(0)")
    stamp(12)
    a("L_end:")
    if probe >= 0:
        a(f"""
        s_cmp_eq_u32 s{sW}, {pw}
        s_cbranch_scc0 L_noprobe
        s_sub_u32 s{s0}, s{ST0+2*probe}, s{ST0}
        s_min_u32 s{s0}, s{s0}, 20000
        s_mul_i32 s{s0}, s{s0}, {pk}
        s_memrealtime s[60:61]
        L_probe:
        s_memrealtime s[62:63]
        s_waitcnt lgkmcnt(0)
        s_sub_u32 s62, s62, s60
        s_cmp_lt_u32 s62, s{s0}
        s_cbranch_scc1 L_probe
        L_noprobe:
        """)
    if stamps in (1, 2):
        a(f"""
        s_mov_b64 exec, -1
        s_add_u32 s{sT1}, s{pWS}, {STAMP_OFF}
        s_addc_u32 s{sT1+1}, s{pWS+1}, 0
        s_mov_b32 s{sT1+2}, 0x1000000
        s_lshl_b32 s{s0}, s2, 4
        s_add_u32 s{s0}, s{s0}, s{sW}
        s_mul_i32 s{s0}, s{s0}, {NSTAMP*8}
        v_lshlrev_b32 v4, 2, v0
        v_mov_b32 v6, 0
        """)
        for i in range(2 * NSTAMP): a(f"v_writelane_b32 v6, s{ST0+i}, {i}")
        a(f"s_bfm_b64 exec, {2*NSTAMP}, 0\nbuffer_store_dword v6, v4, {srd(sT1)}, s{s0} offen")
    a("L_exit:\ns_endpgm")

    vSL0, vSL1 = 10, 11
    a("L_slow:\ns_setprio 0")
    sig(SY_C2)
    wait(SY_C2, 8)
    a(f"v_mov_b32 v{vSyB}, v{vSy}")
    base(sT1, pSRC, 640000)
    base(sT2, pDST, 640000)
    base(sT3, pDIS, 20000)
    a(f"""
    s_mov_b32 s{sT3+3}, 0x20000
    s_sub_u32 s{sK}, s{sPad}, 1
    s_mov_b32 s{sRow}, {L_DUMMY + (((SY_DUM - SY_T) // 4) << 26)}
    s_mov_b32 s{sDis}, 0
    s_call_b64 {pr(sRet)}, L_flush
    s_add_u32 s{sRnd}, s{sJ}, s{sNB}
    s_add_u32 s{sPad}, s{sRnd}, 40
    v_lshlrev_b32 v16, 2, v{vL}
    v_and_b32 v17, 32, v{vL}
    v_lshl_add_u32 v17, v17, 22, v{vM16}
    v_mov_b32 v24, 0
    L_sn:
    s_mov_b32 s{s2_}, 0
    L_sc:
    buffer_load_dword v18, v16, {srd(sT2)}, s{s2_} offen
    buffer_load_dword v19, v16, {srd(sT1)}, s{s2_} offen
    s_waitcnt vmcnt(0)
    v_cmp_eq_u32 vcc, s{sRnd}, v18
    s_cbranch_vccz L_sx
    L_se:
    s_ff1_i32_b64 s{s0}, vcc
    s_bitset0_b64 vcc, s{s0}
    v_readlane_b32 s{s1}, v19, s{s0}
    s_nop 3
    s_lshl_b32 s{s3_}, s{s1}, 9
    s_lshl_b32 s{s1}, s{s1}, 1
    buffer_load_dwordx4 v[20:23], v17, {srd(sX)}, s{s3_} offen
    buffer_load_ushort v{vAraw}, v24, {srd(sT3)}, s{s1} offen
    s_waitcnt vmcnt(0)
    v_perm_b32 v{vA0}, v{vAraw}, v{vAraw}, v{vSL0}
    v_perm_b32 v{vA0+1}, v{vAraw}, v{vAraw}, v{vSL1}
    s_nop 1
    v_mfma_f32_4x4x4_16b_bf16 {vr(G,4)}, {vr(vA0,2)}, v[20:21], {vr(G,4)}
    v_mfma_f32_4x4x4_16b_bf16 {vr(G+4,4)}, {vr(vA0,2)}, v[22:23], {vr(G+4,4)}
    s_cmp_lg_u64 vcc, 0
    s_cbranch_scc1 L_se
    L_sx:
    s_add_u32 s{s2_}, s{s2_}, 256
    s_cmp_lt_u32 s{s2_}, 640000
    s_cbranch_scc1 L_sc
    s_call_b64 {pr(sRet)}, L_flush
    s_add_u32 s{sRnd}, s{sRnd}, 8
    s_cmp_lt_u32 s{sRnd}, s{sPad}
    s_cbranch_scc1 L_sn
    s_branch L_gdone
    """)
    hdr = open("standalone__hybrid_graph_tf_exphormer__graph.s.ref").read().split("; Override")[0]
    text = wrap(a.text(), NWG, 1024, LDS, 128, header=hdr)
    lines = (text_size(text.replace("CODE_LINES", "100")) - 256) // 128
    assert 64 < lines < 200
    return text.replace("CODE_LINES", str(lines))


if __name__ == "__main__":
    kw = dict(x.split("=") for x in sys.argv[2:])
    kw = {k: int(v) for k, v in kw.items()}
    open(sys.argv[1], "w").write(gen(**kw))
```

```python
import sys
from asmlib import Asm, wrap, text_size

NWG, NPW, NPROD, EPW, EROW = 250, 40, 64, 2500, 10240
TILE, PITCH = 8448, 1056
CAP = 80
L_E = 0
L_R1 = 10 * TILE
L_R2 = L_R1 + 2 * TILE + TILE // 2
L_R3 = L_R2 + 3 * TILE
L_OFF = L_R3 + 2 * TILE + TILE // 2
L_WGT = L_OFF + 2 * 8 * CAP * 4
L_CNT = L_WGT + 2 * 8 * CAP * 2
L_BASE = L_CNT + 160
L_SYNC = L_BASE + 160
L_HIST = L_SYNC + 128
L_TAB = L_HIST + 1024
L_SORT, L_DUMMY = L_R2, L_HIST
LDS = L_TAB + 1024
assert LDS <= 163840, LDS
W_ENT, W_EP, W_FR, W_OFFS, W_FLAG, WS_SIZE = 0, 0xa0100, 0xb0000, 0x110000, 0x120000, 0x160000
TMASK, NULLOFF = 0xfffff000, 0x2000000
STAMP_OFF = 128 << 20
SY_X, SY_Y, SY_M, SY_C1, SY_C2, SY_A, SY_B, SY_OV, SY_GO, SY_T, SY_DUM, SY_V, SY_M2, SY_P = 0, 4, 8, 12, 16, 20, 24, 28, 32, 36, 48, 52, 56, 60
SY_D, SY_TAG = 64, 68


def gen(stamps=0, probe=-1, pw=0, pk=4, dbg=0, gmask=0xff, fst=0, nact=0, skew=0, adelay=0,
        thr=1, u0=6, ptrig=6, psleep=8, fstr=16, frep=8, park=4, dr=4, at1=8, at2=4, rate=4, D=8, flip=3,
        prioA=0, prioB=1, prioP=1, prioE=2, prioL=3, wsl=1, tsl=3, xb=0, pgo=0, m4=1):
    R = 8
    TM = 's_memtime' if stamps == 2 else 's_memrealtime'
    n_null, n_init = (L_WGT - L_OFF) // 16, (L_TAB - L_OFF) // 16
    a = Asm()
    sX, sT3, sWS, sOUT, sT1, sT2 = 8, 12, 16, 20, 24, 28
    pX, pSRC, pDST, pESRC, pDIS, pWL, pWQ, pWK, pWV, pOUT, pDBG, pWS = 32, 34, 36, 38, 42, 44, 46, 48, 50, 52, 54, 56
    sW, sJ, sNB, sBeta, sC512 = 3, 4, 5, 6, 7
    s0, s1, s2_, s3_ = 58, 59, 60, 61
    sRem, sK, sDis, sRow, sRnd, sPad = 62, 63, 64, 65, 66, 67
    sRet, sSelLo, sSelHi = 68, 70, 71
    sFo, sTc, sTag = 100, 101, 40
    ST0, NSTAMP = 72, 14
    vL, vFrag, vM16, vSy, vT0, vT1, vT2, vT3 = 0, 1, 2, 3, 4, 5, 6, 7
    vOne = 62

    def srd(s): return f"s[{s}:{s+3}]"
    def pr(s): return f"s[{s}:{s+1}]"
    def vr(b, n): return f"v[{b}:{b+n-1}]"
    def stamp(i):
        if stamps and (stamps != 3 or i == probe): a(f"{TM} {pr(ST0+2*i)}\ns_waitcnt lgkmcnt(0)")
    def base(s, p, size=None):
        a(f"s_mov_b64 {pr(s)}, {pr(p)}")
        if size: a(f"s_mov_b32 s{s+2}, {size}")
    def signal(off):
        a(f"""
        s_mov_b64 exec, 1
        v_mov_b32 v{vT0}, 1
        ds_add_u32 v{vSy}, v{vT0} offset:{off}
        s_mov_b64 exec, -1
        """)
    def wait(off, n, sleep=0, cap=0x400000, vSy=vSy):
        lp, ok = a.label("Lw"), a.label("Lk")
        a(f"""
        s_mov_b32 s{s1}, 0
        {lp}:
        ds_read_b32 v{vT0}, v{vSy} offset:{off}
        s_waitcnt lgkmcnt(0)
        v_cmp_gt_u32 vcc, {n}, v{vT0}
        s_cbranch_vccz {ok}
        """)
        if sleep: a(f"s_sleep {sleep}")
        a(f"""
        s_add_u32 s{s1}, s{s1}, 1
        s_cmp_lt_u32 s{s1}, {cap}
        s_cbranch_scc1 {lp}
        s_branch L_end
        {ok}:
        """)
    def fragaddr():
        a(f"""
        v_and_b32 v{vT0}, 7, v{vL}
        v_mul_u32_u24 v{vFrag}, {PITCH}, v{vT0}
        v_and_b32 v{vT0}, 8, v{vL}
        v_lshl_add_u32 v{vFrag}, v{vT0}, 6, v{vFrag}
        v_and_b32 v{vT0}, 48, v{vL}
        v_add_u32 v{vFrag}, v{vT0}, v{vFrag}
        """)
    def selregs(lo0, lo1, hi0=None, hi1=None):
        a(f"""
        v_and_b32 v{vT0}, 3, v{vL}
        v_mov_b32 v{vT1}, 0x0c0c0c0c
        v_mov_b32 v{vT2}, 0x0c0c0302
        v_mov_b32 v{vT3}, 0x03020c0c
        v_cmp_eq_u32 s[58:59], 0, v{vT0}
        v_cmp_eq_u32 s[60:61], 2, v{vT0}
        v_cmp_eq_u32 vcc, 1, v{vT0}
        v_cndmask_b32 v{lo0}, v{vT1}, v{vT2}, s[58:59]
        v_cndmask_b32 v{lo1}, v{vT1}, v{vT2}, s[60:61]
        v_cndmask_b32 v{lo0}, v{lo0}, v{vT3}, vcc
        v_cmp_eq_u32 vcc, 3, v{vT0}
        s_nop 1
        v_cndmask_b32 v{lo1}, v{lo1}, v{vT3}, vcc
        """)
        if hi0 is not None: a(f"v_mov_b32 v{hi0}, v{lo0}\nv_mov_b32 v{hi1}, v{lo1}")
        a(f"v_and_b32 v{lo0}, 0xfdfdfdfd, v{lo0}\nv_and_b32 v{lo1}, 0xfdfdfdfd, v{lo1}")

    SRCV, DSTV, AV, PV, TB = 16, 22, 28, 34, 40
    sTid, sMode = 62, 63
    NWW, NWT = NWG - NPROD - 128, 96 if park >= 4 else 128
    a(f"s_cmpk_ge_u32 s2, {NWG}\ns_cbranch_scc1 L_exit")
    if skew: a(f"s_and_b32 s58, s2, 7\nL_skw:\ns_sub_u32 s58, s58, 1\ns_cbranch_scc1 L_skd\ns_sleep {skew}\ns_branch L_skw\nL_skd:")
    if stamps: a(f"{TM} {pr(ST0)}")
    if stamps == 3 and probe: a(f"{TM} {pr(ST0+2*probe)}")
    beta = f"""
    s_and_b32 s{s1}, s2, 7
    s_mul_i32 s{s2_}, s{s1}, 31
    s_min_u32 s{s1}, s{s1}, 2
    s_add_u32 s{sBeta}, s{sBeta}, s{s2_}
    s_add_u32 s{sBeta}, s{sBeta}, s{s1}
    s_mul_i32 s{sNB}, s{sBeta}, {NPW}
    """
    a(f"""
    s_load_dwordx16 s[32:47], s[0:1], 0
    s_load_dwordx8 s[48:55], s[0:1], 64
    s_load_dwordx2 s[56:57], s[0:1], 96
    s_getpc_b64 s[60:61]
    s_lshr_b32 s{sBeta}, s2, 3
    v_lshl_add_u32 v1, v0, 5, s{sBeta}
    v_lshlrev_b32 v2, 7, v1
    v_cmpx_gt_u32 vcc, CODE_LINES, v1
    s_cbranch_execz L_nopf
    global_load_dword v15, v2, s[60:61] offset:384
    L_nopf:
    s_mov_b64 exec, -1
    v_lshrrev_b32 v1, 6, v0
    v_lshlrev_b32 v{vT1}, 4, v0
    v_and_b32 v{vT2}, 32, v0
    v_readfirstlane_b32 s{sW}, v1
    v_and_b32 v{vM16}, 0x1f0, v{vT1}
    s_and_b32 s{sJ}, s{sW}, 7
    s_and_b32 s{s3_}, s{sW}, 4
    s_add_u32 s{s3_}, s{s3_}, s{sJ}
    s_mul_i32 s{sTc}, s{sJ}, {PITCH}
    s_cmp_ge_u32 s{sW}, 8
    s_cbranch_scc1 L_eA
    s_setprio 3
    s_sub_u32 s{sTid}, s2, {NPROD}
    s_cbranch_scc0 L_eM
    s_mul_i32 s{s0}, s2, {EPW*4}
    v_add_u32 v8, s{s0}, v{vT1}
    v_min_u32 v9, {EPW - 2048 - 1}, v0
    s_addk_i32 s{s0}, 8192
    v_lshl_add_u32 v9, v9, 2, s{s0}
    s_mov_b32 s{sMode}, 1
    s_waitcnt lgkmcnt(0)
    global_load_dwordx4 {vr(DSTV,4)}, v8, {pr(pDST)}
    global_load_dword v{DSTV+4}, v9, {pr(pDST)}
    s_setprio 2
    global_load_dwordx4 {vr(SRCV,4)}, v8, {pr(pSRC)}
    global_load_dword v{SRCV+4}, v9, {pr(pSRC)}
    s_branch L_eB
    L_eM:
    s_cmpk_ge_u32 s{sTid}, 128
    s_cbranch_scc1 L_eW
    {f's_mov_b32 s{sMode}, 0' if m4 else ''}
    {f's_cmp_ge_u32 s{sJ}, 4' if m4 else ''}
    {'s_cbranch_scc1 L_eBw' if m4 else ''}
    v_lshl_add_u32 v8, v{vT2}, 8, v{vM16}
    v_lshl_add_u32 v8, s{s3_}, 9, v8
    s_lshr_b32 s{s0}, s{sTid}, 4
    s_bfe_u32 s{s1}, s{sTid}, 0x10003
    s_lshl3_add_u32 s{s0}, s{s0}, s{s1}
    v_lshl_add_u32 v9, s{s0}, 11, v8
    s_and_b32 s{s0}, s{sTid}, 7
    v_lshl_add_u32 v8, s{s0}, 14, v8
    s_add_u32 m0, s{sTc}, {L_R2}
    s_waitcnt lgkmcnt(0)
    global_load_lds_dwordx4 v8, {pr(pWQ)}
    s_addk_i32 m0, {TILE - 2048}
    s_mov_b32 s{sMode}, 2
    global_load_lds_dwordx4 v8, {pr(pWQ)} offset:2048
    s_addk_i32 m0, {TILE + 2048}
    s_nop 0
    global_load_lds_dwordx4 v9, {pr(pWK)}
    """)
    if m4: a(f"""
    s_addk_i32 m0, {4*PITCH}
    v_add_u32 v9, 4096, v9
    global_load_lds_dwordx4 v9, {pr(pWK)}
    s_addk_i32 m0, {-2*TILE & 0xffff}
    v_add_u32 v8, 4096, v8
    global_load_lds_dwordx4 v8, {pr(pWQ)}
    s_addk_i32 m0, {TILE - 2048}
    s_nop 0
    global_load_lds_dwordx4 v8, {pr(pWQ)} offset:2048
    """)
    a(f"""
    s_branch L_eB
    L_eA:
    {beta}
    s_lshl_b32 s{s0}, s{sNB}, 4
    s_lshl3_add_u32 s{s1}, s{s3_}, s{s0}
    s_lshl_b32 s{s2_}, s{sJ}, 6
    s_add_u32 s{s0}, s{s0}, s{s2_}
    s_add_u32 s{s2_}, s{sNB}, s{sJ}
    v_lshl_add_u32 v8, s{s2_}, 9, v{vM16}
    v_lshl_add_u32 v9, v{vT2}, 7, v8
    s_add_u32 m0, s{sTc}, {L_R1}
    s_waitcnt lgkmcnt(0)
    s_load_dwordx16 s[12:27], {pr(pESRC)}, s{s0}
    s_load_dwordx2 s[28:29], {pr(pESRC)}, s{s1} offset:512
    s_load_dwordx2 s[30:31], {pr(pESRC)}, s{s1} offset:544
    s_load_dword s{sTag}, {pr(pWS)}, {W_EP}
    {'' if xb else 's_barrier'}
    global_load_lds_dwordx4 v9, {pr(pX)}
    s_addk_i32 m0, {8*PITCH}
    v_add_u32 v9, 8192, v9
    global_load_lds_dwordx4 v9, {pr(pX)}
    L_512:
    s_cmp_ge_u32 s{sJ}, 4
    s_cbranch_scc1 L_preA
    s_addk_i32 m0, {8*PITCH}
    v_lshl_add_u32 v9, v{vT2}, 6, v8
    v_add_u32 v9, 16384, v9
    global_load_lds_dwordx4 v9, {pr(pX)}
    s_branch L_preA
    L_eW:
    s_mul_i32 s{s0}, s{sJ}, {NWW}
    s_add_u32 s{sTid}, s{sTid}, s{s0}
    s_sub_u32 s{sTid}, s{sTid}, 128
    s_mov_b32 s{sMode}, 0
    s_cmp_ge_u32 s{sTid}, {NWT}
    s_waitcnt lgkmcnt(0)
    s_cbranch_scc1 L_eB
    """)
    if park >= 4: a(f"""
    s_and_b32 s{s1}, s{sTid}, 28
    s_add_u32 s{s1}, s{s1}, 4
    s_cmp_ge_u32 s{sTid}, 64
    s_cselect_b32 s{s1}, s{s1}, 0
    s_add_u32 s{sTid}, s{sTid}, s{s1}
    """)
    a(f"""
    s_mov_b32 s{sMode}, 4
    s_and_b32 s{s1}, s{sTid}, 7
    s_lshl_b32 s{s1}, s{s1}, 14
    s_bfe_u32 s{s2_}, s{sTid}, 0x30003
    s_lshl_b32 s{s2_}, s{s2_}, 6
    s_add_u32 s{s1}, s{s1}, s{s2_}
    v_and_b32 v8, 15, v0
    v_lshl_add_u32 v8, v8, 2, s{s1}
    v_and_b32 v9, 48, v0
    v_lshl_add_u32 v8, v9, 8, v8
    s_cmp_lt_u32 s{sTid}, 64
    s_cselect_b64 s[58:59], {pr(pWV)}, {pr(pWL)}
    """)
    for j in range(8):
        a(f"global_load_dword v{16+j}, v8, s[58:59] offset:{j*512}")
    common = f"""
    v_and_b32 v{vL}, 63, v0
    s_xor_b32 s{sW}, s{sW}, 8
    v_mov_b32 v{vSy}, {L_SYNC}
    s_mov_b64 {pr(sX)}, {pr(pX)}
    s_mov_b32 s{sX+2}, {10000*512}
    s_mov_b32 s{sX+3}, 0x20000
    """
    if stamps in (1, 2): common += "\n".join(f"s_mov_b64 {pr(ST0+2*i)}, 0" for i in range(1, NSTAMP) if i not in (10, 11))
    wsrd = f"""
    s_mov_b64 {pr(sWS)}, {pr(pWS)}
    s_mov_b32 s{sWS+2}, {WS_SIZE}
    s_mov_b32 s{sWS+3}, 0x20000
    """
    assert n_null <= 512 < n_init <= 576
    a("L_eBw:\ns_waitcnt lgkmcnt(0)\nL_eB:")
    stamp(10)
    a(f"""
    s_setprio 3
    v_mov_b32 v8, {NULLOFF}
    v_cmp_gt_u32 vcc, {n_null}, v0
    v_add_u32 v4, {L_OFF}, v{vT1}
    v_mov_b64 v[12:13], 0
    v_cndmask_b32 v8, 0, v8, vcc
    v_mov_b32 v9, v8
    v_mov_b64 v[10:11], v[8:9]
    ds_write_b128 v4, v[8:11]
    v_cmpx_gt_u32 vcc, {n_init - 512}, v0
    ds_write_b64 v4, v[12:13] offset:8192
    ds_write_b64 v4, v[12:13] offset:8200
    s_mov_b64 exec, -1
    {beta}
    s_waitcnt lgkmcnt(0)
    s_barrier
    """)
    stamp(11)
    a(f"""
    {common}
    {wsrd}
    s_mov_b32 s{sT1+3}, 0x20000
    s_mov_b32 s{sT2+3}, 0x20000
    v_mov_b32 v{vOne}, 1
    s_cmp_eq_u32 s{sMode}, 1
    s_cbranch_scc0 L_notprod
    """)
    def sig(off): a(f"s_mov_b64 exec, 1\nds_add_u32 v{vSy}, v{vOne} offset:{off}\ns_mov_b64 exec, -1")
    def gettag():
        wait(SY_TAG, 1)
        a(f"v_readfirstlane_b32 s{sTag}, v{vT0}\ns_nop 0\ns_bitset0_b32 s{sTag}, 0")

    a(f"""
    v_mov_b32 v9, 4
    v_mov_b32 v10, {L_HIST}
    v_lshl_add_u32 v11, v{vL}, 4, v10
    v_cmp_gt_u32 vcc, {(EPW - 2048) * 16}, v{vT1}
    v_add_u32 v59, {L_SORT}, v{vT1}
    s_mul_i32 s{s0}, s2, {EROW}
    s_mov_b64 s[66:67], vcc
    s_waitcnt vmcnt(3)
    """)
    stamp(1)
    for j in range(5):
        if j == 4: a("s_waitcnt vmcnt(2)\ns_mov_b64 exec, s[66:67]")
        a(f"""
        v_mul_u32_u24 v{AV+j}, 52429, v{DSTV+j}
        v_lshrrev_b32 v{AV+j}, 21, v{AV+j}
        v_lshl_add_u32 v{AV+j}, v{AV+j}, 2, v10
        ds_add_rtn_u32 v{PV+j}, v{AV+j}, v9
        """)
    a("s_mov_b64 exec, -1")
    a('s_waitcnt lgkmcnt(0)\ns_barrier')
    a(f"ds_read_b128 v[12:15], v11")
    a(f"""
    s_waitcnt lgkmcnt(0)
    v_add_u32 v56, v12, v13
    v_add3_u32 v57, v56, v14, v15
    s_nop 1
    v_add_u32_dpp v58, v57, v57 row_shr:1 row_mask:0xf bank_mask:0xf bound_ctrl:1
    s_nop 1
    v_add_u32_dpp v58, v58, v58 row_shr:2 row_mask:0xf bank_mask:0xf bound_ctrl:1
    s_nop 1
    v_add_u32_dpp v58, v58, v58 row_shr:4 row_mask:0xf bank_mask:0xf bound_ctrl:1
    s_nop 1
    v_add_u32_dpp v58, v58, v58 row_shr:8 row_mask:0xf bank_mask:0xf bound_ctrl:1
    s_nop 1
    v_add_u32_dpp v58, v58, v58 row_bcast:15 row_mask:0xa bank_mask:0xf
    s_nop 1
    v_add_u32_dpp v58, v58, v58 row_bcast:31 row_mask:0xc bank_mask:0xf
    v_sub_u32 v64, v58, v57
    v_add_u32 v65, v64, v12
    v_add_u32 v66, v64, v56
    v_add_u32 v67, v66, v14
    ds_write_b128 v11, v[64:67] offset:{L_TAB-L_HIST}
    """)
    for j in range(5):
        if j == 4: a("s_mov_b64 exec, s[66:67]")
        a(f"ds_read_b32 v{TB+j}, v{AV+j} offset:{L_TAB-L_HIST}")
    a(f"s_mov_b64 exec, -1\ns_mov_b32 s{s2_}, {L_SORT}\ns_waitcnt vmcnt(0)")
    for j in range(5):
        a(f"v_lshl_or_b32 v{SRCV+j}, v{DSTV+j}, 16, v{SRCV+j}")
    for j in range(5):
        if j == 4: a("s_mov_b64 exec, s[66:67]")
        a(f"s_waitcnt lgkmcnt(4)\nv_add3_u32 v{TB+j}, v{TB+j}, v{PV+j}, s{s2_}\nds_write_b32 v{TB+j}, v{SRCV+j}")
    a("s_mov_b64 exec, -1")
    a('s_waitcnt lgkmcnt(0)\ns_barrier')
    a(f"""
    ds_read_b128 v[12:15], v59
    ds_read_b128 v[68:71], v59 offset:8192
    s_add_u32 s{s2_}, s{s0}, 8192
    s_cmp_ge_u32 s{sJ}, 2
    s_waitcnt lgkmcnt(1)
    buffer_store_dwordx4 v[12:15], v{vT1}, {srd(sWS)}, s{s0} offen sc1
    s_cbranch_scc1 L_cp1
    s_waitcnt lgkmcnt(0)
    buffer_store_dwordx4 v[68:71], v{vT1}, {srd(sWS)}, s{s2_} offen sc1
    L_cp1:
    """)
    stamp(2)
    a(f"s_cmp_eq_u32 s{sJ}, 0\ns_cbranch_scc1 L_row\ns_waitcnt vmcnt(0)")
    sig(SY_M2)
    a(f"""
    s_branch L_preB
    L_row:
    s_lshl_b32 s{s3_}, s2, 10
    s_add_u32 s{s3_}, s{s3_}, {W_OFFS}
    """)
    gettag()
    for i in range(4): a(f"v_lshrrev_b32 v{64+i}, 2, v{64+i}\nv_or_b32 v{64+i}, s{sTag}, v{64+i}")
    wait(SY_M2, 7)
    a(f"""
    s_waitcnt vmcnt(0)
    buffer_store_dwordx4 v[64:67], v{vT1}, {srd(sWS)}, s{s3_} offen sc1
    ds_write_b32 v{vSy}, v{vOne} offset:{SY_GO}
    """)
    stamp(3)
    a(f"""
    s_branch L_preB
    L_notprod:
    s_cmp_eq_u32 s{sMode}, 0
    s_cbranch_scc1 L_taskw
    """)
    fragaddr()
    a(f"""
    v_add_u32 v{vT1}, {L_R2}, v{vFrag}
    s_lshr_b32 s{s0}, s{sTid}, 4
    s_and_b32 s{s1}, s{sTid}, 7
    s_lshl3_add_u32 s{s0}, s{s0}, s{s1}
    s_bfe_u32 s{s1}, s{sTid}, 0x10003
    s_lshl1_add_u32 s{s0}, s{s0}, s{s1}
    s_lshl_b32 s{s0}, s{s0}, 10
    s_add_u32 s{s0}, s{s0}, {W_FR}
    v_lshlrev_b32 v{vT2}, 4, v{vL}
    """)
    a("s_waitcnt vmcnt(0)")
    stamp(13)
    a(f"""
    s_cmp_eq_u32 s{sMode}, 4
    s_cbranch_scc1 L_wtask
    s_cmp_eq_u32 s{sJ}, 0
    s_cbranch_scc0 L_taskw
    """)
    wait(SY_M2, 7)

    stamp(1)
    MB = [16, 28, 40, 64, 76, 88, 100, 112]
    for ks in range(4):
        for t in range(3):
            a(f"ds_read_b128 {vr(MB[ks]+4*t,4)}, v{vT1} offset:{t*TILE + ks*64}")
    for ks in range(8):
        a(f"s_waitcnt lgkmcnt({min(9, 3*(7-ks))})")
        if ks < 4:
            for t in range(3):
                a(f"ds_read_b128 {vr(MB[ks+4]+4*t,4)}, v{vT1} offset:{t*TILE + (ks+4)*64}")
        for t in range(2):
            c = "0" if ks == 0 else vr(8 + 4 * t, 4)
            a(f"v_mfma_f32_16x16x32_bf16 {vr(8+4*t,4)}, {vr(MB[ks]+4*t,4)}, {vr(MB[ks]+8,4)}, {c}")
    a(f"""
    s_nop 6
    v_cvt_pk_bf16_f32 v16, v8, v9
    v_cvt_pk_bf16_f32 v17, v10, v11
    v_cvt_pk_bf16_f32 v18, v12, v13
    v_cvt_pk_bf16_f32 v19, v14, v15
    buffer_store_dwordx4 v[16:19], v{vT2}, {srd(sWS)}, s{s0} offen sc1
    """)
    stamp(2)
    a(f"""
    s_branch L_flag
    L_wtask:
    s_lshl_b32 s{s0}, s{sTid}, 11
    s_add_u32 s{s0}, s{s0}, {W_FR + 131072}
    s_mov_b32 s{sSelLo}, 0x05040100
    s_mov_b32 s{sSelHi}, 0x07060302
    """)
    for q in range(4):
        a(f"v_perm_b32 v{64+q}, v{17+2*q}, v{16+2*q}, s{sSelLo}")
        a(f"v_perm_b32 v{68+q}, v{17+2*q}, v{16+2*q}, s{sSelHi}")
    a(f"""
    buffer_store_dwordx4 v[64:67], v{vT2}, {srd(sWS)}, s{s0} offen sc1
    buffer_store_dwordx4 v[68:71], v{vT2}, {srd(sWS)}, s{s0} offen offset:1024 sc1
    s_cmp_eq_u32 s{sJ}, 0
    s_cbranch_scc1 L_flag
    s_waitcnt vmcnt(0)
    L_taskw:
    """)
    sig(SY_M2)
    a("s_branch L_preB\nL_flag:")
    gettag()
    a(f"""
    s_mul_i32 s{s3_}, s2, {fstr}
    s_add_u32 s{s3_}, s{s3_}, {W_FLAG - NPROD*fstr}
    v_mov_b32 v10, s{sTag}
    v_mov_b32 v11, s{sTag}
    v_lshlrev_b32 v9, 15, v{vL}
    """)
    wait(SY_M2, 7)
    a(f"""
    s_waitcnt vmcnt(0)
    s_mov_b64 exec, {(1 << frep) - 1}
    buffer_store_dwordx2 v[10:11], v9, {srd(sWS)}, s{s3_} offen sc1
    ds_write_b32 v{vSy}, v{vOne} offset:{SY_GO}
    s_mov_b64 exec, -1
    """)
    stamp(3)
    EV, LA, RK, WV = 16, 24, 32, 40
    vDis, vRow, vSL0, vSL1, vSl, vEnt, vAad, vFo = 8, 9, 10, 11, 12, 13, 14, 15
    vCnt, vEa2, vKey, vSuf, vR3, vCb, vOfa, vLb, vSub, vWb, vOf, vOb = 48, 49, 50, 51, 52, 53, 54, 55, 56, 57, 58, 60
    vMM, vSyB = 2, 12
    a("L_preB:\ns_setprio 3")
    if nact: a(f"s_cmp_ge_u32 s2, {nact}\ns_cbranch_scc1 L_end")
    base(sT2, pDIS, 20000)
    if pgo == 2: wait(SY_GO, 1, sleep=2)
    a(f"s_lshl_b32 s{s0}, s{sJ}, 10\nv_lshlrev_b32 v{vT1}, 4, v{vL}")
    for i in range(3):
        if i == 2: a(f"s_cmp_lt_u32 s{sJ}, 4\ns_cbranch_scc1 L_disd")
        o = (0, 8192, 12288)[i]
        a(f"s_add_u32 m0, s{s0}, {L_R3 + o}\ns_add_u32 s{s1}, s{s0}, {o}")
        if not dbg & 32: a(f"buffer_load_dwordx4 v{vT1}, {srd(sT2)}, s{s1} offen lds")
    a("L_disd:")
    PARK, sDm, NP = 128 - 8 * park, 41, 2 * park
    if park:
        assert park <= 6
        base(sT1, pWL, 131072)
        if pgo == 1: wait(SY_GO, 1, sleep=2)
        a(f"s_setprio {prioP}\ns_lshl_b32 s{s0}, s{sJ}, 10\ns_mov_b32 s{sDm}, 0")
        for i in range(NP):
            if i: a(f"s_add_u32 s{s0}, s{s0}, 8192")
            a(f"buffer_load_dwordx4 {vr(PARK+4*i,4)}, v{vT1}, {srd(sT1)}, s{s0} offen")
    a("s_setprio 3")
    selregs(vSL0, vSL1)
    a(f"""
    s_movk_i32 s{sC512}, 512
    s_lshl_b32 s{s0}, s{sJ}, 3
    v_lshrrev_b32 v{vT1}, 3, v{vL}
    v_and_b32 v{vT2}, 7, v{vL}
    v_add_u32 v{vT3}, s{s0}, v{vT1}
    v_mul_u32_u24 v{vEa2}, {EROW}, v{vT3}
    v_lshl_add_u32 v{vEa2}, v{vT2}, 4, v{vEa2}
    v_lshlrev_b32 v{vSub}, 2, v{vT2}
    s_lshl_b32 s{s2_}, s{sBeta}, 2
    s_add_u32 s{s2_}, s{s2_}, {W_OFFS}
    v_lshl_add_u32 v{vOfa}, v{vT3}, 10, s{s2_}
    v_mad_u32_u24 v{vT3}, v{vT3}, 3, v{vT2}
    v_cmp_ge_u32 vcc, {NWG - NPROD}, v{vT3}
    v_cmp_gt_u32 s[64:65], 4, v{vT2}
    v_mul_u32_u24 v{vT3}, {fstr}, v{vT3}
    s_and_b64 s[64:65], s[64:65], vcc
    v_cmp_eq_u32 vcc, 0, v{vT2}
    s_and_b32 s{s0}, s2, {frep - 1}
    s_lshl_b32 s{s0}, s{s0}, 15
    s_add_u32 s{s0}, s{s0}, {W_FLAG - fstr}
    v_add_u32 v{vT3}, s{s0}, v{vT3}
    s_or_b64 s[64:65], s[64:65], vcc
    v_cndmask_b32 v{vOfa}, v{vT3}, v{vOfa}, vcc
    v_cmp_gt_u32 s[62:63], 5, v{vT2}
    v_lshl_add_u32 v{vKey}, v{vT2}, 3, v{vT1}
    v_mul_u32_u24 v{vLb}, {CAP}, v{vT1}
    v_add_u32 v{vLb}, {CAP}, v{vLb}
    v_lshrrev_b32 v{vT1}, 4, v{vKey}
    v_mul_u32_u24 v{vRow}, {TILE}, v{vT1}
    v_lshl_add_u32 v{vRow}, v{vT1}, 26, v{vRow}
    v_cmp_le_u32 vcc, 32, v{vKey}
    v_and_b32 v{vT1}, 7, v{vKey}
    v_and_b32 v{vT2}, 3, v{vKey}
    v_cndmask_b32 v{vT1}, v{vT1}, v{vT2}, vcc
    v_mul_u32_u24 v{vT1}, {PITCH}, v{vT1}
    v_bfe_u32 v{vT2}, v{vKey}, 3, 1
    v_bfe_u32 v{vT3}, v{vKey}, 2, 1
    v_cndmask_b32 v{vT2}, v{vT2}, v{vT3}, vcc
    v_lshl_add_u32 v{vT1}, v{vT2}, 9, v{vT1}
    v_mov_b32 v{vR3}, {L_R3}
    v_add3_u32 v{vRow}, v{vRow}, v{vT1}, v{vR3}
    v_lshrrev_b32 v{vT1}, 5, v{vL}
    v_lshl_add_u32 v{vFo}, v{vT1}, 3, v{vM16}
    s_lshl_b32 s{s0}, s{sNB}, 2
    s_sub_u32 s{s0}, {L_CNT}, s{s0}
    v_mov_b32 v{vCb}, s{s0}
    v_add_u32 v{vT1}, s{sNB}, v{vKey}
    v_lshl_add_u32 v{vDis}, v{vT1}, 1, v{vR3}
    v_lshlrev_b32 v{vKey}, 2, v{vKey}
    v_add_u32 v{vKey}, {L_CNT}, v{vKey}
    v_mov_b32 v{vWb}, {L_WGT}
    v_mov_b32 v{vOb}, {L_OFF}
    """)
    for j in range(0, 4, 2): a(f"v_mov_b64 {vr(EV+j,2)}, 0")
    assert ptrig <= u0 and thr + 2 < u0
    wait(SY_GO, 1, sleep=2)
    gettag()
    if ptrig: wait(SY_P, 8, sleep=2)
    stamp(4)
    def poll(tag):
        a(f"""
        L_spoll{tag}:
        buffer_load_dwordx2 {vr(vOf,2)}, v{vOfa}, {srd(sWS)}, 0 offen sc1
        s_add_u32 s{s1}, s{s1}, 1
        s_cmp_gt_u32 s{s1}, 0x40000
        s_cbranch_scc1 L_end
        s_waitcnt vmcnt(0)
        v_xor_b32 v{vOf}, s{sTag}, v{vOf}
        v_xor_b32 v{vOf+1}, s{sTag}, v{vOf+1}
        v_or_b32 v{vT1}, v{vOf}, v{vOf+1}
        v_cmpx_lt_u32 vcc, {0xffffffff - TMASK}, v{vT1}
        s_cbranch_execz L_sok{tag}
        {f's_sleep {psleep}' if psleep else ''}
        s_branch L_spoll{tag}
        L_sok{tag}:
        s_mov_b64 exec, -1
        """)
    a(f"s_mov_b32 s{s1}, 0")
    a("s_and_b32 exec_lo, s64, 0xfefefefe\ns_and_b32 exec_hi, s65, 0xfefefefe")
    poll("a")
    sig(SY_V)
    a("s_mov_b32 exec_lo, 0x01010101\ns_mov_b32 exec_hi, 0x01010101")
    poll("b")
    a(f"""
    v_sub_u32 v{vCnt}, v{vOf+1}, v{vOf}
    v_lshl_or_b32 v{vCnt}, v{vCnt}, 16, v{vOf}
    s_nop 1
    v_mov_b32_dpp v{vCnt}, v{vCnt} quad_perm:[0,0,0,0] row_mask:0xf bank_mask:0xf
    s_nop 1
    v_mov_b32_dpp v{vCnt}, v{vCnt} row_shr:4 row_mask:0xf bank_mask:0xa
    v_mad_u32_u16 v{vEa2}, v{vCnt}, 4, v{vEa2}
    v_lshrrev_b32 v{vCnt}, 16, v{vCnt}
    v_sub_u32 v{vCnt}, v{vCnt}, v{vSub}
    """)
    if stamps: a(f"s_mov_b32 s{ST0+11}, s{ST0+1}\ns_add_u32 s{ST0+10}, s{ST0}, s{s1}")
    stamp(6)
    a(f"""
    v_cmpx_lt_i32 vcc, 0, v{vCnt}
    s_cbranch_execz L_entld
    buffer_load_dwordx4 {vr(EV,4)}, v{vEa2}, {srd(sWS)}, 0 offen sc1
    v_cmpx_lt_i32 vcc, 32, v{vCnt}
    ds_write_b32 v{vSy}, v{vOne} offset:{SY_OV}
    L_entld:
    s_mov_b64 exec, -1
    s_waitcnt vmcnt(0)
    """)
    stamp(7)
    def ladder(lab, body):
        for j in range(4):
            a(f"v_cmpx_lt_i32 vcc, {j}, v{vCnt}")
            body(j)
        a("s_mov_b64 exec, -1")
    ladder("L_l1", lambda j: a(f"""
        v_mad_u32_u16 v{LA+j}, v{EV+j}, 4, v{vCb} op_sel:[1,0,0,0]
        ds_add_rtn_u32 v{RK+j}, v{LA+j}, v{vOne}
        """))
    sig(SY_C1)
    for j in range(4):
        a(f"v_mad_u32_u16 v{WV+j}, v{EV+j}, 2, v{vR3}")
        if dbg & 16: a(f"v_and_b32 v{EV+j}, {gmask}, v{EV+j}")
        a(f"v_mad_u32_u16 v{EV+j}, v{EV+j}, s{sC512}, 0")
    wait(SY_C1, 8)
    a(f"""
    ds_read_b32 v{vSl}, v{vKey}
    ds_read_b32 v{vT1}, v{vSy} offset:{SY_OV}
    ds_read_u16 v{vDis}, v{vDis}
    """)
    for j in range(4): a(f"ds_read_u16 v{WV+j}, v{WV+j}")
    a(f"""
    s_lshl_b32 s{s0}, s2, 4
    s_add_u32 s{s0}, s{s0}, s{sW}
    s_cmp_eq_u32 s{s0}, 15
    s_cbranch_scc0 L_noep
    v_mov_b32 v{vT2}, s{sTag}
    v_mov_b32 v{vT3}, {W_EP}
    s_mov_b64 exec, 1
    buffer_store_dword v{vT2}, v{vT3}, {srd(sWS)}, 0 offen sc1
    s_mov_b64 exec, -1
    L_noep:
    s_waitcnt lgkmcnt(6)
    v_add_u32 v{vSl}, 1, v{vSl}
    v_lshrrev_b32 v{vSl}, 1, v{vSl}
    v_max_u32 v{vSl}, 1, v{vSl}
    v_cndmask_b32 v{vSl}, 0, v{vSl}, s[62:63]
    s_lshl_b32 s{sPad}, s{sJ}, 3
    s_movk_i32 s{s0}, {8*CAP*4}
    v_add_u32_dpp v{vSuf}, v{vSl}, v{vSl} row_shl:1 row_mask:0xf bank_mask:0xf bound_ctrl:1
    s_nop 1
    v_add_u32_dpp v{vSuf}, v{vSuf}, v{vSuf} row_shl:2 row_mask:0xf bank_mask:0xf bound_ctrl:1
    s_nop 1
    v_add_u32_dpp v{vSuf}, v{vSl}, v{vSuf} row_shl:4 row_mask:0xf bank_mask:0x5 bound_ctrl:1
    s_waitcnt lgkmcnt(0)
    v_lshlrev_b32 v{vDis}, 16, v{vDis}
    v_lshl_add_u32 v{vT1}, v{vT1}, 10, v{vSuf}
    v_sub_u32 v{vT2}, v{vLb}, v{vSuf}
    v_cmp_le_u32 vcc, {CAP}, v{vT1}
    v_lshlrev_b32 v{vT2}, 1, v{vT2}
    v_subrev_u32 v{vSl}, 1, v{vSl}
    s_cbranch_vccnz L_slow
    v_and_b32 v{vSl}, 0xff, v{vSl}
    v_lshl_add_u32 v{vRow}, v{vSl}, 18, v{vRow}
    s_mov_b64 exec, s[62:63]
    ds_write_b32 v{vKey}, v{vT2} offset:{L_BASE-L_CNT}
    s_mov_b64 exec, -1
    s_sub_u32 s{sK}, s{sPad}, 1
    v_readlane_b32 s{sPad}, v{vSuf}, s{sPad}
    """)
    ladder("L_l2", lambda j: a(f"ds_read_b32 v{LA+j}, v{LA+j} offset:{L_BASE-L_CNT}"))
    a(f"""
    s_lshr_b32 s{sRnd}, s{sPad}, {R.bit_length()-1}
    s_add_u32 s{s2_}, s{sRnd}, 1
    s_lshl_b32 s{s2_}, s{s2_}, {R.bit_length()-1}
    s_sub_u32 s{sPad}, s{s2_}, s{sPad}
    s_sub_u32 s{sRem}, s{sPad}, 1
    s_add_u32 s{s3_}, s{sJ}, 1
    s_mul_i32 s{s3_}, s{s3_}, {CAP}
    s_sub_u32 s{s2_}, s{s3_}, s{s2_}
    s_lshl_b32 s{s2_}, s{s2_}, 2
    s_waitcnt lgkmcnt(0)
    """)
    ladder("L_l3", lambda j: a(f"""
        v_add_u32 v{LA+j}, v{LA+j}, v{RK+j}
        v_lshl_add_u32 v{vT1}, v{LA+j}, 1, v{vWb}
        ds_write_b16 v{vT1}, v{WV+j}
        v_lshrrev_b32 v{vT2}, 1, v{LA+j}
        v_lshl_add_u32 v{vT2}, v{vT2}, 2, v{vOb}
        v_and_b32 v{vT3}, 1, v{LA+j}
        v_mad_u32_u24 v{vT2}, v{vT3}, s{s0}, v{vT2}
        ds_write_b32 v{vT2}, v{EV+j}
        """))
    sig(SY_C2)
    a(f"""
    v_lshrrev_b32 v{vT1}, 5, v{vL}
    v_mad_u32_u24 v{vEnt}, v{vT1}, s{s0}, v{vOb}
    v_add_u32 v{vEnt}, s{s2_}, v{vEnt}
    v_lshl_add_u32 v{vAad}, v{vT1}, 1, v{vWb}
    v_and_b32 v{vT1}, 28, v{vL}
    v_add3_u32 v{vAad}, v{vAad}, v{vT1}, s{s2_}
    s_mov_b32 s{sRow}, {L_DUMMY + (((SY_DUM - SY_T) // 4) << 26)}
    s_mov_b32 s{sDis}, 0
    """)
    wait(SY_C2, 8)
    a(f"v_mov_b32 v{vSyB}, v{vSy}\nv_mov_b32 v{vMM+1}, v{vM16}")
    stamp(8)
    if dbg & 4: a(f"v_mov_b32 v{vT0}, 64\nds_write_b32 v{vSyB}, v{vT0} offset:{SY_T}\nds_write_b32 v{vSyB}, v{vT0} offset:{SY_T+4}\nds_write_b32 v{vSyB}, v{vT0} offset:{SY_T+8}\ns_branch L_end")
    a(f"s_setprio {prioB}")
    if flip: a(f"s_cmp_lt_u32 s{sJ}, 4\ns_cbranch_scc1 L_old\ns_setprio {prioB+1}\nL_old:")

    RING, ENT, G, PRE = 16, 48, 56, 64
    vDa = 72
    vA0, vAraw, vAd = vT2, 1, vT0
    def mfma2(t):
        for h in range(2):
            d = vr(G + 4 * h, 4)
            if not dbg & 2: a(f"v_mfma_f32_4x4x4_16b_bf16 {d}, {vr(vA0,2)}, {vr(RING+4*t+2*h,2)}, {d} cbsz:3 abid:{t&7}")
    def load(t, ad): a(f"buffer_load_dwordx4 {vr(RING+4*t,4)}, v{ad}, {srd(sX)}, 0 offen")
    def aprep(nxt):
        a(f"""
        v_perm_b32 v{vA0}, v{vAraw}, v{vAraw}, v{vSL0}
        v_perm_b32 v{vA0+1}, v{vAraw}, v{vAraw}, v{vSL1}
        """)
        if nxt: a(f"ds_read_u16 v{vAraw}, v{vAad} offset:{nxt}")
    if park: a("s_mov_b64 vcc, 0")
    for q in range(R // 4): a(f"ds_read_b128 {vr(PRE+4*q,4)}, v{vEnt} offset:{16*q}")
    a(f"""
    ds_read_u16 v{vAraw}, v{vAad}
    ds_read_b128 {vr(ENT,4)}, v{vEnt} offset:{4*R}
    ds_read_b128 {vr(ENT+4,4)}, v{vEnt} offset:{4*R+16}
    s_waitcnt lgkmcnt(3)
    """)
    for t in range(R):
        if t % 4 == 0:
            a(f"L_p{t}:")
            if t + 4 < R: a(f"s_cmp_ge_u32 s{sPad}, {t+4}\ns_cbranch_scc1 L_p{t+4}")
        if t == 0: continue
        sk = a.label("Lps")
        a(f"s_cmp_gt_u32 s{sPad}, {t}\ns_cbranch_scc1 {sk}\nv_add_u32 v{PRE+t}, v{PRE+t}, v{vM16}")
        if t >= D: a(f"s_waitcnt vmcnt({D-1})")
        load(t, PRE + t)
        a(f"{sk}:")
    a(f"s_cmp_eq_u32 s{sRnd}, 0\ns_cbranch_scc1 L_drain\nL_gl:")
    if park: a(f"s_cmp_le_u32 s{sRnd}, {dr}\ns_cbranch_scc1 L_dm0\nL_dm0b:")
    for t in range(0, R, 2):
        if t % 8 == 0:
            a("s_waitcnt lgkmcnt(1)")
            aprep(4 * (t + 8))
        a(f"""
        s_waitcnt vmcnt({D-2}){' lgkmcnt(2)' if t % 8 == 4 else ''}
        v_lshl_add_u64 {vr(vAd,2)}, {vr(ENT+(t&7),2)}, 0, {vr(vMM,2)}
        s_sub_u32 s{sRem}, s{sRem}, 2
        s_cbranch_scc1 Lfs_{t}
        """)
        mfma2(t); load(t, vAd); mfma2(t + 1); load(t + 1, vAd + 1)
        a(f"Lbs_{t}:")
        if park: a(f"s_cbranch_vccnz Ldm_{t}\nLdb_{t}:")
        if t % 4 == 2: a(f"ds_read_b128 {vr(ENT+((t-2)&7),4)}, v{vEnt} offset:{4*(R+8+t-2)}")
    a(f"""
    v_add_u32 v{vEnt}, {4*R}, v{vEnt}
    v_add_u32 v{vAad}, {4*R}, v{vAad}
    s_sub_u32 s{sRnd}, s{sRnd}, 1
    """)
    if flip: a(f"s_cmp_eq_u32 s{sRnd}, {flip}\ns_cbranch_scc0 L_nf\ns_setprio {prioB}\nL_nf:")
    a(f"""
    s_cmp_lg_u32 s{sRnd}, 0
    s_cbranch_scc1 L_gl
    L_drain:
    """)
    for t in range(R):
        if t % 8 == 0:
            a("s_waitcnt lgkmcnt(0)")
            aprep(4 * (t + 8))
        a(f"s_waitcnt vmcnt({R-1-t})")
        mfma2(t)
        if t < R - 1: a(f"s_sub_u32 s{sRem}, s{sRem}, 1\ns_cbranch_scc1 Lfd_{t}\nLbd_{t}:")
        else: a(f"s_nop 1\ns_call_b64 {pr(sRet)}, L_flush")
    a("L_gdone:")
    def dumpaddr():
        a(f"""
        s_lshl_b32 s{s0}, s{sJ}, 10
        v_lshl_add_u32 v{vDa}, v{vL}, 4, s{s0}
        s_and_b32 s{s0}, s{sJ}, 4
        v_lshl_add_u32 v{vDa+1}, s{s0}, 4, v{vDa}
        s_movk_i32 s{s0}, 0x1f0
        v_bfi_b32 v{vDa}, s{s0}, v{vDa+1}, v{vDa}
        """)
        if NP > 8: a(f"v_add_u32 v{vDa+1}, 0x10000, v{vDa}")
    def dwrite(i): a(f"ds_write_b128 v{vDa + (i >> 3)}, {vr(PARK+4*i,4)} offset:{(i&7)*8192}")
    def dsignal(): a(f"s_mov_b64 exec, 1\nds_inc_u32 v{vSyB}, v{vSyB} offset:{SY_D}\ns_mov_b64 exec, -1")
    if park:
        a(f"s_cmp_eq_u32 s{sDm}, 0\ns_cbranch_scc0 L_dd")
        wait(SY_B, 8, sleep=2, vSy=vSyB)
        dumpaddr()
        for i in range(NP): dwrite(i)
        dsignal()
        a("L_dd:")
    if stamps and not fst: stamp(9)
    if stamps and fst:
        a("s_nop 1")
        for k in range(5): a(f"v_readlane_b32 s{ST0+18+2*k}, v120, {k+1}\ns_mov_b32 s{ST0+19+2*k}, s45")
    a("s_branch L_end" if stamps else "s_endpgm")
    for t in range(0, R, 2):
        a(f"Lfs_{t}:\ns_add_u32 s{sRem}, s{sRem}, 2")
        for i in range(2):
            sk = a.label("Lsk")
            mfma2(t + i); load(t + i, vAd + i)
            a(f"s_sub_u32 s{sRem}, s{sRem}, 1\ns_cbranch_scc0 {sk if i == 0 else f'Lbs_{t}'}\ns_call_b64 {pr(sRet)}, L_flush")
            if i == 0: a(f"{sk}:")
        a(f"s_branch Lbs_{t}")
    for t in range(R - 1):
        a(f"Lfd_{t}:\ns_call_b64 {pr(sRet)}, L_flush\ns_branch Lbd_{t}")
    if park:
        a(f"L_dm0:\ns_mov_b64 vcc, 0\ns_cmp_eq_u32 s{sDm}, 0\ns_cbranch_scc0 L_dm0b")
        a(f"ds_read_b32 v{vT0}, v{vSyB} offset:{SY_B}\ns_waitcnt lgkmcnt(0)\nv_cmp_le_u32 vcc, 8, v{vT0}\ns_cbranch_vccz L_dm0b")
        dumpaddr()
        a(f"s_mov_b32 s{sDm}, 1\ns_mov_b64 vcc, -1\ns_branch L_dm0b")
        for t in range(0, R, 2):
            a(f"Ldm_{t}:")
            for i in range(NP * t // 8, NP * (t + 2) // 8): dwrite(i)
            if t == R - 2: dsignal()
            a(f"s_branch Ldb_{t}")
    a(f"""
    L_flush:
    s_and_b32 s{sTc}, s{sRow}, 0x3ffff
    s_add_u32 s{sK}, s{sK}, 1
    v_permlane32_swap_b32 v{G}, v{G+4}
    v_permlane32_swap_b32 v{G+1}, v{G+5}
    v_permlane32_swap_b32 v{G+2}, v{G+6}
    v_permlane32_swap_b32 v{G+3}, v{G+7}
    s_lshr_b32 s{sRem}, s{sRow}, 26
    v_pk_add_f32 {vr(G,2)}, {vr(G,2)}, {vr(G+4,2)}
    v_pk_add_f32 {vr(G+2,2)}, {vr(G+2,2)}, {vr(G+6,2)}
    v_add_u32 v{G+6}, s{sTc}, v{vFo}
    v_pk_mul_f32 {vr(G,2)}, {vr(G,2)}, {pr(sDis)} op_sel_hi:[1,0]
    v_pk_mul_f32 {vr(G+2,2)}, {vr(G+2,2)}, {pr(sDis)} op_sel_hi:[1,0]
    v_lshl_add_u32 v{G+7}, s{sRem}, 2, v{vSyB}
    v_cvt_pk_bf16_f32 v{G+4}, v{G}, v{G+1}
    v_cvt_pk_bf16_f32 v{G+5}, v{G+2}, v{G+3}
    ds_write_b64 v{G+6}, {vr(G+4,2)}
    s_mov_b64 exec, 1
    ds_inc_u32 v{G+7}, v{G+7} offset:{SY_T}
    s_mov_b64 exec, -1
    v_readlane_b32 s{sRow}, v{vRow}, s{sK}
    v_readlane_b32 s{sDis}, v{vDis}, s{sK}
    v_mov_b64 {vr(G,2)}, 0
    v_mov_b64 {vr(G+2,2)}, 0
    v_mov_b64 {vr(G+4,2)}, 0
    v_mov_b64 {vr(G+6,2)}, 0
    s_bfe_u32 s{sRem}, s{sRow}, 0x80012
    """)
    if stamps and fst: a(f"{TM} s[44:45]\ns_and_b32 m0, s{sK}, 7\ns_waitcnt lgkmcnt(0)\nv_writelane_b32 v120, s44, m0")
    a(f"s_setpc_b64 {pr(sRet)}")

    FR, XB, ACC, IDX = 16, 80, 104, 104
    vXa, vQw, vMo = 12, 13, 14
    def xaddr(region):
        a(f"v_add_u32 v{vXa}, {region}, v{vFrag}")
    a(f"""
    L_preA:
    {'s_barrier' if xb else ''}
    s_setprio {prioE}
    {common}
    {f's_cmp_ge_u32 s2, {nact}' if nact else ''}
    {'s_cbranch_scc1 L_end' if nact else ''}
    """)
    fragaddr()
    xaddr(L_R1)
    a(f"""
    v_lshlrev_b32 v{vMo}, 4, v{vL}
    s_lshl_b32 s{s3_}, s{sW}, 6
    s_add_u32 s{s3_}, s{s3_}, {L_R2}
    v_add_u32 v{vQw}, s{s3_}, v{vFrag}
    s_lshl_b32 s{sFo}, s{sW}, 14
    s_add_u32 s{sFo}, s{sFo}, {W_FR}
    s_waitcnt lgkmcnt(0)
    s_cmp_eq_u32 s{sW}, 0
    s_cbranch_scc0 L_notag
    s_add_u32 s{sTag}, s{sTag}, 0x9e377000
    s_and_b32 s{sTag}, s{sTag}, {TMASK}
    s_bitset1_b32 s{sTag}, 0
    v_mov_b32 v{vT0}, s{sTag}
    ds_write_b32 v{vSy}, v{vT0} offset:{SY_TAG}
    L_notag:
    """)
    for h in range(2):
        for u in range(10):
            src = 12 + 8 * h + u if u < 8 else 28 + 2 * h + u - 8
            if dbg & 8: a(f"s_and_b32 s{src}, s{src}, 0xff")
            a(f"v_lshl_add_u32 v{IDX+u}, s{src}, 9, v{vM16}")
        a("s_mov_b32 exec_lo, 0" if h == 0 else "s_mov_b64 exec, -1")
    a(wsrd)
    base(sOUT, pOUT, 10000 * 512)
    a(f"s_mov_b32 s{sOUT+3}, 0x20000")
    stamp(1)
    a(f"s_cmp_ge_u32 s2, {NPROD}\ns_cbranch_scc1 L_nopb\ns_barrier\ns_barrier\nL_nopb:")
    def eload(u, lim):
        a(f"s_add_u32 m0, s{sRnd}, {L_E + u*PITCH}" if u < 8 else f"s_add_u32 m0, s{sPad}, {L_E + 8*TILE + (u-8)*PITCH}")
        a(f"s_waitcnt vmcnt({lim})\nbuffer_load_dwordx4 v{IDX+u}, {srd(sX)}, 0 offen lds")
    a(f"s_mul_i32 s{sPad}, s{sW}, {2*PITCH}\ns_mul_i32 s{sRnd}, s{sW}, {TILE}")
    def xread(s):
        for rt in range(3):
            a(f"ds_read_b128 {vr(XB+12*(s&1)+4*rt,4)}, v{vXa} offset:{rt*TILE+s*64}")
    vSL0, vSL1, vSH0, vSH1 = 8, 9, 10, 11
    for u in range(10):
        if u == 2: selregs(vSL0, vSL1, vSH0, vSH1)
        if u == u0 - 1:
            wait(SY_X, 8)
            xread(0)
        if u >= u0:
            a(f"s_waitcnt vmcnt({thr})\nds_read_b32 v{vT0}, v{vSy} offset:{SY_V}")
        eload(u, thr)
        if u + 1 == ptrig: signal(SY_P)
        if u == thr + 1: signal(SY_X)
        if u0 <= u < 9:
            a(f"s_mov_b32 s{sRem}, {u+1}\ns_waitcnt lgkmcnt(0)\nv_cmp_gt_u32 vcc, 8, v{vT0}\ns_cbranch_vccz L_eu10")
    a(f"s_mov_b32 s{sRem}, 10")
    stamp(4)
    wait(SY_V, 8, sleep=1)
    a("L_eu10:")
    def fload(i):
        if i % 4 == 0 and i: a(f"s_add_u32 s{sFo}, s{sFo}, {4096 if i % 16 else 131072 - 12288}")
        if dbg & 64 and i // 16 == 1: return
        if dbg & 1024 and i // 16 == 2: return
        a(f"buffer_load_dwordx4 {vr(FR+4*(i%16),4)}, v{vMo}, {srd(sWS)}, s{sFo} offen offset:{(i%4)*1024} sc1")
    def gemm(w_is_a, nxt, at):
        done = 0
        for s in range(8):
            if s < 7: xread(s + 1)
            a(f"s_waitcnt vmcnt({14 - 2*s + done}) lgkmcnt({3 if s < 7 else 0})")
            for rt in range(3):
                for t in range(2):
                    d, f, x = vr(ACC + 8 * rt + 4 * t, 4), vr(FR + 8 * s + 4 * t, 4), vr(XB + 12 * (s & 1) + 4 * rt, 4)
                    if not dbg & 128: a(f"v_mfma_f32_16x16x32_bf16 {d}, {f if w_is_a else x}, {x if w_is_a else f}, {'0' if s == 0 else d}")
            if s >= at:
                n = min(2 * s + 2, done + rate)
                a(f"s_setprio {prioL}")
                for i in range(done, n): fload(16 * nxt + i)
                a(f"s_setprio {prioA}")
                done = n
        return done
    def burst(mat, first=0):
        a(f"s_setprio {prioL}")
        rest = list(range(u0 + 1, 10)) if mat == 0 else []
        pos = {(k + 1) * 16 // len(rest) - 1: u for k, u in enumerate(rest)}
        for i in range(first, 16):
            fload(16 * mat + i)
            if i in pos:
                sk = a.label("Lem")
                a(f"s_cmp_gt_u32 s{sRem}, {pos[i]}\ns_cbranch_scc1 {sk}")
                eload(pos[i], 63)
                a(f"{sk}:")
        a(f"s_setprio {prioA}")
        if mat: stamp(mat + 1)
    stamp(5)
    if adelay: a(f"s_sleep {adelay}")
    if dbg & 1: a("s_branch L_end")

    burst(0)
    done = gemm(True, 1, at1)
    a("s_nop 3")
    for rt in range(3):
        d0, d1, o = ACC + 8 * rt, ACC + 8 * rt + 4, XB + 4 * rt
        a(f"""
        v_cvt_pk_bf16_f32 v{o}, v{d0}, v{d0+1}
        v_cvt_pk_bf16_f32 v{o+1}, v{d0+2}, v{d0+3}
        v_cvt_pk_bf16_f32 v{o+2}, v{d1}, v{d1+1}
        v_cvt_pk_bf16_f32 v{o+3}, v{d1+2}, v{d1+3}
        ds_write_b128 v{vQw}, {vr(o,4)} offset:{rt*TILE}
        """)
    signal(SY_A)
    stamp(6)
    burst(1, done)

    vEa, vQa, vEr, vAw = 12, 13, 14, 2
    sG = sK
    P, RB, AJ = 80, 80, 112
    DK = [120, 124, 4, 12]
    a(f"""
    s_mov_b32 s{sG}, s{sW}
    L_grp:
    s_mul_i32 s{s0}, s{sG}, {TILE}
    s_lshr_b32 s{s1}, s{sG}, 2
    s_mul_i32 s{s1}, s{s1}, {TILE}
    s_and_b32 s{s2_}, s{sG}, 1
    s_bfe_u32 s{s3_}, s{sG}, 0x10001
    s_cmp_ge_u32 s{sG}, 8
    s_cselect_b32 s{s3_}, s{s2_}, s{s3_}
    s_cselect_b32 s{s2_}, 0, s{s2_}
    s_mul_i32 s{s2_}, s{s2_}, {TILE//2}
    s_lshl_b32 s{s3_}, s{s3_}, 9
    s_add_u32 s{s1}, s{s1}, s{s2_}
    s_add_u32 s{s1}, s{s1}, s{s3_}
    s_add_u32 s{s1}, s{s1}, {L_R2}
    v_add_u32 v{vEa}, s{s0}, v{vFrag}
    v_bfe_u32 v{vT0}, v{vL}, 2, 2
    v_mul_u32_u24 v{vT0}, {PITCH}, v{vT0}
    v_and_b32 v{vT1}, 48, v{vL}
    v_add3_u32 v{vQa}, v{vT0}, v{vT1}, s{s1}
    v_lshl_add_u32 v{vEr}, v{vL}, 3, s{s0}
    v_lshl_add_u32 v{vAw}, v{vL}, 3, s{s1}
    s_cmp_ge_u32 s{sG}, 8
    s_cbranch_scc1 L_grp2
    """)
    wait(SY_A, 8, sleep=wsl)
    a("L_grp2:\ns_waitcnt lgkmcnt(0)")
    if dbg & 512: a("s_branch L_grpx")
    def pread(s):
        a(f"ds_read_b128 {vr(P+8*(s%6),4)}, v{vEa} offset:{s*64}")
        a(f"ds_read_b128 {vr(P+8*(s%6)+4,4)}, v{vQa} offset:{s*64}")
    for s in range(6): pread(s)
    for s in range(8):
        a(f"s_waitcnt lgkmcnt({10 if s < 3 else 14-2*s})")
        a(f"v_mfma_f32_16x16x32_bf16 v[4:7], {vr(P+8*(s%6),4)}, {vr(P+8*(s%6)+4,4)}, {'0' if s == 0 else 'v[4:7]'}")
        if s < 2: pread(s + 6)
    order = [(j, k) for j in (2, 3, 0, 1) for k in range(4)]
    for n, (j, k) in enumerate(order):
        i = 4 * k + j
        if n == 15: a("s_waitcnt lgkmcnt(14)")
        a(f"ds_read_b64 {vr(RB+8*j+2*k,2)}, v{vEr} offset:{(i&7)*PITCH+(i>>3)*512}")
    a(f"""
    v_mul_f32 v4, 0x3db8aa3b, v4
    v_mul_f32 v5, 0x3db8aa3b, v5
    v_mul_f32 v6, 0x3db8aa3b, v6
    v_mul_f32 v7, 0x3db8aa3b, v7
    v_exp_f32 v4, v4
    v_exp_f32 v5, v5
    v_exp_f32 v6, v6
    v_exp_f32 v7, v7
    v_add_f32 v12, v4, v5
    v_add_f32 v13, v6, v7
    v_add_f32 v12, v12, v13
    v_add_f32 v12, 0x3089705f, v12
    v_rcp_f32 v12, v12
    s_add_u32 s{sG}, s{sG}, 8
    v_mul_f32 v4, v4, v12
    v_mul_f32 v5, v5, v12
    v_mul_f32 v6, v6, v12
    v_mul_f32 v7, v7, v12
    v_cvt_pk_bf16_f32 v4, v4, v5
    v_cvt_pk_bf16_f32 v6, v6, v7
    """)
    for j in range(4):
        src = 4 + (j & 2)
        a(f"v_perm_b32 v{AJ+2*j}, v{src}, v{src}, v{vSH0 if j & 1 else vSL0}")
        a(f"v_perm_b32 v{AJ+2*j+1}, v{src}, v{src}, v{vSH1 if j & 1 else vSL1}")
    a("s_waitcnt lgkmcnt(0)")
    for j in range(4):
        for k in range(4):
            d = vr(DK[k], 4)
            a(f"v_mfma_f32_4x4x4_16b_bf16 {d}, {vr(AJ+2*j,2)}, {vr(RB+8*j+2*k,2)}, {'0' if j == 0 else d} cbsz:4 abid:{5*k}")
    a("s_nop 1")
    for k in range(4):
        d = DK[k]
        a(f"""
        v_cvt_pk_bf16_f32 v{AJ+2*k}, v{d}, v{d+1}
        v_cvt_pk_bf16_f32 v{AJ+2*k+1}, v{d+2}, v{d+3}
        ds_write_b64 v{vAw}, {vr(AJ+2*k,2)} offset:{k*PITCH}
        """)
    a(f"s_cmp_lt_u32 s{sG}, 10\ns_cbranch_scc1 L_grp\nL_grpx:")
    signal(SY_B)
    stamp(7)

    vOo, vOo2 = 8, 9
    xaddr(L_R2)
    a(f"""
    v_lshlrev_b32 v{vMo}, 4, v{vL}
    v_and_b32 v{vT2}, 15, v{vL}
    v_lshlrev_b32 v{vT2}, 2, v{vT2}
    v_and_b32 v{vT1}, 48, v{vL}
    v_lshl_add_u32 v{vOo}, v{vT1}, 7, v{vT2}
    v_and_b32 v{vT1}, 32, v{vL}
    v_lshl_add_u32 v{vOo2}, v{vT1}, 6, v{vT2}
    v_and_b32 v{vT1}, 16, v{vL}
    v_lshl_add_u32 v{vOo2}, v{vT1}, 22, v{vOo2}
    s_lshl_b32 s{s2_}, s{sNB}, 9
    s_lshl_b32 s{s3_}, s{sW}, 6
    s_add_u32 s{s2_}, s{s2_}, s{s3_}
    """)
    wait(SY_B, 8, sleep=wsl)
    xread(0)
    done = gemm(False, 2, 8 if park else at2)
    stamp(8)
    if park:
        a(f"s_add_u32 s{sFo}, s{sFo}, {131072 - 12288 + 4096 * ((NP - 1) // 4)}")
        burst(2, NP)
        a(f"""
        v_and_b32 v{vT1}, 15, v{vL}
        v_lshlrev_b32 v{vT1}, 2, v{vT1}
        v_and_b32 v{vT2}, 16, v{vL}
        v_lshl_add_u32 v{vT1}, v{vT2}, 2, v{vT1}
        s_lshl_b32 s{s0}, s{sW}, 6
        v_add_u32 v{vT1}, s{s0}, v{vT1}
        v_and_b32 v{vT1}, 0x1ff, v{vT1}
        v_and_b32 v{vT2}, 48, v{vL}
        v_lshl_add_u32 v{vT1}, v{vT2}, 8, v{vT1}
        s_mov_b32 s{sSelLo}, 0x05040100
        s_mov_b32 s{sSelHi}, 0x07060302
        """)
        wait(SY_D, 8, sleep=2, cap=0x1000000)
        stamp(13)
        raw = [FR + 8 * (n + 1) for n in range(park - 1)] + [XB]
        if park > 4: a(f"v_add_u32 v{vT2}, 0x10000, v{vT1}")
        def wread(n):
            for q in range(4):
                o = (n & 3) * 64 + 4 * q
                a(f"ds_read2st64_b32 {vr(raw[n]+2*q,2)}, v{vT1 if n < 4 else vT2} offset0:{o} offset1:{o+2}")
        for n in range(min(3, park)): wread(n)
        for n in range(park):
            a(f"s_waitcnt lgkmcnt({4*min(2, park-1-n)})")
            if n + 3 < park: wread(n + 3)
            r, o = raw[n], FR + 8 * n
            for q in range(4):
                a(f"v_perm_b32 v{o+q}, v{r+2*q+1}, v{r+2*q}, s{sSelLo}")
                a(f"v_perm_b32 v{o+4+q}, v{r+2*q+1}, v{r+2*q}, s{sSelHi}")
    else:
        burst(2, done)
    xaddr(L_R3)
    for rt in range(3):
        if dbg & 4096 and rt == 2: break
        wait(SY_T + 4 * rt, 16 if rt < 2 else 8, sleep=tsl if rt < 2 else 0, cap=0x1000000)
        if rt == 2: stamp(10)
        for s in range(6):
            a(f"ds_read_b128 {vr(XB+4*s,4)}, v{vXa} offset:{rt*TILE+s*64}")
        for s in range(8):
            vm = f"vmcnt({14-2*s}) " if rt == 0 else ""
            a(f"s_waitcnt {vm}lgkmcnt({5 if s < 3 else 7-s})")
            for t in range(2):
                d = vr(ACC + 8 * rt + 4 * t, 4)
                if not (dbg & 128 and rt < 2) and not (dbg & 8192 and rt == 2): a(f"v_mfma_f32_16x16x32_bf16 {d}, {vr(XB+4*(s%6),4)}, {vr(FR+8*s+4*t,4)}, {d}")
            if s < 2: a(f"ds_read_b128 {vr(XB+4*s,4)}, v{vXa} offset:{rt*TILE+(s+6)*64}")
        a("s_nop 7")
        for r in range(4):
            if dbg & 256 and rt < 2: continue
            if dbg & 16384 and rt == 2: continue
            d = ACC + 8 * rt
            a(f"""
            v_cvt_pk_bf16_f32 v{d+r}, v{d+r}, v{d+4+r}
            buffer_store_dword v{d+r}, v{vOo if rt < 2 else vOo2}, {srd(sOUT)}, s{s2_} offen offset:{r*512} sc1
            """)
        if rt < 2: a(f"s_add_u32 s{s2_}, s{s2_}, 8192")
        if rt == 0: stamp(9)
    stamp(11)
    if stamps: a("s_waitcnt vmcnt(0)")
    stamp(12)
    a("L_end:")
    if probe >= 0:
        a(f"""
        s_cmp_eq_u32 s{sW}, {pw}
        s_cbranch_scc0 L_noprobe
        s_sub_u32 s{s0}, s{ST0+2*probe}, s{ST0}
        s_min_u32 s{s0}, s{s0}, 20000
        s_mul_i32 s{s0}, s{s0}, {pk}
        s_memrealtime s[60:61]
        L_probe:
        s_memrealtime s[62:63]
        s_waitcnt lgkmcnt(0)
        s_sub_u32 s62, s62, s60
        s_cmp_lt_u32 s62, s{s0}
        s_cbranch_scc1 L_probe
        L_noprobe:
        """)
    if stamps in (1, 2):
        a(f"""
        s_mov_b64 exec, -1
        s_add_u32 s{sT1}, s{pWS}, {STAMP_OFF}
        s_addc_u32 s{sT1+1}, s{pWS+1}, 0
        s_mov_b32 s{sT1+2}, 0x1000000
        s_mov_b32 s{sT1+3}, 0x20000
        s_lshl_b32 s{s0}, s2, 4
        s_add_u32 s{s0}, s{s0}, s{sW}
        s_mul_i32 s{s0}, s{s0}, {NSTAMP*8}
        v_lshlrev_b32 v4, 2, v0
        v_mov_b32 v6, 0
        """)
        for i in range(2 * NSTAMP): a(f"v_writelane_b32 v6, s{ST0+i}, {i}")
        a(f"s_bfm_b64 exec, {2*NSTAMP}, 0\nbuffer_store_dword v6, v4, {srd(sT1)}, s{s0} offen")
    a("L_exit:\ns_endpgm")

    vSL0, vSL1 = 10, 11
    a("L_slow:\ns_setprio 0")
    sig(SY_C2)
    wait(SY_C2, 8)
    a(f"v_mov_b32 v{vSyB}, v{vSy}")
    base(sT1, pSRC, 640000)
    base(sT2, pDST, 640000)
    base(sT3, pDIS, 20000)
    a(f"""
    s_mov_b32 s{sT3+3}, 0x20000
    s_sub_u32 s{sK}, s{sPad}, 1
    s_mov_b32 s{sRow}, {L_DUMMY + (((SY_DUM - SY_T) // 4) << 26)}
    s_mov_b32 s{sDis}, 0
    s_call_b64 {pr(sRet)}, L_flush
    s_add_u32 s{sRnd}, s{sJ}, s{sNB}
    s_add_u32 s{sPad}, s{sRnd}, 40
    v_lshlrev_b32 v16, 2, v{vL}
    v_and_b32 v17, 32, v{vL}
    v_lshl_add_u32 v17, v17, 22, v{vM16}
    v_mov_b32 v24, 0
    L_sn:
    s_mov_b32 s{s2_}, 0
    L_sc:
    buffer_load_dword v18, v16, {srd(sT2)}, s{s2_} offen
    buffer_load_dword v19, v16, {srd(sT1)}, s{s2_} offen
    s_waitcnt vmcnt(0)
    v_cmp_eq_u32 vcc, s{sRnd}, v18
    s_cbranch_vccz L_sx
    L_se:
    s_ff1_i32_b64 s{s0}, vcc
    s_bitset0_b64 vcc, s{s0}
    v_readlane_b32 s{s1}, v19, s{s0}
    s_nop 3
    s_lshl_b32 s{s3_}, s{s1}, 9
    s_lshl_b32 s{s1}, s{s1}, 1
    buffer_load_dwordx4 v[20:23], v17, {srd(sX)}, s{s3_} offen
    buffer_load_ushort v{vAraw}, v24, {srd(sT3)}, s{s1} offen
    s_waitcnt vmcnt(0)
    v_perm_b32 v{vA0}, v{vAraw}, v{vAraw}, v{vSL0}
    v_perm_b32 v{vA0+1}, v{vAraw}, v{vAraw}, v{vSL1}
    s_nop 1
    v_mfma_f32_4x4x4_16b_bf16 {vr(G,4)}, {vr(vA0,2)}, v[20:21], {vr(G,4)}
    v_mfma_f32_4x4x4_16b_bf16 {vr(G+4,4)}, {vr(vA0,2)}, v[22:23], {vr(G+4,4)}
    s_cmp_lg_u64 vcc, 0
    s_cbranch_scc1 L_se
    L_sx:
    s_add_u32 s{s2_}, s{s2_}, 256
    s_cmp_lt_u32 s{s2_}, 640000
    s_cbranch_scc1 L_sc
    s_call_b64 {pr(sRet)}, L_flush
    s_add_u32 s{sRnd}, s{sRnd}, 8
    s_cmp_lt_u32 s{sRnd}, s{sPad}
    s_cbranch_scc1 L_sn
    s_branch L_gdone
    """)
    hdr = open("standalone__hybrid_graph_tf_exphormer__graph.s.ref").read().split("; Override")[0]
    text = wrap(a.text(), NWG, 1024, LDS, 128, header=hdr)
    lines = (text_size(text.replace("CODE_LINES", "100")) - 512) // 128
    assert 64 < lines < 200
    return text.replace("CODE_LINES", str(lines))


if __name__ == "__main__":
    kw = dict(x.split("=") for x in sys.argv[2:])
    kw = {k: int(v) for k, v in kw.items()}
    open(sys.argv[1], "w").write(gen(**kw))
```

```python
import sys
sys.path.insert(0,'/code')
from asmlib import Asm, wrap, text_size

NWG, NPW, NPROD, EPW, EROW = 250, 40, 64, 2500, 10240
TILE, PITCH = 8448, 1056
CAP = 80
L_E = 0
L_R1 = 10 * TILE
L_R2 = L_R1 + 2 * TILE + TILE // 2
L_R3 = L_R2 + 3 * TILE
L_OFF = L_R3 + 2 * TILE + TILE // 2
L_WGT = L_OFF + 2 * 8 * CAP * 4
L_CNT = L_WGT + 2 * 8 * CAP * 2
L_BASE = L_CNT + 160
L_SYNC = L_BASE + 160
L_HIST = L_SYNC + 128
L_TAB = L_HIST + 1024
L_SORT, L_DUMMY = L_R2, L_HIST
LDS = L_TAB + 1024
assert LDS <= 163840, LDS
W_ENT, W_EP, W_FR, W_OFFS, W_FLAG, WS_SIZE = 0, 0xa0100, 0xb0000, 0x110000, 0x120000, 0x160000
TMASK, NULLOFF = 0xfffff000, 0x2000000
STAMP_OFF = 128 << 20
SY_X, SY_Y, SY_M, SY_C1, SY_C2, SY_A, SY_B, SY_OV, SY_GO, SY_T, SY_DUM, SY_V, SY_M2, SY_P = 0, 4, 8, 12, 16, 20, 24, 28, 32, 36, 48, 52, 56, 60
SY_D, SY_TAG = 64, 68

ABOUT = """
Generated by gen.py.  out = agg_l w_l + agg_a wv with agg_l[i] = dis[i] sum_{dst=i} dis[src] x[src] and
agg_a[i] = sum_j alpha_ij x[esrc[4i+j]], alpha = exp(x_i M x_j / 16) / (sum + 1e-9), M = wq wk^T (edst[e] = e / 4 is a constant).
250 co-resident workgroups own 40 nodes each.  Workgroups < 64 bucket-sort 2500 edges; the others write MFMA fragments
of M, wv, w_l.  Offset rows and flags in ws carry a tag derived from one ws word that workgroup 0 advances every run,
so stale hand-off words never match.  Every s_sleep is the back-off of a bounded wait loop on such a word or an LDS counter.
Buckets or lists that exceed their LDS capacity take the full-scan path at L_slow.
"""


def gen(stamps=0, probe=-1, pw=0, pk=4, dbg=0, gmask=0xff, fst=0, nact=0, skew=0, adelay=0,
        thr=1, u0=6, ptrig=6, psleep=8, fstr=16, frep=8, park=4, dr=4, at1=8, at2=4, rate=4, D=8, flip=3,
        prioA=0, prioB=1, prioP=1, prioE=2, prioL=3, wsl=1, tsl=3, sparse=1, thrP=1, uP0=0, pb=0, ent=0):
    R = 8
    TM = 's_memtime' if stamps == 2 else 's_memrealtime'
    n_null, n_init = (L_WGT - L_OFF) // 16, (L_TAB - L_OFF) // 16
    a = Asm()
    sX, sT3, sWS, sOUT, sT1, sT2 = 8, 12, 16, 20, 24, 28
    pX, pSRC, pDST, pESRC, pDIS, pWL, pWQ, pWK, pWV, pOUT, pDBG, pWS = 32, 34, 36, 38, 42, 44, 46, 48, 50, 52, 54, 56
    sW, sJ, sNB, sBeta, sC512 = 3, 4, 5, 6, 7
    s0, s1, s2_, s3_ = 58, 59, 60, 61
    sRem, sK, sDis, sRow, sRnd, sPad = 62, 63, 64, 65, 66, 67
    sRet, sSelLo, sSelHi = 68, 70, 71
    sFo, sTc, sTag = 100, 101, 40
    ST0, NSTAMP = 72, 14
    vL, vFrag, vM16, vSy, vT0, vT1, vT2, vT3 = 0, 1, 2, 3, 4, 5, 6, 7
    vOne = 62

    def srd(s): return f"s[{s}:{s+3}]"
    def pr(s): return f"s[{s}:{s+1}]"
    def vr(b, n): return f"v[{b}:{b+n-1}]"
    def stamp(i):
        if stamps and (stamps != 3 or i == probe): a(f"{TM} {pr(ST0+2*i)}\ns_waitcnt lgkmcnt(0)")
    def base(s, p, size=None):
        a(f"s_mov_b64 {pr(s)}, {pr(p)}")
        if size: a(f"s_mov_b32 s{s+2}, {size}")
    def signal(off):
        a(f"""
        s_mov_b64 exec, 1
        v_mov_b32 v{vT0}, 1
        ds_add_u32 v{vSy}, v{vT0} offset:{off}
        s_mov_b64 exec, -1
        """)
    def wait(off, n, sleep=0, cap=0x400000, vSy=vSy):
        lp, ok = a.label("Lw"), a.label("Lk")
        a(f"""
        s_mov_b32 s{s1}, 0
        {lp}:
        ds_read_b32 v{vT0}, v{vSy} offset:{off}
        s_waitcnt lgkmcnt(0)
        v_cmp_gt_u32 vcc, {n}, v{vT0}
        s_cbranch_vccz {ok}
        """)
        if sleep: a(f"s_sleep {sleep}")
        a(f"""
        s_add_u32 s{s1}, s{s1}, 1
        s_cmp_lt_u32 s{s1}, {cap}
        s_cbranch_scc1 {lp}
        s_branch L_end
        {ok}:
        """)
    def fragaddr():
        a(f"""
        v_and_b32 v{vT0}, 7, v{vL}
        v_mul_u32_u24 v{vFrag}, {PITCH}, v{vT0}
        v_and_b32 v{vT0}, 8, v{vL}
        v_lshl_add_u32 v{vFrag}, v{vT0}, 6, v{vFrag}
        v_and_b32 v{vT0}, 48, v{vL}
        v_add_u32 v{vFrag}, v{vT0}, v{vFrag}
        """)
    def selregs(lo0, lo1, hi0=None, hi1=None):
        a(f"""
        v_and_b32 v{vT0}, 3, v{vL}
        v_mov_b32 v{vT1}, 0x0c0c0c0c
        v_mov_b32 v{vT2}, 0x0c0c0302
        v_mov_b32 v{vT3}, 0x03020c0c
        v_cmp_eq_u32 s[58:59], 0, v{vT0}
        v_cmp_eq_u32 s[60:61], 2, v{vT0}
        v_cmp_eq_u32 vcc, 1, v{vT0}
        v_cndmask_b32 v{lo0}, v{vT1}, v{vT2}, s[58:59]
        v_cndmask_b32 v{lo1}, v{vT1}, v{vT2}, s[60:61]
        v_cndmask_b32 v{lo0}, v{lo0}, v{vT3}, vcc
        v_cmp_eq_u32 vcc, 3, v{vT0}
        s_nop 1
        v_cndmask_b32 v{lo1}, v{lo1}, v{vT3}, vcc
        """)
        if hi0 is not None: a(f"v_mov_b32 v{hi0}, v{lo0}\nv_mov_b32 v{hi1}, v{lo1}")
        a(f"v_and_b32 v{lo0}, 0xfdfdfdfd, v{lo0}\nv_and_b32 v{lo1}, 0xfdfdfdfd, v{lo1}")

    SRCV, DSTV, AV, PV, TB = 16, 22, 28, 34, 40
    sTid, sMode = 62, 63
    NWW, NWT = NWG - NPROD - 128, 96 if park >= 4 else 128
    a(f"s_cmpk_ge_u32 s2, {NWG}\ns_cbranch_scc1 L_exit")
    if skew: a(f"s_and_b32 s58, s2, 7\nL_skw:\ns_sub_u32 s58, s58, 1\ns_cbranch_scc1 L_skd\ns_sleep {skew}\ns_branch L_skw\nL_skd:")
    if stamps: a(f"{TM} {pr(ST0)}")
    if stamps == 3 and probe: a(f"{TM} {pr(ST0+2*probe)}")
    beta = f"""
    s_and_b32 s{s1}, s2, 7
    s_mul_i32 s{s2_}, s{s1}, 31
    s_min_u32 s{s1}, s{s1}, 2
    s_add_u32 s{sBeta}, s{sBeta}, s{s2_}
    s_add_u32 s{sBeta}, s{sBeta}, s{s1}
    s_mul_i32 s{sNB}, s{sBeta}, {NPW}
    """
    a(f"""
    s_load_dwordx16 s[32:47], s[0:1], 0
    s_load_dwordx8 s[48:55], s[0:1], 64
    s_load_dwordx2 s[56:57], s[0:1], 96
    s_getpc_b64 s[60:61]
    s_lshr_b32 s{sBeta}, s2, 3
    v_lshl_add_u32 v1, v0, 5, s{sBeta}
    v_lshlrev_b32 v2, 7, v1
    v_cmpx_gt_u32 vcc, CODE_LINES, v1
    s_cbranch_execz L_nopf
    global_load_dword v15, v2, s[60:61] offset:384
    L_nopf:
    s_mov_b64 exec, -1
    v_lshrrev_b32 v1, 6, v0
    v_lshlrev_b32 v{vT1}, 4, v0
    v_and_b32 v{vT2}, 32, v0
    v_readfirstlane_b32 s{sW}, v1
    v_and_b32 v{vM16}, 0x1f0, v{vT1}
    s_and_b32 s{sJ}, s{sW}, 7
    s_and_b32 s{s3_}, s{sW}, 4
    s_add_u32 s{s3_}, s{s3_}, s{sJ}
    s_mul_i32 s{sTc}, s{sJ}, {PITCH}
    s_cmp_ge_u32 s{sW}, 8
    s_cbranch_scc1 L_eA
    s_setprio 3
    s_sub_u32 s{sTid}, s2, {NPROD}
    s_cbranch_scc0 L_eM
    s_mul_i32 s{s0}, s2, {EPW*4}
    v_add_u32 v8, s{s0}, v{vT1}
    v_min_u32 v9, {EPW - 2048 - 1}, v0
    s_addk_i32 s{s0}, 8192
    v_lshl_add_u32 v9, v9, 2, s{s0}
    s_mov_b32 s{sMode}, 1
    s_waitcnt lgkmcnt(0)
    global_load_dwordx4 {vr(DSTV,4)}, v8, {pr(pDST)}{' nt' if ent else ''}
    global_load_dword v{DSTV+4}, v9, {pr(pDST)}{' nt' if ent else ''}
    s_setprio 2
    global_load_dwordx4 {vr(SRCV,4)}, v8, {pr(pSRC)}{' nt' if ent else ''}
    global_load_dword v{SRCV+4}, v9, {pr(pSRC)}{' nt' if ent else ''}
    s_branch L_eB
    L_eM:
    s_cmpk_ge_u32 s{sTid}, 128
    s_cbranch_scc1 L_eW
    s_mov_b32 s{sMode}, 0
    s_cmp_ge_u32 s{sJ}, 4
    s_cbranch_scc1 L_eBw
    v_lshl_add_u32 v8, v{vT2}, 8, v{vM16}
    v_lshl_add_u32 v8, s{s3_}, 9, v8
    s_lshr_b32 s{s0}, s{sTid}, 4
    s_bfe_u32 s{s1}, s{sTid}, 0x10003
    s_lshl3_add_u32 s{s0}, s{s0}, s{s1}
    v_lshl_add_u32 v9, s{s0}, 11, v8
    s_and_b32 s{s0}, s{sTid}, 7
    v_lshl_add_u32 v8, s{s0}, 14, v8
    s_add_u32 m0, s{sTc}, {L_R2}
    s_waitcnt lgkmcnt(0)
    global_load_lds_dwordx4 v8, {pr(pWQ)}
    s_addk_i32 m0, {TILE - 2048}
    s_mov_b32 s{sMode}, 2
    global_load_lds_dwordx4 v8, {pr(pWQ)} offset:2048
    s_addk_i32 m0, {TILE + 2048}
    s_nop 0
    global_load_lds_dwordx4 v9, {pr(pWK)}
    s_addk_i32 m0, {4*PITCH}
    v_add_u32 v9, 4096, v9
    global_load_lds_dwordx4 v9, {pr(pWK)}
    s_addk_i32 m0, {-2*TILE & 0xffff}
    v_add_u32 v8, 4096, v8
    global_load_lds_dwordx4 v8, {pr(pWQ)}
    s_addk_i32 m0, {TILE - 2048}
    s_nop 0
    global_load_lds_dwordx4 v8, {pr(pWQ)} offset:2048
    s_branch L_eB
    L_eA:
    {beta}
    s_lshl_b32 s{s0}, s{sNB}, 4
    s_lshl3_add_u32 s{s1}, s{s3_}, s{s0}
    s_lshl_b32 s{s2_}, s{sJ}, 6
    s_add_u32 s{s0}, s{s0}, s{s2_}
    s_add_u32 s{s2_}, s{sNB}, s{sJ}
    v_lshl_add_u32 v8, s{s2_}, 9, v{vM16}
    v_lshl_add_u32 v9, v{vT2}, 7, v8
    s_add_u32 m0, s{sTc}, {L_R1}
    s_waitcnt lgkmcnt(0)
    s_load_dwordx16 s[12:27], {pr(pESRC)}, s{s0}
    s_load_dwordx2 s[28:29], {pr(pESRC)}, s{s1} offset:512
    s_load_dwordx2 s[30:31], {pr(pESRC)}, s{s1} offset:544
    s_load_dword s{sTag}, {pr(pWS)}, {W_EP}
    s_barrier
    global_load_lds_dwordx4 v9, {pr(pX)}
    s_addk_i32 m0, {8*PITCH}
    v_add_u32 v9, 8192, v9
    global_load_lds_dwordx4 v9, {pr(pX)}
    s_cmp_ge_u32 s{sJ}, 4
    s_cbranch_scc1 L_preA
    s_addk_i32 m0, {8*PITCH}
    v_lshl_add_u32 v9, v{vT2}, 6, v8
    v_add_u32 v9, 16384, v9
    global_load_lds_dwordx4 v9, {pr(pX)}
    s_branch L_preA
    L_eW:
    s_mul_i32 s{s0}, s{sJ}, {NWW}
    s_add_u32 s{sTid}, s{sTid}, s{s0}
    s_sub_u32 s{sTid}, s{sTid}, 128
    s_mov_b32 s{sMode}, 0
    s_cmp_ge_u32 s{sTid}, {NWT}
    s_waitcnt lgkmcnt(0)
    s_cbranch_scc1 L_eB
    """)
    if park >= 4: a(f"""
    s_and_b32 s{s1}, s{sTid}, 28
    s_add_u32 s{s1}, s{s1}, 4
    s_cmp_ge_u32 s{sTid}, 64
    s_cselect_b32 s{s1}, s{s1}, 0
    s_add_u32 s{sTid}, s{sTid}, s{s1}
    """)
    a(f"""
    s_mov_b32 s{sMode}, 4
    s_and_b32 s{s1}, s{sTid}, 7
    s_lshl_b32 s{s1}, s{s1}, 14
    s_bfe_u32 s{s2_}, s{sTid}, 0x30003
    s_lshl_b32 s{s2_}, s{s2_}, 6
    s_add_u32 s{s1}, s{s1}, s{s2_}
    v_and_b32 v8, 15, v0
    v_lshl_add_u32 v8, v8, 2, s{s1}
    v_and_b32 v9, 48, v0
    v_lshl_add_u32 v8, v9, 8, v8
    s_cmp_lt_u32 s{sTid}, 64
    s_cselect_b64 s[58:59], {pr(pWV)}, {pr(pWL)}
    """)
    for j in range(8):
        a(f"global_load_dword v{16+j}, v8, s[58:59] offset:{j*512}")
    common = f"""
    v_and_b32 v{vL}, 63, v0
    s_xor_b32 s{sW}, s{sW}, 8
    v_mov_b32 v{vSy}, {L_SYNC}
    s_mov_b64 {pr(sX)}, {pr(pX)}
    s_mov_b32 s{sX+2}, {10000*512}
    s_mov_b32 s{sX+3}, 0x20000
    """
    if stamps in (1, 2): common += "\n".join(f"s_mov_b64 {pr(ST0+2*i)}, 0" for i in range(1, NSTAMP) if i not in (10, 11))
    wsrd = f"""
    s_mov_b64 {pr(sWS)}, {pr(pWS)}
    s_mov_b32 s{sWS+2}, {WS_SIZE}
    s_mov_b32 s{sWS+3}, 0x20000
    """
    assert n_null <= 512 < n_init <= 576
    a("L_eBw:\ns_waitcnt lgkmcnt(0)\nL_eB:")
    stamp(10)
    a(f"""
    s_setprio 3
    v_mov_b32 v8, {NULLOFF}
    v_cmp_gt_u32 vcc, {n_null}, v0
    v_add_u32 v4, {L_OFF}, v{vT1}
    v_mov_b64 v[12:13], 0
    v_cndmask_b32 v8, 0, v8, vcc
    v_mov_b32 v9, v8
    v_mov_b64 v[10:11], v[8:9]
    ds_write_b128 v4, v[8:11]
    v_cmpx_gt_u32 vcc, {n_init - 512}, v0
    ds_write_b64 v4, v[12:13] offset:8192
    ds_write_b64 v4, v[12:13] offset:8200
    s_mov_b64 exec, -1
    {beta}
    s_waitcnt lgkmcnt(0)
    s_barrier
    """)
    stamp(11)
    a(f"""
    {common}
    {wsrd}
    s_mov_b32 s{sT1+3}, 0x20000
    s_mov_b32 s{sT2+3}, 0x20000
    v_mov_b32 v{vOne}, 1
    s_cmp_eq_u32 s{sMode}, 1
    s_cbranch_scc0 L_notprod
    """)
    def sig(off): a(f"s_mov_b64 exec, 1\nds_add_u32 v{vSy}, v{vOne} offset:{off}\ns_mov_b64 exec, -1")
    def gettag():
        wait(SY_TAG, 1)
        a(f"v_readfirstlane_b32 s{sTag}, v{vT0}\ns_nop 0\ns_bitset0_b32 s{sTag}, 0")

    a(f"""
    v_mov_b32 v9, 4
    v_mov_b32 v10, {L_HIST}
    v_lshl_add_u32 v11, v{vL}, 4, v10
    v_cmp_gt_u32 vcc, {(EPW - 2048) * 16}, v{vT1}
    v_add_u32 v59, {L_SORT}, v{vT1}
    s_mul_i32 s{s0}, s2, {EROW}
    s_mov_b64 s[66:67], vcc
    s_waitcnt vmcnt(3)
    """)
    stamp(1)
    for j in range(5):
        if j == 4: a("s_waitcnt vmcnt(2)\ns_mov_b64 exec, s[66:67]")
        a(f"""
        v_mul_u32_u24 v{AV+j}, 52429, v{DSTV+j}
        v_lshrrev_b32 v{AV+j}, 21, v{AV+j}
        v_lshl_add_u32 v{AV+j}, v{AV+j}, 2, v10
        ds_add_rtn_u32 v{PV+j}, v{AV+j}, v9
        """)
    a("s_mov_b64 exec, -1")
    a('s_waitcnt lgkmcnt(0)\ns_barrier')
    a(f"ds_read_b128 v[12:15], v11")
    a(f"""
    s_waitcnt lgkmcnt(0)
    v_add_u32 v56, v12, v13
    v_add3_u32 v57, v56, v14, v15
    s_nop 1
    v_add_u32_dpp v58, v57, v57 row_shr:1 row_mask:0xf bank_mask:0xf bound_ctrl:1
    s_nop 1
    v_add_u32_dpp v58, v58, v58 row_shr:2 row_mask:0xf bank_mask:0xf bound_ctrl:1
    s_nop 1
    v_add_u32_dpp v58, v58, v58 row_shr:4 row_mask:0xf bank_mask:0xf bound_ctrl:1
    s_nop 1
    v_add_u32_dpp v58, v58, v58 row_shr:8 row_mask:0xf bank_mask:0xf bound_ctrl:1
    s_nop 1
    v_add_u32_dpp v58, v58, v58 row_bcast:15 row_mask:0xa bank_mask:0xf
    s_nop 1
    v_add_u32_dpp v58, v58, v58 row_bcast:31 row_mask:0xc bank_mask:0xf
    v_sub_u32 v64, v58, v57
    v_add_u32 v65, v64, v12
    v_add_u32 v66, v64, v56
    v_add_u32 v67, v66, v14
    ds_write_b128 v11, v[64:67] offset:{L_TAB-L_HIST}
    """)
    for j in range(5):
        if j == 4: a("s_mov_b64 exec, s[66:67]")
        a(f"ds_read_b32 v{TB+j}, v{AV+j} offset:{L_TAB-L_HIST}")
    a(f"s_mov_b64 exec, -1\ns_mov_b32 s{s2_}, {L_SORT}\ns_waitcnt vmcnt(0)")
    for j in range(5):
        a(f"v_lshl_or_b32 v{SRCV+j}, v{DSTV+j}, 16, v{SRCV+j}")
    for j in range(5):
        if j == 4: a("s_mov_b64 exec, s[66:67]")
        a(f"s_waitcnt lgkmcnt(4)\nv_add3_u32 v{TB+j}, v{TB+j}, v{PV+j}, s{s2_}\nds_write_b32 v{TB+j}, v{SRCV+j}")
    a("s_mov_b64 exec, -1")
    a('s_waitcnt lgkmcnt(0)\ns_barrier')
    a(f"""
    ds_read_b128 v[12:15], v59
    ds_read_b128 v[68:71], v59 offset:8192
    s_add_u32 s{s2_}, s{s0}, 8192
    s_cmp_ge_u32 s{sJ}, 2
    s_waitcnt lgkmcnt(1)
    buffer_store_dwordx4 v[12:15], v{vT1}, {srd(sWS)}, s{s0} offen sc1
    s_cbranch_scc1 L_cp1
    s_waitcnt lgkmcnt(0)
    buffer_store_dwordx4 v[68:71], v{vT1}, {srd(sWS)}, s{s2_} offen sc1
    L_cp1:
    """)
    stamp(2)
    a(f"s_cmp_eq_u32 s{sJ}, 0\ns_cbranch_scc1 L_row\ns_waitcnt vmcnt(0)")
    sig(SY_M2)
    a(f"""
    s_branch L_preB
    L_row:
    s_lshl_b32 s{s3_}, s2, 10
    s_add_u32 s{s3_}, s{s3_}, {W_OFFS}
    """)
    gettag()
    for i in range(4): a(f"v_lshrrev_b32 v{64+i}, 2, v{64+i}\nv_or_b32 v{64+i}, s{sTag}, v{64+i}")
    wait(SY_M2, 7)
    a(f"""
    s_waitcnt vmcnt(0)
    buffer_store_dwordx4 v[64:67], v{vT1}, {srd(sWS)}, s{s3_} offen sc1
    ds_write_b32 v{vSy}, v{vOne} offset:{SY_GO}
    """)
    stamp(3)
    a(f"""
    s_branch L_preB
    L_notprod:
    s_cmp_eq_u32 s{sMode}, 0
    s_cbranch_scc1 L_taskw
    """)
    fragaddr()
    a(f"""
    v_add_u32 v{vT1}, {L_R2}, v{vFrag}
    s_lshr_b32 s{s0}, s{sTid}, 4
    s_and_b32 s{s1}, s{sTid}, 7
    s_lshl3_add_u32 s{s0}, s{s0}, s{s1}
    s_bfe_u32 s{s1}, s{sTid}, 0x10003
    s_lshl1_add_u32 s{s0}, s{s0}, s{s1}
    s_lshl_b32 s{s0}, s{s0}, 10
    s_add_u32 s{s0}, s{s0}, {W_FR}
    v_lshlrev_b32 v{vT2}, 4, v{vL}
    """)
    a("s_waitcnt vmcnt(0)")
    stamp(13)
    a(f"""
    s_cmp_eq_u32 s{sMode}, 4
    s_cbranch_scc1 L_wtask
    s_cmp_eq_u32 s{sJ}, 0
    s_cbranch_scc0 L_taskw
    """)
    wait(SY_M2, 7)

    stamp(1)
    MB = [16, 28, 40, 64, 76, 88, 100, 112]
    for ks in range(4):
        for t in range(3):
            a(f"ds_read_b128 {vr(MB[ks]+4*t,4)}, v{vT1} offset:{t*TILE + ks*64}")
    for ks in range(8):
        a(f"s_waitcnt lgkmcnt({min(9, 3*(7-ks))})")
        if ks < 4:
            for t in range(3):
                a(f"ds_read_b128 {vr(MB[ks+4]+4*t,4)}, v{vT1} offset:{t*TILE + (ks+4)*64}")
        for t in range(2):
            c = "0" if ks == 0 else vr(8 + 4 * t, 4)
            a(f"v_mfma_f32_16x16x32_bf16 {vr(8+4*t,4)}, {vr(MB[ks]+4*t,4)}, {vr(MB[ks]+8,4)}, {c}")
    a(f"""
    s_nop 6
    v_cvt_pk_bf16_f32 v16, v8, v9
    v_cvt_pk_bf16_f32 v17, v10, v11
    v_cvt_pk_bf16_f32 v18, v12, v13
    v_cvt_pk_bf16_f32 v19, v14, v15
    buffer_store_dwordx4 v[16:19], v{vT2}, {srd(sWS)}, s{s0} offen sc1
    """)
    stamp(2)
    a(f"""
    s_branch L_flag
    L_wtask:
    s_lshl_b32 s{s0}, s{sTid}, 11
    s_add_u32 s{s0}, s{s0}, {W_FR + 131072}
    s_mov_b32 s{sSelLo}, 0x05040100
    s_mov_b32 s{sSelHi}, 0x07060302
    """)
    for q in range(4):
        a(f"v_perm_b32 v{64+q}, v{17+2*q}, v{16+2*q}, s{sSelLo}")
        a(f"v_perm_b32 v{68+q}, v{17+2*q}, v{16+2*q}, s{sSelHi}")
    a(f"""
    buffer_store_dwordx4 v[64:67], v{vT2}, {srd(sWS)}, s{s0} offen sc1
    buffer_store_dwordx4 v[68:71], v{vT2}, {srd(sWS)}, s{s0} offen offset:1024 sc1
    s_cmp_eq_u32 s{sJ}, 0
    s_cbranch_scc1 L_flag
    s_waitcnt vmcnt(0)
    L_taskw:
    """)
    sig(SY_M2)
    a("s_branch L_preB\nL_flag:")
    gettag()
    a(f"""
    s_mul_i32 s{s3_}, s2, {fstr}
    s_add_u32 s{s3_}, s{s3_}, {W_FLAG - NPROD*fstr}
    v_mov_b32 v10, s{sTag}
    v_mov_b32 v11, s{sTag}
    v_lshlrev_b32 v9, 15, v{vL}
    """)
    wait(SY_M2, 7)
    a(f"""
    s_waitcnt vmcnt(0)
    s_mov_b64 exec, {(1 << frep) - 1}
    buffer_store_dwordx2 v[10:11], v9, {srd(sWS)}, s{s3_} offen sc1
    ds_write_b32 v{vSy}, v{vOne} offset:{SY_GO}
    s_mov_b64 exec, -1
    """)
    stamp(3)
    EV, LA, RK, WV = 16, 24, 32, 40
    vDis, vRow, vSL0, vSL1, vSl, vEnt, vAad, vFo = 8, 9, 10, 11, 12, 13, 14, 15
    vCnt, vEa2, vKey, vSuf, vR3, vCb, vOfa, vLb, vSub, vWb, vOf, vOb = 48, 49, 50, 51, 52, 53, 54, 55, 56, 57, 58, 60
    vMM, vSyB, vFo2 = 2, 12, 74
    a("L_preB:\ns_setprio 3")
    if nact: a(f"s_cmp_ge_u32 s2, {nact}\ns_cbranch_scc1 L_end")
    base(sT2, pDIS, 20000)
    a(f"s_lshl_b32 s{s0}, s{sJ}, 10\nv_lshlrev_b32 v{vT1}, 4, v{vL}")
    for i in range(3):
        if i == 2: a(f"s_cmp_lt_u32 s{sJ}, 4\ns_cbranch_scc1 L_disd")
        o = (0, 8192, 12288)[i]
        a(f"s_add_u32 m0, s{s0}, {L_R3 + o}\ns_add_u32 s{s1}, s{s0}, {o}")
        if not dbg & 32: a(f"buffer_load_dwordx4 v{vT1}, {srd(sT2)}, s{s1} offen lds")
    a("L_disd:")
    PARK, sDm, NP = 128 - 8 * park, 41, 2 * park
    if park:
        assert park <= 6
        base(sT1, pWL, 131072)
        a(f"s_setprio {prioP}\ns_lshl_b32 s{s0}, s{sJ}, 10\ns_mov_b32 s{sDm}, 0")
        for i in range(NP):
            if i: a(f"s_add_u32 s{s0}, s{s0}, 8192")
            a(f"buffer_load_dwordx4 {vr(PARK+4*i,4)}, v{vT1}, {srd(sT1)}, s{s0} offen")
    a("s_setprio 3")
    SA, SH, G2, vIx = 76, 80, 84, vSL0
    assert park <= 5
    a(f"v_and_b32 v{vIx}, 3, v{vL}\nv_mul_u32_u24 v{vIx}, 0x1111, v{vIx}")
    for k in range(SA, G2 + 4, 2): a(f"v_mov_b64 {vr(k,2)}, 0")
    a(f"""
    s_movk_i32 s{sC512}, 512
    s_lshl_b32 s{s0}, s{sJ}, 3
    v_lshrrev_b32 v{vT1}, 3, v{vL}
    v_and_b32 v{vT2}, 7, v{vL}
    v_add_u32 v{vT3}, s{s0}, v{vT1}
    v_mul_u32_u24 v{vEa2}, {EROW}, v{vT3}
    v_lshl_add_u32 v{vEa2}, v{vT2}, 4, v{vEa2}
    v_lshlrev_b32 v{vSub}, 2, v{vT2}
    s_lshl_b32 s{s2_}, s{sBeta}, 2
    s_add_u32 s{s2_}, s{s2_}, {W_OFFS}
    v_lshl_add_u32 v{vOfa}, v{vT3}, 10, s{s2_}
    v_mad_u32_u24 v{vT3}, v{vT3}, 3, v{vT2}
    v_cmp_ge_u32 vcc, {NWG - NPROD}, v{vT3}
    v_cmp_gt_u32 s[64:65], 4, v{vT2}
    v_mul_u32_u24 v{vT3}, {fstr}, v{vT3}
    s_and_b64 s[64:65], s[64:65], vcc
    v_cmp_eq_u32 vcc, 0, v{vT2}
    s_and_b32 s{s0}, s2, {frep - 1}
    s_lshl_b32 s{s0}, s{s0}, 15
    s_add_u32 s{s0}, s{s0}, {W_FLAG - fstr}
    v_add_u32 v{vT3}, s{s0}, v{vT3}
    s_or_b64 s[64:65], s[64:65], vcc
    v_cndmask_b32 v{vOfa}, v{vT3}, v{vOfa}, vcc
    v_cmp_gt_u32 s[62:63], 5, v{vT2}
    v_lshl_add_u32 v{vKey}, v{vT2}, 3, v{vT1}
    v_mul_u32_u24 v{vLb}, {CAP}, v{vT1}
    v_add_u32 v{vLb}, {CAP}, v{vLb}
    v_lshrrev_b32 v{vT1}, 4, v{vKey}
    v_mul_u32_u24 v{vRow}, {TILE}, v{vT1}
    v_lshl_add_u32 v{vRow}, v{vT1}, 26, v{vRow}
    v_cmp_le_u32 vcc, 32, v{vKey}
    v_and_b32 v{vT1}, 7, v{vKey}
    v_and_b32 v{vT2}, 3, v{vKey}
    v_cndmask_b32 v{vT1}, v{vT1}, v{vT2}, vcc
    v_mul_u32_u24 v{vT1}, {PITCH}, v{vT1}
    v_bfe_u32 v{vT2}, v{vKey}, 3, 1
    v_bfe_u32 v{vT3}, v{vKey}, 2, 1
    v_cndmask_b32 v{vT2}, v{vT2}, v{vT3}, vcc
    v_lshl_add_u32 v{vT1}, v{vT2}, 9, v{vT1}
    v_mov_b32 v{vR3}, {L_R3}
    v_add3_u32 v{vRow}, v{vRow}, v{vT1}, v{vR3}
    v_and_b32 v{vFo}, 0xf0, v{vM16}
    v_and_b32 v{vT1}, 32, v{vL}
    v_lshl_add_u32 v{vFo}, v{vT1}, 3, v{vFo}
    v_bfe_u32 v{vT1}, v{vL}, 4, 1
    v_lshl_add_u32 v{vFo}, v{vT1}, 3, v{vFo}
    s_lshl_b32 s{s0}, s{sNB}, 2
    s_sub_u32 s{s0}, {L_CNT}, s{s0}
    v_mov_b32 v{vCb}, s{s0}
    v_add_u32 v{vT1}, s{sNB}, v{vKey}
    v_lshl_add_u32 v{vDis}, v{vT1}, 1, v{vR3}
    v_lshlrev_b32 v{vKey}, 2, v{vKey}
    v_add_u32 v{vKey}, {L_CNT}, v{vKey}
    v_and_b32 v{vFo2}, 0x1e0, v{vFo}
    v_and_b32 v{vT1}, 24, v{vFo}
    v_lshrrev_b32 v{vT1}, 1, v{vT1}
    v_add_u32 v{vFo2}, v{vFo2}, v{vT1}
    v_mov_b32 v{vWb}, {L_WGT}
    v_mov_b32 v{vOb}, {L_OFF}
    """)
    for j in range(0, 4, 2): a(f"v_mov_b64 {vr(EV+j,2)}, 0")
    assert ptrig <= u0 and thr + 2 < u0 and u0 >= 4
    wait(SY_GO, 1, sleep=2)
    gettag()
    if ptrig: wait(SY_P, 8, sleep=2)
    stamp(4)
    def poll(tag):
        a(f"""
        L_spoll{tag}:
        buffer_load_dwordx2 {vr(vOf,2)}, v{vOfa}, {srd(sWS)}, 0 offen sc1
        s_add_u32 s{s1}, s{s1}, 1
        s_cmp_gt_u32 s{s1}, 0x40000
        s_cbranch_scc1 L_end
        s_waitcnt vmcnt(0)
        v_xor_b32 v{vOf}, s{sTag}, v{vOf}
        v_xor_b32 v{vOf+1}, s{sTag}, v{vOf+1}
        v_or_b32 v{vT1}, v{vOf}, v{vOf+1}
        v_cmpx_lt_u32 vcc, {0xffffffff - TMASK}, v{vT1}
        s_cbranch_execz L_sok{tag}
        {f's_sleep {psleep}' if psleep else ''}
        s_branch L_spoll{tag}
        L_sok{tag}:
        s_mov_b64 exec, -1
        """)
    a(f"s_mov_b32 s{s1}, 0")
    a("s_and_b32 exec_lo, s64, 0xfefefefe\ns_and_b32 exec_hi, s65, 0xfefefefe")
    poll("a")
    sig(SY_V)
    a("s_mov_b32 exec_lo, 0x01010101\ns_mov_b32 exec_hi, 0x01010101")
    poll("b")
    a(f"""
    v_sub_u32 v{vCnt}, v{vOf+1}, v{vOf}
    v_lshl_or_b32 v{vCnt}, v{vCnt}, 16, v{vOf}
    s_nop 1
    v_mov_b32_dpp v{vCnt}, v{vCnt} quad_perm:[0,0,0,0] row_mask:0xf bank_mask:0xf
    s_nop 1
    v_mov_b32_dpp v{vCnt}, v{vCnt} row_shr:4 row_mask:0xf bank_mask:0xa
    v_mad_u32_u16 v{vEa2}, v{vCnt}, 4, v{vEa2}
    v_lshrrev_b32 v{vCnt}, 16, v{vCnt}
    v_sub_u32 v{vCnt}, v{vCnt}, v{vSub}
    """)
    if stamps: a(f"s_mov_b32 s{ST0+11}, s{ST0+1}\ns_add_u32 s{ST0+10}, s{ST0}, s{s1}")
    stamp(6)
    a(f"""
    v_cmpx_lt_i32 vcc, 0, v{vCnt}
    s_cbranch_execz L_entld
    buffer_load_dwordx4 {vr(EV,4)}, v{vEa2}, {srd(sWS)}, 0 offen sc1
    v_cmpx_lt_i32 vcc, 32, v{vCnt}
    ds_write_b32 v{vSy}, v{vOne} offset:{SY_OV}
    L_entld:
    s_mov_b64 exec, -1
    s_waitcnt vmcnt(0)
    """)
    stamp(7)
    def ladder(lab, body):
        for j in range(4):
            a(f"v_cmpx_lt_i32 vcc, {j}, v{vCnt}")
            body(j)
        a("s_mov_b64 exec, -1")
    ladder("L_l1", lambda j: a(f"""
        v_mad_u32_u16 v{LA+j}, v{EV+j}, 4, v{vCb} op_sel:[1,0,0,0]
        ds_add_rtn_u32 v{RK+j}, v{LA+j}, v{vOne}
        """))
    sig(SY_C1)
    for j in range(4):
        a(f"v_mad_u32_u16 v{WV+j}, v{EV+j}, 2, v{vR3}")
        if dbg & 16: a(f"v_and_b32 v{EV+j}, {gmask}, v{EV+j}")
        a(f"v_mad_u32_u16 v{EV+j}, v{EV+j}, s{sC512}, 0")
    wait(SY_C1, 8)
    a(f"""
    ds_read_b32 v{vSl}, v{vKey}
    ds_read_b32 v{vT1}, v{vSy} offset:{SY_OV}
    ds_read_u16 v{vDis}, v{vDis}
    """)
    for j in range(4): a(f"ds_read_u16 v{WV+j}, v{WV+j}")
    a(f"""
    s_lshl_b32 s{s0}, s2, 4
    s_add_u32 s{s0}, s{s0}, s{sW}
    s_cmp_eq_u32 s{s0}, 15
    s_cbranch_scc0 L_noep
    v_mov_b32 v{vT2}, s{sTag}
    v_mov_b32 v{vT3}, {W_EP}
    s_mov_b64 exec, 1
    buffer_store_dword v{vT2}, v{vT3}, {srd(sWS)}, 0 offen sc1
    s_mov_b64 exec, -1
    L_noep:
    s_waitcnt lgkmcnt(6)
    v_add_u32 v{vSl}, 1, v{vSl}
    v_lshrrev_b32 v{vSl}, 1, v{vSl}
    v_max_u32 v{vSl}, 1, v{vSl}
    v_cndmask_b32 v{vSl}, 0, v{vSl}, s[62:63]
    s_lshl_b32 s{sPad}, s{sJ}, 3
    s_movk_i32 s{s0}, {8*CAP*4}
    v_add_u32_dpp v{vSuf}, v{vSl}, v{vSl} row_shl:1 row_mask:0xf bank_mask:0xf bound_ctrl:1
    s_nop 1
    v_add_u32_dpp v{vSuf}, v{vSuf}, v{vSuf} row_shl:2 row_mask:0xf bank_mask:0xf bound_ctrl:1
    s_nop 1
    v_add_u32_dpp v{vSuf}, v{vSl}, v{vSuf} row_shl:4 row_mask:0xf bank_mask:0x5 bound_ctrl:1
    s_waitcnt lgkmcnt(0)
    v_lshlrev_b32 v{vDis}, 16, v{vDis}
    v_lshl_add_u32 v{vT1}, v{vT1}, 10, v{vSuf}
    v_sub_u32 v{vT2}, v{vLb}, v{vSuf}
    v_cmp_le_u32 vcc, {CAP}, v{vT1}
    v_lshlrev_b32 v{vT2}, 1, v{vT2}
    v_subrev_u32 v{vSl}, 1, v{vSl}
    s_cbranch_vccnz L_slow
    v_and_b32 v{vSl}, 0xff, v{vSl}
    v_lshl_add_u32 v{vRow}, v{vSl}, 18, v{vRow}
    s_mov_b64 exec, s[62:63]
    ds_write_b32 v{vKey}, v{vT2} offset:{L_BASE-L_CNT}
    s_mov_b64 exec, -1
    s_sub_u32 s{sK}, s{sPad}, 1
    v_readlane_b32 s{sPad}, v{vSuf}, s{sPad}
    """)
    ladder("L_l2", lambda j: a(f"ds_read_b32 v{LA+j}, v{LA+j} offset:{L_BASE-L_CNT}"))
    a(f"""
    s_lshr_b32 s{sRnd}, s{sPad}, {R.bit_length()-1}
    s_add_u32 s{s2_}, s{sRnd}, 1
    s_lshl_b32 s{s2_}, s{s2_}, {R.bit_length()-1}
    s_sub_u32 s{sPad}, s{s2_}, s{sPad}
    s_sub_u32 s{sRem}, s{sPad}, 1
    s_add_u32 s{s3_}, s{sJ}, 1
    s_mul_i32 s{s3_}, s{s3_}, {CAP}
    s_sub_u32 s{s2_}, s{s3_}, s{s2_}
    s_lshl_b32 s{s2_}, s{s2_}, 2
    s_waitcnt lgkmcnt(0)
    """)
    ladder("L_l3", lambda j: a(f"""
        v_add_u32 v{LA+j}, v{LA+j}, v{RK+j}
        v_lshl_add_u32 v{vT1}, v{LA+j}, 1, v{vWb}
        ds_write_b16 v{vT1}, v{WV+j}
        v_lshrrev_b32 v{vT2}, 1, v{LA+j}
        v_lshl_add_u32 v{vT2}, v{vT2}, 2, v{vOb}
        v_and_b32 v{vT3}, 1, v{LA+j}
        v_mad_u32_u24 v{vT2}, v{vT3}, s{s0}, v{vT2}
        ds_write_b32 v{vT2}, v{EV+j}
        """))
    sig(SY_C2)
    a(f"""
    v_lshrrev_b32 v{vT1}, 5, v{vL}
    v_mad_u32_u24 v{vEnt}, v{vT1}, s{s0}, v{vOb}
    v_add_u32 v{vEnt}, s{s2_}, v{vEnt}
    v_lshrrev_b32 v{vT1}, 4, v{vL}
    v_lshl_add_u32 v{vAad}, v{vT1}, 1, v{vWb}
    v_and_b32 v{vT1}, 3, v{vL}
    v_lshlrev_b32 v{vT1}, 3, v{vT1}
    v_add3_u32 v{vAad}, v{vAad}, v{vT1}, s{s2_}
    s_mov_b32 s{sRow}, {L_DUMMY + (((SY_DUM - SY_T) // 4) << 26)}
    s_mov_b32 s{sDis}, 0
    """)
    wait(SY_C2, 8)
    for t in range(0, R, 2): a(f"v_mov_b64 {vr(16+4*t,2)}, 0\nv_mov_b64 {vr(18+4*t,2)}, 0")
    a(f"v_mov_b32 v{vSyB}, v{vSy}\nv_mov_b32 v{vMM+1}, v{vM16}")
    stamp(8)
    if dbg & 4: a(f"v_mov_b32 v{vT0}, 64\nds_write_b32 v{vSyB}, v{vT0} offset:{SY_T}\nds_write_b32 v{vSyB}, v{vT0} offset:{SY_T+4}\nds_write_b32 v{vSyB}, v{vT0} offset:{SY_T+8}\ns_branch L_end")
    a(f"s_setprio {prioB}")
    if flip: a(f"s_cmp_lt_u32 s{sJ}, 4\ns_cbranch_scc1 L_old\ns_setprio {prioB+1}\nL_old:")

    RING, ENT, G, PRE = 16, 48, 56, 64
    vDa = 72
    vAraw, vAd = 1, vT0
    def smf(d, A, t):
        if not dbg & 2: a(f"v_smfmac_f32_16x16x64_bf16 {vr(d,4)}, {vr(A,4)}, {vr(RING+4*t,8)}, v{vIx}")
    def wmov(t):
        for q in range(4): a(f"v_mov_b32_dpp v{SA+q}, v{vAraw} row_newbcast:{t//2} row_mask:0xf bank_mask:{1<<q}")
    def load(t, ad): a(f"buffer_load_dwordx4 {vr(RING+4*t,4)}, v{ad}, {srd(sX)}, 0 offen")
    if park: a("s_mov_b64 vcc, 0")
    for q in range(R // 4): a(f"ds_read_b128 {vr(PRE+4*q,4)}, v{vEnt} offset:{16*q}")
    a(f"""
    ds_read_u16 v{vAraw}, v{vAad}
    ds_read_b128 {vr(ENT,4)}, v{vEnt} offset:{4*R}
    ds_read_b128 {vr(ENT+4,4)}, v{vEnt} offset:{4*R+16}
    s_waitcnt lgkmcnt(3)
    """)
    for t in range(R):
        if t % 4 == 0:
            a(f"L_p{t}:")
            if t + 4 < R: a(f"s_cmp_ge_u32 s{sPad}, {t+4}\ns_cbranch_scc1 L_p{t+4}")
        if t == 0: continue
        sk = a.label("Lps")
        a(f"s_cmp_gt_u32 s{sPad}, {t}\ns_cbranch_scc1 {sk}\nv_add_u32 v{PRE+t}, v{PRE+t}, v{vM16}")
        if t >= D: a(f"s_waitcnt vmcnt({D-1})")
        load(t, PRE + t)
        a(f"{sk}:")
    a(f"s_cmp_eq_u32 s{sRnd}, 0\ns_cbranch_scc1 L_drain\nL_gl:")
    if park: a(f"s_cmp_le_u32 s{sRnd}, {dr}\ns_cbranch_scc1 L_dm0\nL_dm0b:")
    for t in range(0, R, 2):
        if t == 0: a("s_waitcnt lgkmcnt(1)")
        wmov(t)
        if t == R - 2: a(f"ds_read_u16 v{vAraw}, v{vAad} offset:{4*R}")
        a(f"""
        s_waitcnt vmcnt({D-2}){' lgkmcnt(1)' if t == 4 else ''}
        v_lshl_add_u64 {vr(vAd,2)}, {vr(ENT+(t&7),2)}, 0, {vr(vMM,2)}
        s_sub_u32 s{sRem}, s{sRem}, 2
        s_cbranch_scc1 Lfs_{t}
        """)
        smf(G, SA, t); load(t, vAd); load(t + 1, vAd + 1)
        a(f"Lbs_{t}:")
        if park: a(f"s_cbranch_vccnz Ldm_{t}\nLdb_{t}:")
        if t % 4 == 2: a(f"ds_read_b128 {vr(ENT+((t-2)&7),4)}, v{vEnt} offset:{4*(R+8+t-2)}")
    a(f"""
    v_add_u32 v{vEnt}, {4*R}, v{vEnt}
    v_add_u32 v{vAad}, {4*R}, v{vAad}
    s_sub_u32 s{sRnd}, s{sRnd}, 1
    """)
    if flip: a(f"s_cmp_eq_u32 s{sRnd}, {flip}\ns_cbranch_scc0 L_nf\ns_setprio {prioB}\nL_nf:")
    a(f"""
    s_cmp_lg_u32 s{sRnd}, 0
    s_cbranch_scc1 L_gl
    L_drain:
    """)
    def ending(t, tag):
        a(f"""
        s_cmp_eq_u32 s{sRem}, -1
        s_cbranch_scc1 Lal{tag}_{t}
        s_mov_b32 exec_lo, 0
        v_mov_b64 {vr(SH,2)}, {vr(SA,2)}
        v_mov_b64 {vr(SH+2,2)}, {vr(SA+2,2)}
        v_mov_b64 {vr(SA,2)}, 0
        v_mov_b64 {vr(SA+2,2)}, 0
        s_mov_b64 exec, -1
        """)
        smf(G2, SH, t)
        a(f"Lal{tag}_{t}:")
        smf(G, SA, t)
        if tag == "s": load(t, vAd); load(t + 1, vAd + 1)
        a(f"s_call_b64 {pr(sRet)}, L_flush")
    for t in range(0, R, 2):
        if t == 0: a("s_waitcnt lgkmcnt(0)")
        wmov(t)
        a(f"s_sub_u32 s{sRem}, s{sRem}, 2\ns_waitcnt vmcnt({R-2-t})")
        if t < R - 2:
            a(f"s_cbranch_scc1 Lfd_{t}")
            smf(G, SA, t)
            a(f"Lbd_{t}:")
        else: ending(t, "d")
    a("L_gdone:")
    def dumpaddr():
        a(f"""
        s_lshl_b32 s{s0}, s{sJ}, 10
        v_lshl_add_u32 v{vDa}, v{vL}, 4, s{s0}
        s_and_b32 s{s0}, s{sJ}, 4
        v_lshl_add_u32 v{vDa+1}, s{s0}, 4, v{vDa}
        s_movk_i32 s{s0}, 0x1f0
        v_bfi_b32 v{vDa}, s{s0}, v{vDa+1}, v{vDa}
        """)
        if NP > 8: a(f"v_add_u32 v{vDa+1}, 0x10000, v{vDa}")
    def dwrite(i): a(f"ds_write_b128 v{vDa + (i >> 3)}, {vr(PARK+4*i,4)} offset:{(i&7)*8192}")
    def dsignal(): a(f"s_mov_b64 exec, 1\nds_inc_u32 v{vSyB}, v{vSyB} offset:{SY_D}\ns_mov_b64 exec, -1")
    if park:
        a(f"s_cmp_eq_u32 s{sDm}, 0\ns_cbranch_scc0 L_dd")
        wait(SY_B, 8, sleep=2, vSy=vSyB)
        dumpaddr()
        for i in range(NP): dwrite(i)
        dsignal()
        a("L_dd:")
    if stamps and not fst: stamp(9)
    if stamps and fst:
        a("s_nop 1")
        for k in range(5): a(f"v_readlane_b32 s{ST0+18+2*k}, v120, {k+1}\ns_mov_b32 s{ST0+19+2*k}, s45")
    a("s_branch L_end" if stamps else "s_endpgm")
    for t in range(0, R, 2):
        for tag in "sd":
            if tag == "d" and t == R - 2: continue
            a(f"Lf{tag}_{t}:")
            ending(t, tag)
            a(f"s_branch Lb{tag}_{t}")
    if park:
        a(f"L_dm0:\ns_mov_b64 vcc, 0\ns_cmp_eq_u32 s{sDm}, 0\ns_cbranch_scc0 L_dm0b")
        a(f"ds_read_b32 v{vT0}, v{vSyB} offset:{SY_B}\ns_waitcnt lgkmcnt(0)\nv_cmp_le_u32 vcc, 8, v{vT0}\ns_cbranch_vccz L_dm0b")
        dumpaddr()
        a(f"s_mov_b32 s{sDm}, 1\ns_mov_b64 vcc, -1\ns_branch L_dm0b")
        for t in range(0, R, 2):
            a(f"Ldm_{t}:")
            for i in range(NP * t // 8, NP * (t + 2) // 8): dwrite(i)
            if t == R - 2: dsignal()
            a(f"s_branch Ldb_{t}")
    a(f"""
    L_flush:
    s_and_b32 s{sTc}, s{sRow}, 0x3ffff
    s_add_u32 s{sK}, s{sK}, 1
    s_mov_b32 s{sFo}, s{sRem}
    s_lshr_b32 s{sRem}, s{sRow}, 26
    v_add_u32 v{G+6}, s{sTc}, v{vFo}
    v_lshl_add_u32 v{G+7}, s{sRem}, 2, v{vSyB}
    s_nop 0
    v_pk_mul_f32 {vr(G,2)}, {vr(G,2)}, {pr(sDis)} op_sel_hi:[1,0]
    v_pk_mul_f32 {vr(G+2,2)}, {vr(G+2,2)}, {pr(sDis)} op_sel_hi:[1,0]
    v_cvt_pk_bf16_f32 v{G+4}, v{G}, v{G+1}
    v_cvt_pk_bf16_f32 v{G+5}, v{G+2}, v{G+3}
    """)
    if sparse: a(f"""
    s_cmp_eq_u32 s{sRem}, 2
    s_cbranch_scc0 L_fl1
    v_add_u32 v{G+6}, s{sTc}, v{vFo2}
    ds_write2_b32 v{G+6}, v{G+4}, v{G+5} offset0:0 offset1:4
    s_mov_b64 exec, 1
    ds_inc_u32 v{G+7}, v{G+7} offset:{SY_T}
    s_mov_b64 exec, -1
    s_setpc_b64 {pr(sRet)}
    L_fl1:
    """)
    a(f"""
    ds_write_b64 v{G+6}, {vr(G+4,2)}
    s_mov_b64 exec, 1
    ds_inc_u32 v{G+7}, v{G+7} offset:{SY_T}
    s_mov_b64 exec, -1
    v_readlane_b32 s{sRow}, v{vRow}, s{sK}
    v_readlane_b32 s{sDis}, v{vDis}, s{sK}
    v_mov_b64 {vr(G,2)}, {vr(G2,2)}
    v_mov_b64 {vr(G+2,2)}, {vr(G2+2,2)}
    s_bfe_u32 s{sRem}, s{sRow}, 0x80012
    s_cmp_eq_u32 s{sFo}, -2
    s_cbranch_scc0 L_fl2
    v_mov_b64 {vr(G2,2)}, 0
    v_mov_b64 {vr(G2+2,2)}, 0
    s_sub_u32 s{sRem}, s{sRem}, 1
    s_cbranch_scc1 L_flush
    L_fl2:
    """)
    if stamps and fst: a(f"{TM} s[44:45]\ns_and_b32 m0, s{sK}, 7\ns_waitcnt lgkmcnt(0)\nv_writelane_b32 v120, s44, m0")
    a(f"s_setpc_b64 {pr(sRet)}")

    FR, XB, ACC, IDX = 16, 80, 104, 104
    vXa, vQw, vMo, vXs = 12, 13, 14, 15
    def fr(s, t): return FR + 16 * (s >> 1) + 8 * t + 4 * (s & 1)
    def xaddr(region):
        a(f"v_add_u32 v{vXa}, {region}, v{vFrag}")
    a(f"""
    L_preA:
    s_setprio {prioE}
    {common}
    {f's_cmp_ge_u32 s2, {nact}' if nact else ''}
    {'s_cbranch_scc1 L_end' if nact else ''}
    """)
    fragaddr()
    xaddr(L_R1)
    a(f"""
    v_lshlrev_b32 v{vMo}, 4, v{vL}
    s_lshl_b32 s{s3_}, s{sW}, 6
    s_add_u32 s{s3_}, s{s3_}, {L_R2}
    v_add_u32 v{vQw}, s{s3_}, v{vFrag}
    s_lshl_b32 s{sFo}, s{sW}, 14
    s_add_u32 s{sFo}, s{sFo}, {W_FR}
    s_waitcnt lgkmcnt(0)
    s_cmp_eq_u32 s{sW}, 0
    s_cbranch_scc0 L_notag
    s_add_u32 s{sTag}, s{sTag}, 0x9e377000
    s_and_b32 s{sTag}, s{sTag}, {TMASK}
    s_bitset1_b32 s{sTag}, 0
    v_mov_b32 v{vT0}, s{sTag}
    ds_write_b32 v{vSy}, v{vT0} offset:{SY_TAG}
    L_notag:
    """)
    for h in range(2):
        for u in range(10):
            src = 12 + 8 * h + u if u < 8 else 28 + 2 * h + u - 8
            if dbg & 8: a(f"s_and_b32 s{src}, s{src}, 0xff")
            a(f"v_lshl_add_u32 v{IDX+u}, s{src}, 9, v{vM16}")
        a("s_mov_b32 exec_lo, 0" if h == 0 else "s_mov_b64 exec, -1")
    a(wsrd)
    base(sOUT, pOUT, 10000 * 512)
    a(f"s_mov_b32 s{sOUT+3}, 0x20000")
    stamp(1)
    a(f"s_cmp_ge_u32 s2, {NPROD}\ns_cbranch_scc1 L_nopb\ns_barrier\n{'' if pb else 's_barrier'}\nL_nopb:")
    def eload(u, lim):
        a(f"s_add_u32 m0, s{sRnd}, {L_E + u*PITCH}" if u < 8 else f"s_add_u32 m0, s{sPad}, {L_E + 8*TILE + (u-8)*PITCH}")
        a(f"s_waitcnt vmcnt({lim})\nbuffer_load_dwordx4 v{IDX+u}, {srd(sX)}, 0 offen lds")
    a(f"s_mul_i32 s{sPad}, s{sW}, {2*PITCH}\ns_mul_i32 s{sRnd}, s{sW}, {TILE}")
    def xread(s, sp=False):
        for rt in range(2 if sp else 3):
            a(f"ds_read_b128 {vr(XB+12*(s&1)+4*rt,4)}, v{vXa} offset:{rt*TILE+s*64}")
        if sp and s & 1: a(f"ds_read_b128 {vr(XB+20,4)}, v{vXs} offset:{(s>>1)*128}")
        return 3 if not sp or s & 1 else 2
    def spsetup(region, vIx):
        a(f"""
        v_and_b32 v{vT0}, 3, v{vL}
        v_mul_u32_u24 v{vXs}, {PITCH}, v{vT0}
        v_and_b32 v{vT0}, 8, v{vL}
        v_lshl_add_u32 v{vXs}, v{vT0}, 6, v{vXs}
        v_and_b32 v{vT0}, 48, v{vL}
        v_lshl_add_u32 v{vXs}, v{vT0}, 1, v{vXs}
        v_and_b32 v{vT0}, 4, v{vL}
        v_lshl_add_u32 v{vXs}, v{vT0}, 2, v{vXs}
        v_add_u32 v{vXs}, {region + 2*TILE}, v{vXs}
        v_mul_u32_u24 v{vIx}, {0xaaaa // 2}, v{vT0}
        v_lshrrev_b32 v{vIx}, 1, v{vIx}
        v_add_u32 v{vIx}, 0x4444, v{vIx}
        """)
    def spfold(d):
        for t in range(2):
            for r in range(2): a(f"v_permlane16_swap_b32 v{d+4*t+r}, v{d+4*t+r+2}")
        a(f"v_pk_add_f32 {vr(d,2)}, {vr(d,2)}, {vr(d+2,2)}\nv_pk_add_f32 {vr(d+4,2)}, {vr(d+4,2)}, {vr(d+6,2)}")
    vSL0, vSL1, vSH0, vSH1 = 8, 9, 10, 11
    for u in range(10):
        if u == 2: selregs(vSL0, vSL1, vSH0, vSH1)
        if u == u0 - 1:
            wait(SY_X, 8)
            xread(0)
        deep = thrP > thr and u >= uP0
        if deep:
            sk = a.label("Lth")
            a(f"s_cmp_lt_u32 s2, {NPROD}\ns_cbranch_scc1 {sk}\ns_waitcnt vmcnt({thr})\n{sk}:")
        lim = thrP if deep else thr
        if u >= u0:
            a(f"s_waitcnt vmcnt({lim})\nds_read_b32 v{vT0}, v{vSy} offset:{SY_V}")
        eload(u, lim)
        if pb and u + 1 == pb: a(f"s_cmp_ge_u32 s2, {NPROD}\ns_cbranch_scc1 L_nopb2\ns_barrier\nL_nopb2:")
        if u + 1 == ptrig: signal(SY_P)
        if u == max(thr, thrP) + 1: signal(SY_X)
        if u0 <= u < 9:
            a(f"s_mov_b32 s{sRem}, {u+1}\ns_waitcnt lgkmcnt(0)\nv_cmp_gt_u32 vcc, 8, v{vT0}\ns_cbranch_vccz L_eu10")
    a(f"s_mov_b32 s{sRem}, 10")
    stamp(4)
    wait(SY_V, 8, sleep=1)
    a("L_eu10:")
    def fload(i):
        if i % 4 == 0 and i: a(f"s_add_u32 s{sFo}, s{sFo}, {4096 if i % 16 else 131072 - 12288}")
        if dbg & 64 and i // 16 == 1: return
        if dbg & 1024 and i // 16 == 2: return
        a(f"buffer_load_dwordx4 {vr(fr(i % 16 // 2, i & 1),4)}, v{vMo}, {srd(sWS)}, s{sFo} offen offset:{(i%4)*1024} sc1")
    def gemm(w_is_a, nxt, at, sp=0):
        done = 0
        assert not sp or at == 8
        for s in range(8):
            n = xread(s + 1, sp) if s < 7 else 0
            a(f"s_waitcnt vmcnt({14 - 2*s + done}) lgkmcnt({n})")
            for rt in range(3):
                for t in range(2):
                    if sp and rt == 2:
                        if s & 1: a(f"v_smfmac_f32_16x16x64_bf16 {vr(ACC+16+4*t,4)}, {vr(XB+20,4)}, {vr(fr(s-1,t),8)}, v{sp}")
                        continue
                    d, f, x = vr(ACC + 8 * rt + 4 * t, 4), vr(fr(s, t), 4), vr(XB + 12 * (s & 1) + 4 * rt, 4)
                    if not dbg & 128: a(f"v_mfma_f32_16x16x32_bf16 {d}, {f if w_is_a else x}, {x if w_is_a else f}, {'0' if s == 0 else d}")
            if s >= at:
                n = min(2 * s + 2, done + rate)
                a(f"s_setprio {prioL}")
                for i in range(done, n): fload(16 * nxt + i)
                a(f"s_setprio {prioA}")
                done = n
        return done
    def burst(mat, first=0):
        a(f"s_setprio {prioL}")
        rest = list(range(u0 + 1, 10)) if mat == 0 else []
        pos = {(k + 1) * 16 // len(rest) - 1: u for k, u in enumerate(rest)}
        for i in range(first, 16):
            fload(16 * mat + i)
            if i in pos:
                sk = a.label("Lem")
                a(f"s_cmp_gt_u32 s{sRem}, {pos[i]}\ns_cbranch_scc1 {sk}")
                eload(pos[i], 63)
                a(f"{sk}:")
        a(f"s_setprio {prioA}")
        if mat: stamp(mat + 1)
    stamp(5)
    if adelay: a(f"s_sleep {adelay}")
    if dbg & 1: a("s_branch L_end")

    burst(0)
    done = gemm(True, 1, at1)
    a("s_nop 3")
    for rt in range(3):
        d0, d1, o = ACC + 8 * rt, ACC + 8 * rt + 4, XB + 4 * rt
        a(f"""
        v_cvt_pk_bf16_f32 v{o}, v{d0}, v{d0+1}
        v_cvt_pk_bf16_f32 v{o+1}, v{d0+2}, v{d0+3}
        v_cvt_pk_bf16_f32 v{o+2}, v{d1}, v{d1+1}
        v_cvt_pk_bf16_f32 v{o+3}, v{d1+2}, v{d1+3}
        ds_write_b128 v{vQw}, {vr(o,4)} offset:{rt*TILE}
        """)
    signal(SY_A)
    stamp(6)
    burst(1, done)

    vEa, vQa, vEr, vAw = 12, 13, 14, 2
    sG = sK
    P, RB, AJ = 80, 80, 112
    DK = [120, 124, 4, 12]
    a(f"""
    s_mov_b32 s{sG}, s{sW}
    L_grp:
    s_mul_i32 s{s0}, s{sG}, {TILE}
    s_lshr_b32 s{s1}, s{sG}, 2
    s_mul_i32 s{s1}, s{s1}, {TILE}
    s_and_b32 s{s2_}, s{sG}, 1
    s_bfe_u32 s{s3_}, s{sG}, 0x10001
    s_cmp_ge_u32 s{sG}, 8
    s_cselect_b32 s{s3_}, s{s2_}, s{s3_}
    s_cselect_b32 s{s2_}, 0, s{s2_}
    s_mul_i32 s{s2_}, s{s2_}, {TILE//2}
    s_lshl_b32 s{s3_}, s{s3_}, 9
    s_add_u32 s{s1}, s{s1}, s{s2_}
    s_add_u32 s{s1}, s{s1}, s{s3_}
    s_add_u32 s{s1}, s{s1}, {L_R2}
    v_add_u32 v{vEa}, s{s0}, v{vFrag}
    v_bfe_u32 v{vT0}, v{vL}, 2, 2
    v_mul_u32_u24 v{vT0}, {PITCH}, v{vT0}
    v_and_b32 v{vT1}, 48, v{vL}
    v_add3_u32 v{vQa}, v{vT0}, v{vT1}, s{s1}
    v_lshl_add_u32 v{vEr}, v{vL}, 3, s{s0}
    v_lshl_add_u32 v{vAw}, v{vL}, 3, s{s1}
    s_cmp_ge_u32 s{sG}, 8
    s_cbranch_scc1 L_grp2
    """)
    wait(SY_A, 8, sleep=wsl)
    a("L_grp2:\ns_waitcnt lgkmcnt(0)")
    if dbg & 512: a("s_branch L_grpx")
    def pread(s):
        a(f"ds_read_b128 {vr(P+8*(s%6),4)}, v{vEa} offset:{s*64}")
        a(f"ds_read_b128 {vr(P+8*(s%6)+4,4)}, v{vQa} offset:{s*64}")
    for s in range(6): pread(s)
    for s in range(8):
        a(f"s_waitcnt lgkmcnt({10 if s < 3 else 14-2*s})")
        a(f"v_mfma_f32_16x16x32_bf16 v[4:7], {vr(P+8*(s%6),4)}, {vr(P+8*(s%6)+4,4)}, {'0' if s == 0 else 'v[4:7]'}")
        if s < 2: pread(s + 6)
    order = [(j, k) for j in (2, 3, 0, 1) for k in range(4)]
    for n, (j, k) in enumerate(order):
        i = 4 * k + j
        if n == 15: a("s_waitcnt lgkmcnt(14)")
        a(f"ds_read_b64 {vr(RB+8*j+2*k,2)}, v{vEr} offset:{(i&7)*PITCH+(i>>3)*512}")
    a(f"""
    v_mul_f32 v4, 0x3db8aa3b, v4
    v_mul_f32 v5, 0x3db8aa3b, v5
    v_mul_f32 v6, 0x3db8aa3b, v6
    v_mul_f32 v7, 0x3db8aa3b, v7
    v_exp_f32 v4, v4
    v_exp_f32 v5, v5
    v_exp_f32 v6, v6
    v_exp_f32 v7, v7
    v_add_f32 v12, v4, v5
    v_add_f32 v13, v6, v7
    v_add_f32 v12, v12, v13
    v_add_f32 v12, 0x3089705f, v12
    v_rcp_f32 v12, v12
    s_add_u32 s{sG}, s{sG}, 8
    v_mul_f32 v4, v4, v12
    v_mul_f32 v5, v5, v12
    v_mul_f32 v6, v6, v12
    v_mul_f32 v7, v7, v12
    v_cvt_pk_bf16_f32 v4, v4, v5
    v_cvt_pk_bf16_f32 v6, v6, v7
    """)
    for j in range(4):
        src = 4 + (j & 2)
        a(f"v_perm_b32 v{AJ+2*j}, v{src}, v{src}, v{vSH0 if j & 1 else vSL0}")
        a(f"v_perm_b32 v{AJ+2*j+1}, v{src}, v{src}, v{vSH1 if j & 1 else vSL1}")
    a("s_waitcnt lgkmcnt(0)")
    for j in range(4):
        for k in range(4):
            d = vr(DK[k], 4)
            a(f"v_mfma_f32_4x4x4_16b_bf16 {d}, {vr(AJ+2*j,2)}, {vr(RB+8*j+2*k,2)}, {'0' if j == 0 else d} cbsz:4 abid:{5*k}")
    a("s_nop 1")
    if sparse:
        a(f"s_cmp_lt_u32 s{sG}, 16\ns_cbranch_scc1 L_grp3")
        for k in range(4):
            a(f"v_cvt_pk_bf16_f32 v{AJ+2*k}, v{DK[k]}, v{DK[k]+1}\nv_cvt_pk_bf16_f32 v{AJ+2*k+1}, v{DK[k]+2}, v{DK[k]+3}")
        a(f"v_and_b32 v{vT0}, 3, v{vL}\nv_lshlrev_b32 v{vT0}, 2, v{vT0}\nv_sub_u32 v{vAw}, v{vAw}, v{vT0}")
        for k in range(4):
            a(f"ds_write_b32 v{vAw}, v{AJ+2*k} offset:{k*PITCH}\nds_write_b32 v{vAw}, v{AJ+2*k+1} offset:{k*PITCH+16}")
        a("s_branch L_grpx\nL_grp3:")
    for k in range(4):
        d = DK[k]
        a(f"""
        v_cvt_pk_bf16_f32 v{AJ+2*k}, v{d}, v{d+1}
        v_cvt_pk_bf16_f32 v{AJ+2*k+1}, v{d+2}, v{d+3}
        ds_write_b64 v{vAw}, {vr(AJ+2*k,2)} offset:{k*PITCH}
        """)
    a(f"s_cmp_lt_u32 s{sG}, 10\ns_cbranch_scc1 L_grp\nL_grpx:")
    signal(SY_B)
    stamp(7)

    vOo, vOo2 = 8, 9
    xaddr(L_R2)
    a(f"""
    v_lshlrev_b32 v{vMo}, 4, v{vL}
    v_and_b32 v{vT2}, 15, v{vL}
    v_lshlrev_b32 v{vT2}, 2, v{vT2}
    v_and_b32 v{vT1}, 48, v{vL}
    v_lshl_add_u32 v{vOo}, v{vT1}, 7, v{vT2}
    {'' if sparse else f'v_and_b32 v{vT1}, 32, v{vL}'}
    v_lshl_add_u32 v{vOo2}, v{vT1}, 6, v{vT2}
    {'' if sparse else f'v_and_b32 v{vT1}, 16, v{vL}'}
    {'' if sparse else f'v_lshl_add_u32 v{vOo2}, v{vT1}, 22, v{vOo2}'}
    s_lshl_b32 s{s2_}, s{sNB}, 9
    s_lshl_b32 s{s3_}, s{sW}, 6
    s_add_u32 s{s2_}, s{s2_}, s{s3_}
    """)
    if sparse:
        spsetup(L_R2, vQw)
        for k in range(0, 8, 2): a(f"v_mov_b64 {vr(ACC+16+k,2)}, 0")
    wait(SY_B, 8, sleep=wsl)
    xread(0, sparse)
    done = gemm(False, 2, 8 if park else at2, vQw if sparse else 0)
    stamp(8)
    if park:
        a(f"s_add_u32 s{sFo}, s{sFo}, {131072 - 12288 + 4096 * ((NP - 1) // 4)}")
        burst(2, NP)
        a(f"""
        v_and_b32 v{vT1}, 15, v{vL}
        v_lshlrev_b32 v{vT1}, 2, v{vT1}
        v_and_b32 v{vT2}, 16, v{vL}
        v_lshl_add_u32 v{vT1}, v{vT2}, 2, v{vT1}
        s_lshl_b32 s{s0}, s{sW}, 6
        v_add_u32 v{vT1}, s{s0}, v{vT1}
        v_and_b32 v{vT1}, 0x1ff, v{vT1}
        v_and_b32 v{vT2}, 48, v{vL}
        v_lshl_add_u32 v{vT1}, v{vT2}, 8, v{vT1}
        s_mov_b32 s{sSelLo}, 0x05040100
        s_mov_b32 s{sSelHi}, 0x07060302
        """)
        wait(SY_D, 8, sleep=2, cap=0x1000000)
        stamp(13)
        if park > 4: a(f"v_add_u32 v{vT2}, 0x10000, v{vT1}")
        def wread(n):
            for q in range(4):
                o = (n & 3) * 64 + 4 * q
                a(f"ds_read2st64_b32 {vr(XB+8*(n%3)+2*q,2)}, v{vT1 if n < 4 else vT2} offset0:{o} offset1:{o+2}")
        for n in range(min(3, park)): wread(n)
        for n in range(park):
            a(f"s_waitcnt lgkmcnt({4*min(2, park-1-n)})")
            r = XB + 8 * (n % 3)
            for q in range(4):
                a(f"v_perm_b32 v{fr(n,0)+q}, v{r+2*q+1}, v{r+2*q}, s{sSelLo}")
                a(f"v_perm_b32 v{fr(n,1)+q}, v{r+2*q+1}, v{r+2*q}, s{sSelHi}")
            if n + 3 < park: wread(n + 3)
    else:
        burst(2, done)
    xaddr(L_R3)
    for rt in range(3):
        if dbg & 4096 and rt == 2: break
        if rt == 2 and sparse:
            d = ACC + 16
            a(f"v_add_u32 v{vXs}, {L_R3 - L_R2}, v{vXs}")
            wait(SY_T + 8, 8, cap=0x1000000)
            stamp(10)
            for s in range(4): a(f"ds_read_b128 {vr(XB+4*s,4)}, v{vXs} offset:{s*128}")
            for s in range(4):
                a(f"s_waitcnt lgkmcnt({3-s})")
                for t in range(2): a(f"v_smfmac_f32_16x16x64_bf16 {vr(d+4*t,4)}, {vr(XB+4*s,4)}, {vr(fr(2*s,t),8)}, v{vQw}")
            a("s_nop 6")
            spfold(d)
            for r in range(2):
                a(f"v_cvt_pk_bf16_f32 v{d+r}, v{d+r}, v{d+4+r}\nbuffer_store_dword v{d+r}, v{vOo2}, {srd(sOUT)}, s{s2_} offen offset:{r*512} sc1")
            break
        wait(SY_T + 4 * rt, 16 if rt < 2 else 8, sleep=tsl if rt < 2 else 0, cap=0x1000000)
        if rt == 2: stamp(10)
        for s in range(6):
            a(f"ds_read_b128 {vr(XB+4*s,4)}, v{vXa} offset:{rt*TILE+s*64}")
        for s in range(8):
            vm = f"vmcnt({14-2*s}) " if rt == 0 else ""
            a(f"s_waitcnt {vm}lgkmcnt({5 if s < 3 else 7-s})")
            for t in range(2):
                d = vr(ACC + 8 * rt + 4 * t, 4)
                if not (dbg & 128 and rt < 2) and not (dbg & 8192 and rt == 2): a(f"v_mfma_f32_16x16x32_bf16 {d}, {vr(XB+4*(s%6),4)}, {vr(fr(s, t),4)}, {d}")
            if s < 2: a(f"ds_read_b128 {vr(XB+4*s,4)}, v{vXa} offset:{rt*TILE+(s+6)*64}")
        a("s_nop 7")
        for r in range(4):
            if dbg & 256 and rt < 2: continue
            if dbg & 16384 and rt == 2: continue
            d = ACC + 8 * rt
            a(f"""
            v_cvt_pk_bf16_f32 v{d+r}, v{d+r}, v{d+4+r}
            buffer_store_dword v{d+r}, v{vOo if rt < 2 else vOo2}, {srd(sOUT)}, s{s2_} offen offset:{r*512} sc1
            """)
        if rt < 2: a(f"s_add_u32 s{s2_}, s{s2_}, 8192")
        if rt == 0: stamp(9)
    stamp(11)
    if stamps: a("s_waitcnt vmcnt(0)")
    stamp(12)
    a("L_end:")
    if probe >= 0:
        a(f"""
        s_cmp_eq_u32 s{sW}, {pw}
        s_cbranch_scc0 L_noprobe
        s_sub_u32 s{s0}, s{ST0+2*probe}, s{ST0}
        s_min_u32 s{s0}, s{s0}, 20000
        s_mul_i32 s{s0}, s{s0}, {pk}
        s_memrealtime s[60:61]
        L_probe:
        s_memrealtime s[62:63]
        s_waitcnt lgkmcnt(0)
        s_sub_u32 s62, s62, s60
        s_cmp_lt_u32 s62, s{s0}
        s_cbranch_scc1 L_probe
        L_noprobe:
        """)
    if stamps in (1, 2):
        a(f"""
        s_mov_b64 exec, -1
        s_add_u32 s{sT1}, s{pWS}, {STAMP_OFF}
        s_addc_u32 s{sT1+1}, s{pWS+1}, 0
        s_mov_b32 s{sT1+2}, 0x1000000
        s_mov_b32 s{sT1+3}, 0x20000
        s_lshl_b32 s{s0}, s2, 4
        s_add_u32 s{s0}, s{s0}, s{sW}
        s_mul_i32 s{s0}, s{s0}, {NSTAMP*8}
        v_lshlrev_b32 v4, 2, v0
        v_mov_b32 v6, 0
        """)
        for i in range(2 * NSTAMP): a(f"v_writelane_b32 v6, s{ST0+i}, {i}")
        a(f"s_bfm_b64 exec, {2*NSTAMP}, 0\nbuffer_store_dword v6, v4, {srd(sT1)}, s{s0} offen")
    a("L_exit:\ns_endpgm")

    a("L_slow:\ns_setprio 0")
    sig(SY_C2)
    wait(SY_C2, 8)
    a(f"v_mov_b32 v{vSyB}, v{vSy}")
    base(sT1, pSRC, 640000)
    base(sT2, pDST, 640000)
    base(sT3, pDIS, 20000)
    a(f"""
    s_mov_b32 s{sT3+3}, 0x20000
    s_sub_u32 s{sK}, s{sPad}, 1
    s_mov_b32 s{sRow}, {L_DUMMY + (((SY_DUM - SY_T) // 4) << 26)}
    s_mov_b32 s{sDis}, 0
    s_mov_b32 s{sRem}, 0
    s_call_b64 {pr(sRet)}, L_flush
    s_add_u32 s{sRnd}, s{sJ}, s{sNB}
    s_add_u32 s{sPad}, s{sRnd}, 40
    v_lshlrev_b32 v16, 2, v{vL}
    v_and_b32 v17, 32, v{vL}
    v_lshl_add_u32 v17, v17, 22, v{vM16}
    v_mov_b64 v[24:25], 0
    v_mov_b64 v[26:27], 0
    L_sn:
    s_mov_b32 s{s2_}, 0
    L_sc:
    buffer_load_dword v18, v16, {srd(sT2)}, s{s2_} offen
    buffer_load_dword v19, v16, {srd(sT1)}, s{s2_} offen
    s_waitcnt vmcnt(0)
    v_cmp_eq_u32 vcc, s{sRnd}, v18
    s_cbranch_vccz L_sx
    L_se:
    s_ff1_i32_b64 s{s0}, vcc
    s_bitset0_b64 vcc, s{s0}
    v_readlane_b32 s{s1}, v19, s{s0}
    s_nop 3
    s_lshl_b32 s{s3_}, s{s1}, 9
    s_lshl_b32 s{s1}, s{s1}, 1
    buffer_load_dwordx4 v[20:23], v17, {srd(sX)}, s{s3_} offen
    buffer_load_ushort v{vAraw}, v24, {srd(sT3)}, s{s1} offen
    s_waitcnt vmcnt(0)
    """)
    wmov(0)
    a("s_nop 1")
    smf(G, SA, 1)
    a(f"""
    s_cmp_lg_u64 vcc, 0
    s_cbranch_scc1 L_se
    L_sx:
    s_add_u32 s{s2_}, s{s2_}, 256
    s_cmp_lt_u32 s{s2_}, 640000
    s_cbranch_scc1 L_sc
    s_call_b64 {pr(sRet)}, L_flush
    s_add_u32 s{sRnd}, s{sRnd}, 8
    s_cmp_lt_u32 s{sRnd}, s{sPad}
    s_cbranch_scc1 L_sn
    s_branch L_gdone
    """)
    hdr = open("standalone__hybrid_graph_tf_exphormer__graph.s.ref").read().split("; Override")[0]
    hdr += "".join("; " + l + "\n" for l in ABOUT.strip().split("\n"))
    text = wrap(a.text(), NWG, 1024, LDS, 128, header=hdr)
    lines = (text_size(text.replace("CODE_LINES", "100")) - 512) // 128
    assert 64 < lines < 200
    return text.replace("CODE_LINES", str(lines))


if __name__ == "__main__":
    kw = dict(x.split("=") for x in sys.argv[2:])
    kw = {k: int(v) for k, v in kw.items()}
    open(sys.argv[1], "w").write(gen(**kw))
```
